```python
import torch

def _softmax(x, axis=-1):
    return torch.softmax(x, dim=axis)
def _gelu(x):
    return torch.nn.functional.gelu(x, approximate="tanh")
def _silu(x):
    return torch.nn.functional.silu(x)
def _sigmoid(x):
    return torch.sigmoid(x)
def _layernorm(x, axis=-1, eps=1e-5):
    m = x.mean(dim=axis, keepdim=True)
    v = x.var(dim=axis, keepdim=True, unbiased=False)
    return (x - m) / torch.sqrt(v + eps)
def _scatter_add(tgt, idx, src, axis=0):
    return tgt.clone().index_add_(axis, idx, src)
def _segment_sum(src, seg, n):
    out = torch.zeros((n,) + src.shape[1:], dtype=src.dtype)
    return out.index_add_(0, seg, src)
def _pad(x, pw):
    flat = tuple(v for pair in reversed(pw) for v in pair)
    return torch.nn.functional.pad(x, flat)

kernel_name = 'concat_heads__gqa_block_cached__gqa_block_cached__decode'

def setup_inputs():

    _w = (lambda a: (lambda t: t.to(torch.bfloat16) if t.is_floating_point() else t)(torch.as_tensor(a)))
    def _A_setup():
        B, Sq, D = 4, 1, 448
        Hq, Hkv, Sk, Dh = 16, 8, 8192, 256
        assert Hq % Hkv == 0, (Hq, Hkv)
        return {
            "x": _w((lambda *s: torch.randn(*s, dtype=torch.bfloat16) * 0.8)(B, Sq, D)),
            "k_cache": _w((lambda *s: torch.randn(*s, dtype=torch.bfloat16) * 0.8)(B, Hkv, Sk, Dh)),
            "v_cache": _w((lambda *s: torch.randn(*s, dtype=torch.bfloat16) * 0.05)(B, Hkv, Sk, Dh)),
            "wq": _w((lambda *s: torch.randn(*s, dtype=torch.bfloat16) * 0.8)(D, Hq * Dh) * (D ** -0.5)),
            "wo": _w((lambda *s: torch.randn(*s, dtype=torch.bfloat16) * 0.05)(Hq * Dh, D) * ((Hq * Dh) ** -0.5)),
        }
    _A_in = _A_setup()

    def _B_setup():
        B, Sq, D = 4, 1, 448
        Hq, Hkv, Sk, Dh = 16, 8, 8192, 256
        assert Hq % Hkv == 0, (Hq, Hkv)
        return {
            "x": _w((lambda *s: torch.randn(*s, dtype=torch.bfloat16) * 0.8)(B, Sq, D)),
            "k_cache": _w((lambda *s: torch.randn(*s, dtype=torch.bfloat16) * 0.8)(B, Hkv, Sk, Dh)),
            "v_cache": _w((lambda *s: torch.randn(*s, dtype=torch.bfloat16) * 0.05)(B, Hkv, Sk, Dh)),
            "wq": _w((lambda *s: torch.randn(*s, dtype=torch.bfloat16) * 0.8)(D, Hq * Dh) * (D ** -0.5)),
            "wo": _w((lambda *s: torch.randn(*s, dtype=torch.bfloat16) * 0.05)(Hq * Dh, D) * ((Hq * Dh) ** -0.5)),
        }
    _B_in = _B_setup()

    return {
        "A_x": _A_in["x"],
        "A_k_cache": _A_in["k_cache"],
        "A_v_cache": _A_in["v_cache"],
        "A_wq": _A_in["wq"],
        "A_wo": _A_in["wo"],
        "B_x": _B_in["x"],
        "B_k_cache": _B_in["k_cache"],
        "B_v_cache": _B_in["v_cache"],
        "B_wq": _B_in["wq"],
        "B_wo": _B_in["wo"],
    }

def reference(A_x, A_k_cache, A_v_cache, A_wq, A_wo, B_x, B_k_cache, B_v_cache, B_wq, B_wo):
    def _A_ref(x, k_cache, v_cache, wq, wo):
        B, Sq, D = x.shape
        Hq, Dh = 16, 256
        Hkv = k_cache.shape[1]
        rep = Hq // Hkv
        q = (lambda x, *d: x.permute(*d))((x @ wq).reshape(B, Sq, Hq, Dh), 0, 2, 1, 3)
        k = (lambda x, n, axis: torch.repeat_interleave(x, n, dim=axis))(k_cache, rep, axis=1)
        v = (lambda x, n, axis: torch.repeat_interleave(x, n, dim=axis))(v_cache, rep, axis=1)
        scores = torch.einsum("bhqd,bhkd->bhqk", q, k) * (Dh ** -0.5)
        p = _softmax(scores, axis=-1)
        o = torch.einsum("bhqk,bhkd->bhqd", p, v)
        return (lambda x, *d: x.permute(*d))(o, 0, 2, 1, 3).reshape(B, Sq, Hq * Dh) @ wo

    def _B_ref(x, k_cache, v_cache, wq, wo):
        B, Sq, D = x.shape
        Hq, Dh = 16, 256
        Hkv = k_cache.shape[1]
        rep = Hq // Hkv
        q = (lambda x, *d: x.permute(*d))((x @ wq).reshape(B, Sq, Hq, Dh), 0, 2, 1, 3)
        k = (lambda x, n, axis: torch.repeat_interleave(x, n, dim=axis))(k_cache, rep, axis=1)
        v = (lambda x, n, axis: torch.repeat_interleave(x, n, dim=axis))(v_cache, rep, axis=1)
        scores = torch.einsum("bhqd,bhkd->bhqk", q, k) * (Dh ** -0.5)
        p = _softmax(scores, axis=-1)
        o = torch.einsum("bhqk,bhkd->bhqd", p, v)
        return (lambda x, *d: x.permute(*d))(o, 0, 2, 1, 3).reshape(B, Sq, Hq * Dh) @ wo

    a = _A_ref(A_x, A_k_cache, A_v_cache, A_wq, A_wo)
    b = _B_ref(B_x, B_k_cache, B_v_cache, B_wq, B_wo)
    return torch.concatenate([a, b], axis=-1)
```

```python
import sys, json

KN = "concat_heads__gqa_block_cached__gqa_block_cached__decode_kernel"

HEADER = """; Kernarg layout for this problem (104 bytes, ptrs only, base s[0:1]):
"""

WS_Q = 0x0
WS_P = 0x10000
WS_F = 0x110000
WS_T = 0x140000
WS_SIZE = 0x200000

L_QP = 0
L_Q = 4096
L_ML = 5120
L_OB = 5376
L_O = 8192
LDS_BYTES = 8192 + 16384


class G:
    def __init__(self, opt):
        self.o = opt
        self.l = []
        self.lab = 0

    def e(self, s):
        self.l.append("    " + s)

    def c(self, s):
        self.l.append("    ; " + s)

    def label(self, s):
        self.l.append(s + ":")

    def nop(self, n):
        while n > 0:
            k = min(n, 16)
            self.e(f"s_nop {k-1}")
            n -= k


def vr(a, n=1):
    return f"v{a}" if n == 1 else f"v[{a}:{a+n-1}]"


def sr(a, n=1):
    return f"s{a}" if n == 1 else f"s[{a}:{a+n-1}]"


S_X, S_K, S_V, S_WQ, S_WO = 4, 6, 8, 10, 12
S_OUT, S_DBG, S_WS = 44, 46, 48
S_KVH, S_S, S_B, S_AB, S_W, S_GRP = 14, 15, 16, 17, 18, 19
R_K, R_V, R_W, R_X, R_WS, R_DBG, R_OUT = 52, 56, 60, 68, 72, 76, 80
S_T0 = 84
S_CNT = 88
S_TMP, S_TMP2, S_TMP3 = 89, 90, 91
S_C = 92
S_SELE, S_SELO = 93, 94
S_EX = 96
S_SENT = 98
S_KVR = 3
S_ST = 64
S_FIN = 50

V_TID, V_LANE, V_KOFF, V_VOFF = 0, 1, 2, 3
V_M = 4
V_MC, V_L = 8, 9
V_T = 10
V_Q = 16
V_ACC = 24
V_P = 32
V_S = 40
V_KR = 72
V_VR = 136
V_WQ = 200


def gen(opt):
    g = G(opt)
    e, c = g.e, g.c
    NT = " nt" if opt.get("nt", 1) else ""
    stamps = opt.get("stamps", 0)
    ntiles = 8
    interleave = opt.get("interleave", 0)
    tile_stride = 16384 * 8 if interleave else 16384

    def stamp(idx):
        if not stamps:
            return
        e(f"s_memrealtime s[{S_ST}:{S_ST+1}]")
        e("s_waitcnt lgkmcnt(0)")
        e(f"v_mov_b32 v14, s{S_ST}")
        e(f"v_mov_b32 v15, s{S_ST+1}")
        e(f"v_mov_b32 v13, s95")
        e(f"buffer_store_dwordx2 v[14:15], v13, s[{R_WS}:{R_WS+3}], 0 offen offset:{idx*8}")

    g.l.append(HEADER.rstrip("\n"))
    g.l.append(f"; @launch grid=(256,1,1) block=(512,1,1) lds={LDS_BYTES}")
    g.l.append('.amdgcn_target "amdgcn-amd-amdhsa--gfx950"')
    g.l.append(".text")
    g.l.append(f".globl {KN}")
    g.l.append(".p2align 8")
    g.l.append(f".type {KN},@function")
    g.l.append(f"{KN}:")
    e("s_cmp_ge_u32 s2, 256")
    e("s_cbranch_scc1 L_end")
    e("s_load_dwordx8 s[20:27], s[0:1], 0")
    e("s_load_dwordx2 s[28:29], s[0:1], 32")
    e("s_load_dwordx8 s[32:39], s[0:1], 40")
    e("s_load_dwordx2 s[40:41], s[0:1], 72")
    e(f"s_load_dwordx4 s[{S_OUT}:{S_OUT+3}], s[0:1], 80")
    e(f"s_load_dwordx2 s[{S_WS}:{S_WS+1}], s[0:1], 96")
    e(f"v_lshrrev_b32 v10, 6, v0")
    e(f"v_and_b32 v{V_LANE}, 63, v0")
    e(f"v_readfirstlane_b32 s{S_W}, v10")
    e(f"s_and_b32 s{S_KVH}, s2, 7")
    e(f"s_lshr_b32 s{S_S}, s2, 3")
    e(f"s_and_b32 s{S_S}, s{S_S}, 3")
    e(f"s_lshr_b32 s{S_B}, s2, 5")
    e(f"s_and_b32 s{S_B}, s{S_B}, 3")
    e(f"s_lshr_b32 s{S_AB}, s2, 7")
    e(f"s_lshr_b32 s{S_TMP}, s2, 5")
    e(f"s_lshl_b32 s{S_GRP}, s{S_TMP}, 3")
    e(f"s_or_b32 s{S_GRP}, s{S_GRP}, s{S_KVH}")
    e(f"s_lshl_b32 s{S_FIN}, s{S_TMP}, 2")
    e(f"s_or_b32 s{S_FIN}, s{S_FIN}, s{S_S}")
    e(f"s_and_b32 s{S_KVR}, s{S_FIN}, 7")
    e(f"s_mov_b32 s{S_C}, 0x3db8aa3b")
    e(f"s_mov_b32 s{S_SELE}, 0x01000100")
    e(f"s_mov_b32 s{S_SELO}, 0x03020302")
    e(f"s_mov_b32 s{S_SENT}, -1")
    c("g = lane>>4 (v10), n = lane&15 (v11)")
    e(f"v_lshrrev_b32 v10, 4, v{V_LANE}")
    e(f"v_and_b32 v11, 15, v{V_LANE}")
    e(f"v_bfe_u32 v12, v{V_LANE}, 2, 2")
    e(f"v_lshlrev_b32 v12, 9, v12")
    e(f"v_lshl_add_u32 v12, v10, 6, v12")
    e(f"v_and_b32 v13, 3, v{V_LANE}")
    e(f"v_lshl_add_u32 v{V_KOFF}, v13, 4, v12")
    e(f"v_lshlrev_b32 v12, 9, v10")
    e(f"v_lshl_add_u32 v{V_VOFF}, v11, 4, v12")
    e(f"v_and_b32 v12, 1, v{V_LANE}")
    e(f"v_lshlrev_b32 v12, 4, v12")
    e(f"v_mov_b32 v13, 0xffff")
    e(f"v_lshlrev_b32 v13, v12, v13")
    e(f"v_bfe_u32 v12, v{V_LANE}, 1, 2")
    for t in range(4):
        e(f"v_cmp_eq_u32 vcc, {t}, v12")
        g.nop(2)
        e(f"v_cndmask_b32 v{V_M+t}, 0, v13, vcc")
    e("s_waitcnt lgkmcnt(0)")
    e(f"s_cmp_eq_u32 s{S_AB}, 0")
    for i, dst in enumerate([S_X, S_K, S_V, S_WQ, S_WO]):
        e(f"s_cselect_b64 s[{dst}:{dst+1}], s[{20+2*i}:{21+2*i}], s[{32+2*i}:{33+2*i}]")

    def srd(R, base, off_s, nrec):
        if off_s is None:
            e(f"s_mov_b32 s{R}, s{base}")
            e(f"s_mov_b32 s{R+1}, s{base+1}")
        else:
            e(f"s_add_u32 s{R}, s{base}, {off_s}")
            e(f"s_addc_u32 s{R+1}, s{base+1}, 0")
        e(f"s_mov_b32 s{R+2}, {nrec}")
        e(f"s_mov_b32 s{R+3}, 0x00020000")

    e(f"s_lshl_b32 s{S_TMP}, s{S_B}, 3")
    e(f"s_or_b32 s{S_TMP}, s{S_TMP}, s{S_KVH}")
    e(f"s_lshl_b32 s{S_TMP}, s{S_TMP}, 2")
    e(f"s_or_b32 s{S_TMP}, s{S_TMP}, s{S_S}")
    e(f"s_lshl_b32 s{S_TMP}, s{S_TMP}, 20")
    if interleave:
        e(f"s_lshl_b32 s{S_TMP2}, s{S_W}, 14")
        e(f"s_add_u32 s{S_TMP}, s{S_TMP}, s{S_TMP2}")
        e(f"s_sub_u32 s{S_TMP3}, 0x100000, s{S_TMP2}")
        nrec = f"s{S_TMP3}"
    else:
        e(f"s_lshl_b32 s{S_TMP2}, s{S_W}, 17")
        e(f"s_add_u32 s{S_TMP}, s{S_TMP}, s{S_TMP2}")
        nrec = "0x20000"
    srd(R_K, S_K, f"s{S_TMP}", nrec)
    srd(R_V, S_V, f"s{S_TMP}", nrec)
    srd(R_X, S_X, None, "3584")
    srd(R_WS, S_WS, None, hex(WS_SIZE))
    srd(R_DBG, S_DBG, None, "256")
    srd(R_OUT, S_OUT, None, "7168")
    e(f"s_mul_i32 s{S_TMP}, s{S_W}, {56*8192}")
    e(f"s_lshl_b32 s{S_TMP2}, s{S_KVH}, 10")
    e(f"s_add_u32 s{S_TMP}, s{S_TMP}, s{S_TMP2}")
    e(f"s_lshl_b32 s{S_TMP2}, s{S_S}, 8")
    e(f"s_add_u32 s{S_TMP}, s{S_TMP}, s{S_TMP2}")
    e(f"s_sub_u32 s{S_TMP2}, {448*8192}, s{S_TMP}")
    srd(R_W, S_WQ, f"s{S_TMP}", f"s{S_TMP2}")
    if stamps:
        e(f"s_lshl_b32 s95, s2, 11")
        e(f"s_lshl_b32 s{S_TMP}, s{S_W}, 8")
        e(f"s_add_u32 s95, s95, s{S_TMP}")
        e(f"s_add_u32 s95, s95, {WS_T}")
    stamp(0)

    e(f"s_cmp_lg_u32 s{S_W}, 0")
    e("s_cbranch_scc1 L_noclear")
    e(f"v_mov_b32 v40, -1")
    e(f"v_mov_b32 v41, -1")
    e(f"v_mov_b32 v42, -1")
    e(f"v_mov_b32 v43, -1")
    e(f"s_lshl_b32 s{S_TMP}, s{S_GRP}, 2")
    e(f"s_or_b32 s{S_TMP}, s{S_TMP}, s{S_S}")
    e(f"s_lshl_b32 s{S_TMP}, s{S_TMP}, 12")
    e(f"s_add_u32 s{S_TMP}, s{S_TMP}, {WS_P}")
    e(f"v_lshlrev_b32 v12, 4, v{V_LANE}")
    for k in range(3):
        e(f"buffer_store_dwordx4 v[40:43], v12, s[{R_WS}:{R_WS+3}], s{S_TMP} offen offset:{k*1024} sc1")
    e(f"s_cmp_lg_u32 s{S_KVH}, s{S_KVR}")
    e("s_cbranch_scc1 L_noclear")
    e(f"s_lshl_b32 s{S_TMP}, s{S_FIN}, 12")
    e(f"s_add_u32 s{S_TMP}, s{S_TMP}, {WS_F}")
    for k in range(4):
        e(f"buffer_store_dwordx4 v[40:43], v12, s[{R_WS}:{R_WS+3}], s{S_TMP} offen offset:{k*1024} sc1")
    g.label("L_noclear")
    g.nop(2)

    e(f"s_mul_i32 s{S_TMP}, s{S_B}, 896")
    e(f"s_mul_i32 s{S_TMP2}, s{S_W}, 112")
    e(f"s_add_u32 s{S_TMP}, s{S_TMP}, s{S_TMP2}")
    e(f"v_mul_u32_u24 v12, 28, v10")
    e(f"buffer_load_dwordx4 v[40:43], v12, s[{R_X}:{R_X+3}], s{S_TMP} offen")
    e(f"buffer_load_dwordx4 v[44:47], v12, s[{R_X}:{R_X+3}], s{S_TMP} offen offset:16")
    e(f"v_mul_u32_u24 v12, {14*8192//16}, v10")
    e(f"v_add_lshl_u32 v12, v12, v11, 4")
    e(f"s_mov_b32 s{S_TMP}, 0")
    for i in range(14):
        e(f"buffer_load_dwordx4 {vr(V_WQ+4*i,4)}, v12, s[{R_W}:{R_W+3}], s{S_TMP} offen")
        if i < 13:
            e(f"s_add_u32 s{S_TMP}, s{S_TMP}, 8192")

    for k in range(4):
        e(f"s_mov_b32 s{S_T0+k}, {k*4096}")

    def issue_k(i):
        for h in range(2):
            e(f"buffer_load_dwordx4 {vr(V_KR+8*i+4*h,4)}, v{V_KOFF}, s[{R_K}:{R_K+3}], s{S_T0+(i>>1)} offen offset:{(i&1)*2048+h*256}{NT}")

    def issue_v(i):
        for h in range(2):
            e(f"buffer_load_dwordx4 {vr(V_VR+8*i+4*h,4)}, v{V_VOFF}, s[{R_V}:{R_V+3}], s{S_T0+(i>>1)} offen offset:{(i&1)*2048+h*256}{NT}")

    def issue_tile0():
        for i in range(8):
            issue_k(i)
        for i in range(8):
            issue_v(i)

    e(f"s_cmp_eq_u32 s{S_W}, 0")
    e("s_cbranch_scc1 L_w0_wait")
    issue_tile0()
    e("s_waitcnt vmcnt(32)")
    e("s_branch L_qcomp")
    g.label("L_w0_wait")
    e("s_waitcnt vmcnt(0)")
    g.label("L_qcomp")
    stamp(1)
    QA = 56
    for i in range(14):
        sel = S_SELO if (i & 1) else S_SELE
        bb = 48 + 4 * (i & 1)
        e(f"v_perm_b32 v60, v{40+(i>>1)}, v{40+(i>>1)}, s{sel}")
        for t in range(4):
            e(f"v_and_b32 v{bb+t}, v60, v{V_M+t}")
        g.nop(2)
        csrc = "0" if i == 0 else vr(QA, 4)
        e(f"v_mfma_f32_16x16x32_bf16 {vr(QA,4)}, {vr(V_WQ+4*i,4)}, {vr(bb,4)}, {csrc}")
    e(f"v_and_b32 v12, 7, v{V_LANE}")
    e(f"v_lshlrev_b32 v12, 2, v12")
    e(f"v_lshl_add_u32 v12, v10, 7, v12")
    e(f"s_lshl_b32 s{S_TMP}, s{S_W}, 9")
    e(f"v_add_u32 v12, s{S_TMP}, v12")
    g.nop(8)
    for r in range(4):
        e(f"ds_write_b32 v12, v{QA+r} offset:{L_QP + r*32}")
    e("s_waitcnt lgkmcnt(0)")
    e("s_barrier")
    e(f"s_cmp_lg_u32 s{S_W}, 0")
    e("s_cbranch_scc1 L_qwait")
    e(f"v_lshlrev_b32 v12, 3, v{V_LANE}")
    for w in range(8):
        e(f"ds_read_b64 v[{40+2*w}:{41+2*w}], v12 offset:{L_QP + w*512}")
    e("s_waitcnt lgkmcnt(0)")
    for w in range(1, 8):
        e(f"v_add_f32 v40, v40, v{40+2*w}")
        e(f"v_add_f32 v41, v41, v{41+2*w}")
    e(f"v_cvt_pk_bf16_f32 v40, v40, v41")
    e(f"s_lshl_b32 s{S_TMP}, s{S_GRP}, 10")
    e(f"s_lshl_b32 s{S_TMP2}, s{S_S}, 8")
    e(f"s_add_u32 s{S_TMP2}, s{S_TMP2}, s{S_TMP}")
    if WS_Q:
        e(f"s_add_u32 s{S_TMP}, s{S_TMP}, {WS_Q}")
        e(f"s_add_u32 s{S_TMP2}, s{S_TMP2}, {WS_Q}")
    e(f"v_lshlrev_b32 v12, 2, v{V_LANE}")
    e(f"buffer_store_dword v40, v12, s[{R_WS}:{R_WS+3}], s{S_TMP2} offen sc1")
    e("s_waitcnt vmcnt(0)")
    stamp(2)
    e(f"s_lshl_b32 s{S_TMP2}, s{S_S}, 3")
    e(f"s_lshl_b32 s{S_TMP3}, 1, s{S_TMP2}")
    e(f"s_lshl_b32 s{S_TMP2}, s{S_GRP}, 2")
    e(f"v_mov_b32 v12, s{S_TMP2}")
    e(f"v_mov_b32 v13, s{S_TMP3}")
    e(f"s_mov_b64 s[{S_EX}:{S_EX+1}], exec")
    e("s_mov_b64 exec, 1")
    e(f"buffer_atomic_add v13, v12, s[{R_DBG}:{R_DBG+3}], 0 offen")
    e(f"s_mov_b64 exec, s[{S_EX}:{S_EX+1}]")
    e(f"s_andn2_b32 s{S_TMP2}, s{S_GRP}, 7")
    e(f"s_or_b32 s{S_TMP2}, s{S_TMP2}, s{S_KVR}")
    e(f"s_lshl_b32 s{S_TMP2}, s{S_TMP2}, 2")
    e(f"v_mov_b32 v14, s{S_TMP2}")
    e(f"v_mov_b32 v15, 0x01010101")
    e(f"v_cmp_eq_u32 vcc, 1, v{V_LANE}")
    g.nop(2)
    e(f"v_cndmask_b32 v12, v12, v14, vcc")
    e(f"v_cndmask_b32 v13, v15, v13, vcc")
    e(f"s_mov_b32 s{S_CNT}, 0x40000")
    g.label("L_poll1")
    e(f"buffer_load_dword v14, v12, s[{R_DBG}:{R_DBG+3}], 0 offen sc1")
    e("s_waitcnt vmcnt(0)")
    e(f"v_and_b32 v14, v14, v13")
    e(f"v_cmp_ne_u32 vcc, v14, v13")
    e(f"s_sub_u32 s{S_CNT}, s{S_CNT}, 1")
    e("s_cbranch_scc1 L_poll1_done")
    g.nop(2)
    e("s_cbranch_vccnz L_poll1")
    g.label("L_poll1_done")
    stamp(3)
    e(f"v_lshlrev_b32 v12, 4, v{V_LANE}")
    e(f"buffer_load_dwordx4 v[40:43], v12, s[{R_WS}:{R_WS+3}], s{S_TMP} offen sc1")
    issue_tile0()
    e("s_waitcnt vmcnt(32)")
    e(f"ds_write_b128 v12, v[40:43] offset:{L_Q}")
    e("s_waitcnt lgkmcnt(0)")
    g.label("L_qwait")
    e("s_barrier")
    e(f"v_lshrrev_b32 v12, 3, v11")
    e(f"v_lshlrev_b32 v12, 9, v12")
    e(f"v_lshl_add_u32 v12, v10, 6, v12")
    e(f"v_and_b32 v13, 3, v{V_LANE}")
    e(f"v_lshl_add_u32 v12, v13, 4, v12")
    e(f"ds_read_b128 {vr(V_Q,4)}, v12 offset:{L_Q}")
    e(f"ds_read_b128 {vr(V_Q+4,4)}, v12 offset:{L_Q+256}")
    e(f"v_mov_b32 v{V_MC}, 0xff800000")
    e(f"v_mov_b32 v{V_L}, 0")
    for r in range(8):
        e(f"v_mov_b32 v{V_ACC+r}, 0")
    e("s_waitcnt lgkmcnt(0)")
    stamp(4)

    e(f"s_lshl_b32 s{S_TMP}, s{S_KVH}, 9")
    e(f"s_lshl_b32 s{S_TMP2}, s{S_W}, 6")
    e(f"s_add_u32 s{S_TMP}, s{S_TMP}, s{S_TMP2}")
    e(f"s_mul_i32 s{S_TMP}, s{S_TMP}, 896")
    e(f"s_mul_i32 s{S_TMP2}, s{S_S}, 224")
    e(f"s_add_u32 s{S_TMP}, s{S_TMP}, s{S_TMP2}")
    e(f"s_sub_u32 s{S_TMP2}, {4096*896}, s{S_TMP}")
    srd(R_W, S_WO, f"s{S_TMP}", f"s{S_TMP2}")
    V_WOFF = V_WQ
    e(f"v_mul_u32_u24 v{V_WOFF}, {16*896//16}, v10")
    e(f"v_add_lshl_u32 v{V_WOFF}, v{V_WOFF}, v11, 4")

    def tile(last):
        if not last:
            for k in range(4):
                e(f"s_add_u32 s{S_T0+k}, s{S_T0+k}, {tile_stride}")
        for i in range(8):
            e("s_waitcnt vmcnt(30)")
            e(f"v_mfma_f32_16x16x32_bf16 {vr(V_S+4*i,4)}, {vr(V_KR+8*i,4)}, {vr(V_Q,4)}, 0")
            e(f"v_mfma_f32_16x16x32_bf16 {vr(V_S+4*i,4)}, {vr(V_KR+8*i+4,4)}, {vr(V_Q+4,4)}, {vr(V_S+4*i,4)}")
            if not last:
                issue_k(i)
            else:
                for h in range(2):
                    ii = 2 * i + h
                    e(f"s_mov_b32 s{S_TMP}, {ii*896}")
                    e(f"buffer_load_dwordx4 {vr(V_KR+4*ii,4)}, v{V_WOFF}, s[{R_W}:{R_W+3}], s{S_TMP} offen")
        g.nop(8)
        for i in range(8):
            s = V_S + 4 * i
            p = V_P + i
            e(f"v_mov_b32_dpp v{p}, v{s} quad_perm:[0,0,0,0] row_mask:0xf bank_mask:0xf")
            for k in range(1, 4):
                e(f"v_add_f32_dpp v{p}, v{s+k}, v{p} quad_perm:[{k},{k},{k},{k}] row_mask:0xf bank_mask:0xf")
        e(f"v_max3_f32 v10, v{V_P}, v{V_P+1}, v{V_P+2}")
        e(f"v_max3_f32 v11, v{V_P+3}, v{V_P+4}, v{V_P+5}")
        e(f"v_max3_f32 v10, v10, v{V_P+6}, v{V_P+7}")
        e(f"v_max_f32 v10, v10, v11")
        e(f"v_mov_b32 v11, v10")
        g.nop(2)
        e(f"v_permlane32_swap_b32 v10, v11")
        g.nop(1)
        e(f"v_max_f32 v10, v10, v11")
        e(f"v_mov_b32 v11, v10")
        g.nop(2)
        e(f"v_permlane16_swap_b32 v10, v11")
        g.nop(1)
        e(f"v_max_f32 v10, v10, v11")
        e(f"v_mul_f32 v10, s{S_C}, v10")
        e(f"v_max_f32 v10, v10, v{V_MC}")
        e(f"v_sub_f32 v11, v{V_MC}, v10")
        e(f"v_exp_f32 v11, v11")
        e(f"v_mov_b32 v{V_MC}, v10")
        for i in range(8):
            e(f"v_fma_f32 v{V_P+i}, v{V_P+i}, s{S_C}, -v10")
        for i in range(8):
            e(f"v_exp_f32 v{V_P+i}, v{V_P+i}")
        for r in range(8):
            e(f"v_mul_f32 v{V_ACC+r}, v{V_ACC+r}, v11")
        e(f"v_mul_f32 v{V_L}, v{V_L}, v11")
        for i in range(8):
            s = V_S + 4 * i
            e(f"v_cvt_pk_bf16_f32 v12, v{V_P+i}, v{V_P+i}")
            e(f"v_add_f32 v{V_L}, v{V_L}, v{V_P+i}")
            for t in range(4):
                e(f"v_and_b32 v{s+t}, v12, v{V_M+t}")
        g.nop(2)
        for i in range(8):
            n = 30 if not last else 16 + 14 - 2 * i
            e(f"s_waitcnt vmcnt({n})")
            for h in range(2):
                e(f"v_mfma_f32_16x16x32_bf16 {vr(V_ACC+4*h,4)}, {vr(V_VR+8*i+4*h,4)}, {vr(V_S+4*i,4)}, {vr(V_ACC+4*h,4)}")
            if not last:
                issue_v(i)

    e(f"s_mov_b32 s{S_CNT}, {ntiles-1}")
    g.l.append(".p2align 6")
    g.label("L_loop")
    tile(False)
    e(f"s_sub_u32 s{S_CNT}, s{S_CNT}, 1")
    e(f"s_cmp_lg_u32 s{S_CNT}, 0")
    e("s_cbranch_scc1 L_loop")
    tile(True)
    stamp(5)

    e(f"v_lshrrev_b32 v10, 4, v{V_LANE}")
    e(f"v_and_b32 v11, 15, v{V_LANE}")
    e(f"v_mov_b32 v12, v{V_L}")
    g.nop(2)
    e(f"v_permlane32_swap_b32 v{V_L}, v12")
    g.nop(1)
    e(f"v_add_f32 v{V_L}, v{V_L}, v12")
    e(f"v_mov_b32 v12, v{V_L}")
    g.nop(2)
    e(f"v_permlane16_swap_b32 v{V_L}, v12")
    g.nop(1)
    e(f"v_add_f32 v{V_L}, v{V_L}, v12")
    e(f"v_lshrrev_b32 v12, 3, v11")
    e(f"s_lshl_b32 s{S_TMP}, s{S_W}, 4")
    e(f"v_lshlrev_b32 v13, 3, v12")
    e(f"v_add_u32 v13, s{S_TMP}, v13")
    e(f"ds_write_b64 v13, v[{V_MC}:{V_L}] offset:{L_ML}")
    e(f"v_lshlrev_b32 v13, 10, v12")
    e(f"v_lshl_add_u32 v13, v10, 7, v13")
    e(f"v_and_b32 v14, 7, v{V_LANE}")
    e(f"v_lshl_add_u32 v13, v14, 2, v13")
    e(f"s_lshl_b32 s{S_TMP}, s{S_W}, 11")
    e(f"v_add_u32 v13, s{S_TMP}, v13")
    g.nop(8)
    for h in range(2):
        for r in range(4):
            e(f"ds_write_b32 v13, v{V_ACC+4*h+r} offset:{L_O + h*512 + r*32}")
    e("s_waitcnt lgkmcnt(0)")
    e("s_barrier")
    e(f"v_lshrrev_b32 v10, 8, v{V_TID}")
    e(f"v_lshlrev_b32 v11, 3, v10")
    e(f"v_lshlrev_b32 v12, 2, v{V_TID}")
    for w in range(8):
        e(f"ds_read_b64 v[{40+2*w}:{41+2*w}], v11 offset:{L_ML + w*16}")
    for w in range(8):
        e(f"ds_read_b32 v{56+w}, v12 offset:{L_O + w*2048}")
    e("s_waitcnt lgkmcnt(0)")
    e("v_max3_f32 v13, v40, v42, v44")
    e("v_max3_f32 v13, v13, v46, v48")
    e("v_max3_f32 v13, v13, v50, v52")
    e("v_max_f32 v13, v13, v54")
    for w in range(8):
        e(f"v_sub_f32 v{40+2*w}, v{40+2*w}, v13")
    for w in range(8):
        e(f"v_exp_f32 v{40+2*w}, v{40+2*w}")
    g.nop(1)
    e("v_mul_f32 v14, v40, v41")
    e("v_mul_f32 v15, v40, v56")
    for w in range(1, 8):
        e(f"v_fmac_f32 v14, v{40+2*w}, v{41+2*w}")
        e(f"v_fmac_f32 v15, v{40+2*w}, v{56+w}")

    def desent(v):
        e(f"v_cmp_eq_u32 vcc, s{S_SENT}, v{v}")
        e(f"v_mov_b32 v39, 0x7fc00000")
        g.nop(1)
        e(f"v_cndmask_b32 v{v}, v{v}, v39, vcc")
    desent(13); desent(14); desent(15)
    e(f"s_lshl_b32 s{S_TMP}, s{S_GRP}, 14")
    e(f"s_add_u32 s{S_TMP}, s{S_TMP}, {WS_P}")
    e(f"s_lshl_b32 s{S_TMP2}, s{S_S}, 12")
    e(f"s_add_u32 s{S_TMP2}, s{S_TMP2}, s{S_TMP}")
    e(f"buffer_store_dword v15, v12, s[{R_WS}:{R_WS+3}], s{S_TMP2} offen sc1")
    e(f"v_mov_b32 v40, v13")
    e(f"v_mov_b32 v41, v14")
    e(f"buffer_store_dwordx2 v[40:41], v11, s[{R_WS}:{R_WS+3}], s{S_TMP2} offen offset:2048 sc1")
    stamp(6)
    e(f"s_mov_b32 s{S_CNT}, 0x40000")
    g.label("L_poll2")
    e(f"s_mov_b32 s{S_TMP2}, s{S_TMP}")
    for s in range(4):
        e(f"buffer_load_dword v{44+s}, v12, s[{R_WS}:{R_WS+3}], s{S_TMP2} offen sc1")
        e(f"buffer_load_dwordx2 v[{48+2*s}:{49+2*s}], v11, s[{R_WS}:{R_WS+3}], s{S_TMP2} offen offset:2048 sc1")
        if s < 3:
            e(f"s_add_u32 s{S_TMP2}, s{S_TMP2}, 4096")
    e("s_waitcnt vmcnt(0)")
    e(f"v_cmp_eq_u32 vcc, s{S_SENT}, v44")
    for r in list(range(45, 56)):
        e(f"v_cmp_eq_u32 s[{S_EX}:{S_EX+1}], s{S_SENT}, v{r}")
        e(f"s_or_b64 vcc, vcc, s[{S_EX}:{S_EX+1}]")
    e(f"s_sub_u32 s{S_CNT}, s{S_CNT}, 1")
    e("s_cbranch_scc1 L_poll2_done")
    e("s_cmp_lg_u64 vcc, 0")
    e("s_cbranch_scc1 L_poll2")
    g.label("L_poll2_done")
    stamp(7)
    e("v_max3_f32 v13, v48, v50, v52")
    e("v_max_f32 v13, v13, v54")
    for s in range(4):
        e(f"v_sub_f32 v{48+2*s}, v{48+2*s}, v13")
    for s in range(4):
        e(f"v_exp_f32 v{48+2*s}, v{48+2*s}")
    g.nop(1)
    e("v_mul_f32 v14, v48, v49")
    e("v_mul_f32 v15, v48, v44")
    for s in range(1, 4):
        e(f"v_fmac_f32 v14, v{48+2*s}, v{49+2*s}")
        e(f"v_fmac_f32 v15, v{48+2*s}, v{44+s}")
    e("v_rcp_f32 v14, v14")
    g.nop(1)
    e("v_mul_f32 v15, v15, v14")
    e("v_cvt_pk_bf16_f32 v15, v15, v15")
    e(f"v_lshlrev_b32 v13, 1, v{V_TID}")
    e(f"ds_write_b16 v13, v15 offset:{L_OB}")
    e("s_waitcnt lgkmcnt(0)")
    e("s_barrier")
    e(f"v_lshrrev_b32 v10, 4, v{V_LANE}")
    e(f"s_lshl_b32 s{S_TMP}, s{S_W}, 7")
    e(f"v_lshlrev_b32 v12, 5, v10")
    e(f"v_add_u32 v12, s{S_TMP}, v12")
    e(f"ds_read_b128 v[40:43], v12 offset:{L_OB}")
    e(f"ds_read_b128 v[44:47], v12 offset:{L_OB+16}")
    e("s_waitcnt vmcnt(0) lgkmcnt(0)")
    for i in range(16):
        sel = S_SELO if (i & 1) else S_SELE
        bb = 48 + 4 * (i & 1)
        e(f"v_perm_b32 v60, v{40+(i>>1)}, v{40+(i>>1)}, s{sel}")
        for t in range(4):
            e(f"v_and_b32 v{bb+t}, v60, v{V_M+t}")
        g.nop(2)
        csrc = "0" if i == 0 else vr(QA, 4)
        e(f"v_mfma_f32_16x16x32_bf16 {vr(QA,4)}, {vr(V_KR+4*i,4)}, {vr(bb,4)}, {csrc}")
    e(f"v_and_b32 v12, 7, v{V_LANE}")
    e(f"v_lshlrev_b32 v12, 2, v12")
    e(f"v_lshl_add_u32 v12, v10, 7, v12")
    e(f"s_lshl_b32 s{S_TMP}, s{S_W}, 9")
    e(f"v_add_u32 v12, s{S_TMP}, v12")
    g.nop(8)
    for r in range(4):
        e(f"ds_write_b32 v12, v{QA+r} offset:{L_QP + r*32}")
    e("s_waitcnt lgkmcnt(0)")
    e("s_barrier")
    e(f"s_cmp_ge_u32 s{S_W}, 2")
    e("s_cbranch_scc1 L_end")
    e(f"v_cmp_gt_u32 vcc, 112, v{V_TID}")
    e(f"s_and_saveexec_b64 s[{S_EX}:{S_EX+1}], vcc")
    e("s_cbranch_execz L_end")
    e(f"v_lshlrev_b32 v12, 2, v{V_TID}")
    for w in range(8):
        e(f"ds_read_b32 v{40+w}, v12 offset:{L_QP + w*512}")
    e("s_waitcnt lgkmcnt(0)")
    for w in range(1, 8):
        e(f"v_add_f32 v40, v40, v{40+w}")
    desent(40)
    e(f"s_lshl_b32 s{S_TMP}, s{S_FIN}, 12")
    e(f"s_add_u32 s{S_TMP}, s{S_TMP}, {WS_F}")
    e(f"s_lshl_b32 s{S_TMP2}, s{S_KVH}, 9")
    e(f"s_add_u32 s{S_TMP2}, s{S_TMP2}, s{S_TMP}")
    e(f"buffer_store_dword v40, v12, s[{R_WS}:{R_WS+3}], s{S_TMP2} offen sc1")
    stamp(8)
    e(f"s_cmp_lg_u32 s{S_KVH}, s{S_KVR}")
    e("s_cbranch_scc1 L_end")
    e(f"s_mov_b32 s{S_CNT}, 0x40000")
    g.label("L_poll3")
    for k in range(8):
        e(f"buffer_load_dword v{40+k}, v12, s[{R_WS}:{R_WS+3}], s{S_TMP} offen offset:{k*512} sc1")
    e("s_waitcnt vmcnt(0)")
    e(f"v_cmp_eq_u32 vcc, s{S_SENT}, v40")
    for r in range(41, 48):
        e(f"v_cmp_eq_u32 s[{S_EX}:{S_EX+1}], s{S_SENT}, v{r}")
        e(f"s_or_b64 vcc, vcc, s[{S_EX}:{S_EX+1}]")
    e(f"s_sub_u32 s{S_CNT}, s{S_CNT}, 1")
    e("s_cbranch_scc1 L_poll3_done")
    e("s_cmp_lg_u64 vcc, 0")
    e("s_cbranch_scc1 L_poll3")
    g.label("L_poll3_done")
    for k in range(1, 8):
        e(f"v_add_f32 v40, v40, v{40+k}")
    e("v_cvt_pk_bf16_f32 v40, v40, v40")
    e(f"s_mul_i32 s{S_TMP}, s{S_B}, 1792")
    e(f"s_mul_i32 s{S_TMP2}, s{S_AB}, 896")
    e(f"s_add_u32 s{S_TMP}, s{S_TMP}, s{S_TMP2}")
    e(f"s_mul_i32 s{S_TMP2}, s{S_S}, 224")
    e(f"s_add_u32 s{S_TMP}, s{S_TMP}, s{S_TMP2}")
    e(f"v_lshlrev_b32 v12, 1, v{V_TID}")
    e(f"buffer_store_short v40, v12, s[{R_OUT}:{R_OUT+3}], s{S_TMP} offen")
    stamp(9)
    g.label("L_end")
    e("s_endpgm")
    g.l.append('.section .rodata,"a"')
    g.l.append(".p2align 6")
    g.l.append(f".amdhsa_kernel {KN}")
    g.l.append("  .amdhsa_next_free_vgpr 256")
    g.l.append("  .amdhsa_next_free_sgpr 102")
    g.l.append("  .amdhsa_accum_offset 256")
    g.l.append("  .amdhsa_group_segment_fixed_size 0")
    g.l.append("  .amdhsa_kernarg_size 104")
    g.l.append("  .amdhsa_user_sgpr_count 2")
    g.l.append("  .amdhsa_user_sgpr_kernarg_segment_ptr 1")
    g.l.append("  .amdhsa_system_sgpr_workgroup_id_x 1")
    g.l.append(".end_amdhsa_kernel")
    return "\n".join(g.l) + "\n"


if __name__ == "__main__":
    out = sys.argv[1]
    opt = {}
    for a in sys.argv[2:]:
        k, v = a.split("=")
        opt[k] = int(v, 0)
    open(out, "w").write(gen(opt))
```

```python
import sys
from gen import G, vr, HEADER, KN

WS_E = 0x0
WS_Q = 0x4000
WS_F = 0x40000
WS_P = 0x100000
WS_T = 0x400000
WS_C = 0x800000
WS_SIZE = 0x1000000

L_QP = 0
L_Q = 4096
L_ML = 5120
L_TK = 5248
L_OB = 5376
L_O = 8192
LDS_MIN = 8192 + 16384

S_X, S_K, S_V, S_WQ, S_WO = 4, 6, 8, 10, 12
S_OUT, S_DBG, S_WS = 44, 46, 48
S_KVH, S_S, S_B, S_AB, S_W, S_GRP = 14, 15, 16, 17, 18, 19
R_K, R_V, R_W, R_X, R_WS, R_OUT = 52, 56, 60, 68, 72, 80
S_T0 = 84
S_CNT = 88
S_TMP, S_TMP2, S_TMP3 = 89, 90, 91
S_C = 92
S_SELE, S_SELO = 93, 94
S_EX = 96
S_KVR = 3
S_ST = 64
S_FIN = 50
S_TA, S_TB = 76, 77
S_E = 78
S_CUR, S_NXT = 98, 99
S_N2 = 51
S_SA = 100
S_PEND = 101
S_CB = 66
S_ROT = 42
S_SB = 43

V_TID, V_LANE, V_KOFF, V_VOFF = 0, 1, 2, 3
V_M = 4
V_MC, V_L = 8, 9
V_Q = 16
V_ACC = 24
V_P = 32
V_TK, V_TKA, V_ONE = 36, 37, 38
V_S = 40
V_TAG = 61


def gen(opt):
    g = G(opt)
    e, c = g.e, g.c
    NG = 4
    NT = " nt" if opt.get("nt", 1) else ""
    NTW = " nt" if opt.get("ntw", 0) else ""
    stamps = opt.get("stamps", 0)
    pre = opt.get("pre", 8)
    spread = opt.get("spread", 1)
    SW = opt.get("sw", 108)
    cstride = opt.get("cstride", 4096)
    lds = max(opt.get("lds", 0), LDS_MIN)
    SPIN = opt.get("spin", 0x20000)
    cpf = opt.get("cpf", 0)
    tile_bytes = NG * 2048
    ntiles = 8192 // (4 * NG)
    V_KR = 72
    V_VR = V_KR + 8 * NG
    V_WO = V_VR + 8 * NG
    V_WQ = 200

    def stamp(idx):
        if not stamps:
            return
        e(f"s_memrealtime s[{S_ST}:{S_ST+1}]")
        e("s_waitcnt lgkmcnt(0)")
        e(f"v_mov_b32 v14, s{S_ST}")
        e(f"v_mov_b32 v15, s{S_ST+1}")
        e(f"v_mov_b32 v13, s95")
        e(f"buffer_store_dwordx2 v[14:15], v13, s[{R_WS}:{R_WS+3}], 0 offen offset:{idx*8}")

    def srd(R, base, off_s, nrec):
        if off_s is None:
            e(f"s_mov_b32 s{R}, s{base}")
            e(f"s_mov_b32 s{R+1}, s{base+1}")
        else:
            e(f"s_add_u32 s{R}, s{base}, {off_s}")
            e(f"s_addc_u32 s{R+1}, s{base+1}, 0")
        e(f"s_mov_b32 s{R+2}, {nrec}")
        e(f"s_mov_b32 s{R+3}, 0x00020000")

    def tagcheck(first_reg, n):
        e(f"v_cmp_ne_u32 vcc, s{S_TA}, v{first_reg+1}")
        for k in range(1, n):
            tg = S_TB if (k & 1) else S_TA
            e(f"v_cmp_ne_u32 s[{S_EX}:{S_EX+1}], s{tg}, v{first_reg+2*k+1}")
            e(f"s_or_b64 vcc, vcc, s[{S_EX}:{S_EX+1}]")

    def pollend(lab):
        e(f"s_sub_u32 s{S_CNT}, s{S_CNT}, 1")
        e(f"s_cbranch_scc1 {lab}_done")
        e("s_cmp_lg_u64 vcc, 0")
        e(f"s_cbranch_scc1 {lab}")
        g.label(f"{lab}_done")

    g.l.append(HEADER.rstrip("\n"))
    g.l.append(f"; @launch grid=(256,1,1) block=(512,1,1) lds={lds}")
    g.l.append('.amdgcn_target "amdgcn-amd-amdhsa--gfx950"')
    g.l.append(".text")
    g.l.append(f".globl {KN}")
    g.l.append(".p2align 8")
    g.l.append(f".type {KN},@function")
    g.l.append(f"{KN}:")
    e("s_cmp_ge_u32 s2, 256")
    e("s_cbranch_scc1 L_end")
    e("s_load_dwordx8 s[20:27], s[0:1], 0")
    e("s_load_dwordx2 s[28:29], s[0:1], 32")
    e("s_load_dwordx8 s[32:39], s[0:1], 40")
    e("s_load_dwordx2 s[40:41], s[0:1], 72")
    e(f"s_load_dwordx4 s[{S_OUT}:{S_OUT+3}], s[0:1], 80")
    e(f"s_load_dwordx2 s[{S_WS}:{S_WS+1}], s[0:1], 96")
    e(f"v_lshrrev_b32 v10, 6, v0")
    e(f"v_and_b32 v{V_LANE}, 63, v0")
    e(f"v_readfirstlane_b32 s{S_W}, v10")
    e(f"s_lshr_b32 s{S_S}, s2, 3")
    e(f"s_and_b32 s{S_S}, s{S_S}, 3")
    e(f"s_and_b32 s{S_KVH}, s2, 7")
    if spread:
        e(f"s_and_b32 s{S_TMP}, s{S_S}, 1")
        e(f"s_lshr_b32 s{S_TMP2}, s{S_S}, 1")
        e(f"s_lshl_b32 s{S_TMP2}, s{S_TMP2}, 2")
        e(f"s_add_u32 s{S_TMP}, s{S_TMP}, s{S_TMP2}")
        e(f"s_sub_u32 s{S_KVH}, s{S_KVH}, s{S_TMP}")
        e(f"s_and_b32 s{S_KVH}, s{S_KVH}, 7")
    e(f"s_lshr_b32 s{S_B}, s2, 5")
    e(f"s_and_b32 s{S_B}, s{S_B}, 3")
    e(f"s_lshr_b32 s{S_AB}, s2, 7")
    e(f"s_lshr_b32 s{S_TMP}, s2, 5")
    e(f"s_lshl_b32 s{S_GRP}, s{S_TMP}, 3")
    e(f"s_or_b32 s{S_GRP}, s{S_GRP}, s{S_KVH}")
    e(f"s_lshl_b32 s{S_FIN}, s{S_TMP}, 2")
    e(f"s_or_b32 s{S_FIN}, s{S_FIN}, s{S_S}")
    e(f"s_and_b32 s{S_KVR}, s{S_FIN}, 7")
    e(f"s_lshl_b32 s{S_TMP3}, s{S_TMP}, 7")
    e(f"s_mov_b32 s{S_C}, 0x3db8aa3b")
    e(f"s_mov_b32 s{S_SELE}, 0x01000100")
    e(f"s_mov_b32 s{S_SELO}, 0x03020302")
    e(f"v_lshrrev_b32 v10, 4, v{V_LANE}")
    e(f"v_and_b32 v11, 15, v{V_LANE}")
    e(f"v_bfe_u32 v12, v{V_LANE}, 2, 2")
    e(f"v_lshlrev_b32 v12, 9, v12")
    e(f"v_lshl_add_u32 v12, v10, 6, v12")
    e(f"v_and_b32 v13, 3, v{V_LANE}")
    e(f"v_lshl_add_u32 v{V_KOFF}, v13, 4, v12")
    e(f"v_lshlrev_b32 v12, 9, v10")
    e(f"v_lshl_add_u32 v{V_VOFF}, v11, 4, v12")
    e(f"v_and_b32 v12, 1, v{V_LANE}")
    e(f"v_lshlrev_b32 v12, 4, v12")
    e(f"v_mov_b32 v13, 0xffff")
    e(f"v_lshlrev_b32 v13, v12, v13")
    e(f"v_bfe_u32 v12, v{V_LANE}, 1, 2")
    for t in range(4):
        e(f"v_cmp_eq_u32 vcc, {t}, v12")
        g.nop(2)
        e(f"v_cndmask_b32 v{V_M+t}, 0, v13, vcc")
    e("s_waitcnt lgkmcnt(0)")
    e(f"s_add_u32 s{S_ST}, s{S_WS}, s{S_TMP3}")
    e(f"s_addc_u32 s{S_ST+1}, s{S_WS+1}, 0")
    e(f"s_load_dwordx2 s[{S_E}:{S_E+1}], s[{S_ST}:{S_ST+1}], {WS_E}")
    e(f"s_cmp_eq_u32 s{S_AB}, 0")
    for i, dst in enumerate([S_X, S_K, S_V, S_WQ, S_WO]):
        e(f"s_cselect_b64 s[{dst}:{dst+1}], s[{20+2*i}:{21+2*i}], s[{32+2*i}:{33+2*i}]")
    srd(R_X, S_X, None, "3584")
    e(f"s_mul_i32 s{S_TMP}, s{S_W}, {56*8192}")
    e(f"s_lshl_b32 s{S_TMP2}, s{S_KVH}, 10")
    e(f"s_add_u32 s{S_TMP}, s{S_TMP}, s{S_TMP2}")
    e(f"s_lshl_b32 s{S_TMP2}, s{S_S}, 8")
    e(f"s_add_u32 s{S_TMP}, s{S_TMP}, s{S_TMP2}")
    e(f"s_sub_u32 s{S_TMP2}, {448*8192}, s{S_TMP}")
    srd(R_W, S_WQ, f"s{S_TMP}", f"s{S_TMP2}")
    e(f"s_mul_i32 s{S_TMP}, s{S_B}, 896")
    e(f"s_mul_i32 s{S_TMP2}, s{S_W}, 112")
    e(f"s_add_u32 s{S_TMP}, s{S_TMP}, s{S_TMP2}")
    e(f"v_mul_u32_u24 v12, 28, v10")
    e(f"buffer_load_dwordx4 v[40:43], v12, s[{R_X}:{R_X+3}], s{S_TMP} offen")
    e(f"buffer_load_dwordx4 v[44:47], v12, s[{R_X}:{R_X+3}], s{S_TMP} offen offset:16")
    e(f"v_mul_u32_u24 v12, {14*8192//16}, v10")
    e(f"v_add_lshl_u32 v12, v12, v11, 4")
    e(f"s_mov_b32 s{S_TMP}, 0")
    for i in range(14):
        if not opt.get("noq", 0): e(f"buffer_load_dwordx4 {vr(V_WQ+4*i,4)}, v12, s[{R_W}:{R_W+3}], s{S_TMP} offen{NTW}")
        if i < 13:
            e(f"s_add_u32 s{S_TMP}, s{S_TMP}, 8192")
    e(f"s_lshl_b32 s{S_TMP}, s{S_B}, 3")
    e(f"s_or_b32 s{S_TMP}, s{S_TMP}, s{S_KVH}")
    e(f"s_lshl_b32 s{S_TMP}, s{S_TMP}, 22")
    srd(R_K, S_K, f"s{S_TMP}", "0x400000")
    srd(R_V, S_V, f"s{S_TMP}", "0x400000")
    srd(R_WS, S_WS, None, hex(WS_SIZE))
    srd(R_OUT, S_OUT, None, "7168")
    e(f"s_mul_i32 s{S_TMP3}, s{S_GRP}, {cstride}")
    e(f"s_add_u32 s{S_TMP3}, s{S_TMP3}, {WS_C}")
    e(f"s_add_u32 s{S_CB}, s{S_WS}, s{S_TMP3}")
    e(f"s_addc_u32 s{S_CB+1}, s{S_WS+1}, 0")
    if stamps:
        e(f"s_lshl_b32 s95, s2, 11")
        e(f"s_lshl_b32 s{S_TMP}, s{S_W}, 8")
        e(f"s_add_u32 s95, s95, s{S_TMP}")
        e(f"s_add_u32 s95, s95, {WS_T}")
    e(f"v_mov_b32 v{V_TKA}, {L_TK}")
    e(f"v_mov_b32 v{V_ONE}, 1")
    e(f"s_cmp_lg_u32 s{S_W}, 0")
    e("s_cbranch_scc1 L_noinit")
    e(f"v_mov_b32 v13, 16")
    e(f"ds_write_b32 v{V_TKA}, v13")
    if SW < 128:
        e(f"s_cmp_lg_u32 s{S_S}, 0")
        e("s_cbranch_scc1 L_noinit")
        e(f"v_mov_b32 v12, s{S_TMP3}")
        e(f"v_mov_b32 v13, {4*SW}")
        e(f"s_mov_b64 exec, 1")
        e(f"buffer_store_dword v13, v12, s[{R_WS}:{R_WS+3}], 0 offen sc1")
        e(f"s_mov_b64 exec, -1")
    g.label("L_noinit")
    tmap = opt.get("tmap", 0)
    if tmap == 0:
        e(f"s_lshl_b32 s{S_CUR}, s{S_W}, 2")
        e(f"s_add_u32 s{S_CUR}, s{S_CUR}, s{S_S}")
        e(f"s_add_u32 s{S_NXT}, s{S_CUR}, 32")
    else:
        rotm = opt.get("rotm", 0)
        e(f"s_mul_i32 s{S_ROT}, s2, {rotm}")
        e(f"s_and_b32 s{S_ROT}, s{S_ROT}, 63")
        e(f"s_mul_i32 s{S_SB}, s{S_S}, {SW}")
        e(f"s_add_u32 s{S_CUR}, s{S_ROT}, s{S_W}")
        e(f"s_add_u32 s{S_NXT}, s{S_CUR}, 8")
        e(f"s_add_u32 s{S_CUR}, s{S_CUR}, s{S_SB}")
        e(f"s_add_u32 s{S_NXT}, s{S_NXT}, s{S_SB}")
    e(f"s_mov_b32 s{S_PEND}, 0")

    def set_offsets(sidx):
        e(f"s_lshl_b32 s{S_T0}, s{sidx}, 13")
        e(f"s_add_u32 s{S_T0+1}, s{S_T0}, 4096")

    set_offsets(S_CUR)

    def ld_k(i, h):
        e(f"buffer_load_dwordx4 {vr(V_KR+8*i+4*h,4)}, v{V_KOFF}, s[{R_K}:{R_K+3}], s{S_T0+(i>>1)} offen offset:{(i&1)*2048+h*256}{NT}")

    def ld_v(i, h):
        e(f"buffer_load_dwordx4 {vr(V_VR+8*i+4*h,4)}, v{V_VOFF}, s[{R_V}:{R_V+3}], s{S_T0+(i>>1)} offen offset:{(i&1)*2048+h*256}{NT}")

    seq = [(ld_k, i, h) for i in range(NG) for h in range(2)] + [(ld_v, i, h) for i in range(NG) for h in range(2)]
    e("s_waitcnt lgkmcnt(0)")
    e(f"s_add_u32 s{S_E}, s{S_E}, 1")
    e(f"s_addc_u32 s{S_E+1}, s{S_E+1}, 0")
    e(f"s_mov_b32 s{S_TA}, s{S_E}")
    e(f"s_brev_b32 s{S_TB}, s{S_E}")
    e(f"s_xor_b32 s{S_TB}, s{S_TB}, s{S_E+1}")
    e(f"v_mov_b32 v12, s{S_TA}")
    e(f"v_mov_b32 v13, s{S_TB}")
    e(f"v_and_b32 v14, 1, v{V_LANE}")
    e(f"v_cmp_eq_u32 vcc, 1, v14")
    g.nop(2)
    e(f"v_cndmask_b32 v{V_TAG}, v12, v13, vcc")
    stamp(0)
    e("s_barrier")
    bench = opt.get("bench", 0)
    if bench:
        for f, i, h in seq:
            f(i, h)
        for r in range(8):
            e(f"v_mov_b32 v{V_Q+r}, 0x3f9d3e80")
        e("s_branch L_bench")
    for f, i, h in seq[:pre]:
        f(i, h)
    ncp = 0
    if cpf:
        pass
    e(f"s_waitcnt vmcnt({pre})")
    stamp(1)
    QA = 56
    for i in range(14):
        sel = S_SELO if (i & 1) else S_SELE
        bb = 48 + 4 * (i & 1)
        e(f"v_perm_b32 v60, v{40+(i>>1)}, v{40+(i>>1)}, s{sel}")
        for t in range(4):
            e(f"v_and_b32 v{bb+t}, v60, v{V_M+t}")
        g.nop(2)
        csrc = "0" if i == 0 else vr(QA, 4)
        e(f"v_mfma_f32_16x16x32_bf16 {vr(QA,4)}, {vr(V_WQ+4*i,4)}, {vr(bb,4)}, {csrc}")
    e(f"v_and_b32 v12, 7, v{V_LANE}")
    e(f"v_lshlrev_b32 v12, 2, v12")
    e(f"v_lshl_add_u32 v12, v10, 7, v12")
    e(f"s_lshl_b32 s{S_TMP}, s{S_W}, 9")
    e(f"v_add_u32 v12, s{S_TMP}, v12")
    g.nop(8)
    for r in range(4):
        e(f"ds_write_b32 v12, v{QA+r} offset:{L_QP + r*32}")
    e("s_waitcnt lgkmcnt(0)")
    e("s_barrier")
    e(f"s_cmp_lg_u32 s{S_W}, 0")
    e("s_cbranch_scc1 L_qwait")
    e(f"v_lshlrev_b32 v12, 3, v{V_LANE}")
    for w in range(8):
        e(f"ds_read_b64 v[{40+2*w}:{41+2*w}], v12 offset:{L_QP + w*512}")
    e("s_waitcnt lgkmcnt(0)")
    for w in range(1, 8):
        e(f"v_add_f32 v40, v40, v{40+2*w}")
        e(f"v_add_f32 v41, v41, v{41+2*w}")
    e(f"v_cvt_pk_bf16_f32 v40, v40, v41")
    e(f"v_mov_b32 v41, v{V_TAG}")
    e(f"s_lshl_b32 s{S_TMP}, s{S_GRP}, 11")
    e(f"s_add_u32 s{S_TMP}, s{S_TMP}, {WS_Q}")
    e(f"s_lshl_b32 s{S_TMP2}, s{S_S}, 9")
    e(f"s_add_u32 s{S_TMP2}, s{S_TMP2}, s{S_TMP}")
    e(f"buffer_store_dwordx2 v[40:41], v12, s[{R_WS}:{R_WS+3}], s{S_TMP2} offen sc1")
    stamp(2)
    e(f"v_lshlrev_b32 v12, 4, v{V_LANE}")
    e(f"s_mov_b32 s{S_CNT}, {SPIN}")
    g.label("L_poll1")
    e(f"buffer_load_dwordx4 v[40:43], v12, s[{R_WS}:{R_WS+3}], s{S_TMP} offen sc1")
    e(f"buffer_load_dwordx4 v[44:47], v12, s[{R_WS}:{R_WS+3}], s{S_TMP} offen offset:1024 sc1")
    e("s_waitcnt vmcnt(0)")
    if not opt.get("noq", 0):
        tagcheck(40, 4)
        pollend("L_poll1")
    stamp(3)
    e(f"v_mov_b32 v41, v42")
    e(f"v_mov_b32 v45, v46")
    e(f"v_lshlrev_b32 v12, 3, v{V_LANE}")
    e(f"ds_write_b64 v12, v[40:41] offset:{L_Q}")
    e(f"ds_write_b64 v12, v[44:45] offset:{L_Q+512}")
    e("s_waitcnt lgkmcnt(0)")
    g.label("L_qwait")
    e("s_barrier")
    for f, i, h in seq[pre:]:
        f(i, h)
    e(f"s_lshl_b32 s{S_TMP}, s{S_KVH}, 9")
    e(f"s_lshl_b32 s{S_TMP2}, s{S_W}, 6")
    e(f"s_add_u32 s{S_TMP}, s{S_TMP}, s{S_TMP2}")
    e(f"s_mul_i32 s{S_TMP}, s{S_TMP}, 896")
    e(f"s_mul_i32 s{S_TMP2}, s{S_S}, 224")
    e(f"s_add_u32 s{S_TMP}, s{S_TMP}, s{S_TMP2}")
    e(f"s_sub_u32 s{S_TMP2}, {4096*896}, s{S_TMP}")
    srd(R_W, S_WO, f"s{S_TMP}", f"s{S_TMP2}")
    e(f"v_mul_u32_u24 v12, {16*896//16}, v10")
    e(f"v_add_lshl_u32 v12, v12, v11, 4")
    e(f"s_mov_b32 s{S_TMP}, 0")
    for ii in range(16):
        rr = R_X if opt.get("nowo", 0) else R_W
        e(f"buffer_load_dwordx4 {vr(V_WO+4*ii,4)}, v12, s[{rr}:{rr+3}], s{S_TMP} offen{NTW}")
        if ii < 15:
            e(f"s_add_u32 s{S_TMP}, s{S_TMP}, 896")
    e(f"v_lshrrev_b32 v12, 3, v11")
    e(f"v_lshlrev_b32 v12, 9, v12")
    e(f"v_lshl_add_u32 v12, v10, 6, v12")
    e(f"v_and_b32 v13, 3, v{V_LANE}")
    e(f"v_lshl_add_u32 v12, v13, 4, v12")
    e(f"ds_read_b128 {vr(V_Q,4)}, v12 offset:{L_Q}")
    e(f"ds_read_b128 {vr(V_Q+4,4)}, v12 offset:{L_Q+256}")
    g.label("L_bench")
    e(f"v_mov_b32 v{V_MC}, 0xff800000")
    e(f"v_mov_b32 v{V_L}, 0")
    for r in range(8):
        e(f"v_mov_b32 v{V_ACC+r}, 0")
    e("s_waitcnt lgkmcnt(0)")
    stamp(4)

    W = 4 * NG - 2

    def tile(first):
        u = g.lab; g.lab += 1
        extra = 16 if (first and not opt.get("bench", 0)) else 0
        for i in range(NG):
            e(f"s_waitcnt vmcnt({W + extra})")
            if i == 0:
                if not first:
                    e(f"s_cmp_eq_u32 s{S_PEND}, 0")
                    e(f"s_cbranch_scc1 L_np{u}")
                    e("s_waitcnt lgkmcnt(0)")
                    e(f"s_mov_b32 s{S_NXT}, s{S_SA}")
                    e(f"s_mov_b32 s{S_PEND}, 0")
                    g.label(f"L_np{u}")
                set_offsets(S_NXT)
                e("s_mov_b64 exec, 1")
                e(f"ds_add_rtn_u32 v{V_TK}, v{V_TKA}, v{V_ONE}")
                e("s_mov_b64 exec, -1")
            e(f"v_mfma_f32_16x16x32_bf16 {vr(V_S+4*i,4)}, {vr(V_KR+8*i,4)}, {vr(V_Q,4)}, 0")
            e(f"v_mfma_f32_16x16x32_bf16 {vr(V_S+4*i,4)}, {vr(V_KR+8*i+4,4)}, {vr(V_Q+4,4)}, {vr(V_S+4*i,4)}")
            ld_k(i, 0); ld_k(i, 1)
        e("s_waitcnt lgkmcnt(0)")
        e(f"v_readfirstlane_b32 s{S_N2}, v{V_TK}")
        g.nop(4)
        e(f"s_cmp_ge_u32 s{S_NXT}, {ntiles}")
        e(f"s_cbranch_scc1 L_inv{u}")
        e(f"s_cmp_ge_u32 s{S_N2}, {SW}")
        e(f"s_cbranch_scc1 L_pool{u}")
        if tmap == 0:
            e(f"s_lshl_b32 s{S_N2}, s{S_N2}, 2")
            e(f"s_add_u32 s{S_N2}, s{S_N2}, s{S_S}")
        else:
            e(f"s_add_u32 s{S_N2}, s{S_N2}, s{S_ROT}")
            e(f"s_sub_u32 s{S_TMP}, s{S_N2}, {SW}")
            e(f"s_cmp_ge_u32 s{S_N2}, {SW}")
            e(f"s_cselect_b32 s{S_N2}, s{S_TMP}, s{S_N2}")
            e(f"s_add_u32 s{S_N2}, s{S_N2}, s{S_SB}")
        e(f"s_branch L_tkd{u}")
        g.label(f"L_pool{u}")
        if SW < 128:
            e(f"s_mov_b32 s{S_SA}, 1")
            e(f"s_atomic_add s{S_SA}, s[{S_CB}:{S_CB+1}], 0 glc")
            e(f"s_mov_b32 s{S_PEND}, 1")
            e(f"s_branch L_tkd{u}")
        g.label(f"L_inv{u}")
        e(f"s_mov_b32 s{S_N2}, {ntiles}")
        g.label(f"L_tkd{u}")
        for i in range(NG):
            s = V_S + 4 * i
            p = V_P + i
            e(f"v_mov_b32_dpp v{p}, v{s} quad_perm:[0,0,0,0] row_mask:0xf bank_mask:0xf")
            for k in range(1, 4):
                e(f"v_add_f32_dpp v{p}, v{s+k}, v{p} quad_perm:[{k},{k},{k},{k}] row_mask:0xf bank_mask:0xf")
        e(f"v_max3_f32 v10, v{V_P}, v{V_P+1}, v{V_P+2}")
        e(f"v_max_f32 v10, v10, v{V_P+3}")
        e(f"v_mov_b32 v11, v10")
        g.nop(2)
        e(f"v_permlane32_swap_b32 v10, v11")
        g.nop(1)
        e(f"v_max_f32 v10, v10, v11")
        e(f"v_mov_b32 v11, v10")
        g.nop(2)
        e(f"v_permlane16_swap_b32 v10, v11")
        g.nop(1)
        e(f"v_max_f32 v10, v10, v11")
        e(f"v_mul_f32 v10, s{S_C}, v10")
        e(f"v_max_f32 v10, v10, v{V_MC}")
        e(f"v_sub_f32 v11, v{V_MC}, v10")
        e(f"v_exp_f32 v11, v11")
        e(f"v_mov_b32 v{V_MC}, v10")
        for i in range(NG):
            e(f"v_fma_f32 v{V_P+i}, v{V_P+i}, s{S_C}, -v10")
        for i in range(NG):
            e(f"v_exp_f32 v{V_P+i}, v{V_P+i}")
        for r in range(8):
            e(f"v_mul_f32 v{V_ACC+r}, v{V_ACC+r}, v11")
        e(f"v_mul_f32 v{V_L}, v{V_L}, v11")
        for i in range(NG):
            s = V_S + 4 * i
            e(f"v_cvt_pk_bf16_f32 v12, v{V_P+i}, v{V_P+i}")
            e(f"v_add_f32 v{V_L}, v{V_L}, v{V_P+i}")
            for t in range(4):
                e(f"v_and_b32 v{s+t}, v12, v{V_M+t}")
        g.nop(2)
        for i in range(NG):
            e(f"s_waitcnt vmcnt({W + extra})")
            for h in range(2):
                e(f"v_mfma_f32_16x16x32_bf16 {vr(V_ACC+4*h,4)}, {vr(V_VR+8*i+4*h,4)}, {vr(V_S+4*i,4)}, {vr(V_ACC+4*h,4)}")
            ld_v(i, 0); ld_v(i, 1)
        e(f"s_mov_b32 s{S_CUR}, s{S_NXT}")
        e(f"s_mov_b32 s{S_NXT}, s{S_N2}")

    tile(True)
    g.l.append(".p2align 6")
    g.label("L_loop")
    tile(False)
    e(f"s_cmp_lt_u32 s{S_CUR}, {ntiles}")
    e("s_cbranch_scc1 L_loop")
    e("s_waitcnt vmcnt(0) lgkmcnt(0)")
    stamp(5)
    if bench:
        e("s_endpgm")

    e(f"v_lshrrev_b32 v10, 4, v{V_LANE}")
    e(f"v_and_b32 v11, 15, v{V_LANE}")
    e(f"v_mov_b32 v12, v{V_L}")
    g.nop(2)
    e(f"v_permlane32_swap_b32 v{V_L}, v12")
    g.nop(1)
    e(f"v_add_f32 v{V_L}, v{V_L}, v12")
    e(f"v_mov_b32 v12, v{V_L}")
    g.nop(2)
    e(f"v_permlane16_swap_b32 v{V_L}, v12")
    g.nop(1)
    e(f"v_add_f32 v{V_L}, v{V_L}, v12")
    e(f"v_lshrrev_b32 v12, 3, v11")
    e(f"s_lshl_b32 s{S_TMP}, s{S_W}, 4")
    e(f"v_lshlrev_b32 v13, 3, v12")
    e(f"v_add_u32 v13, s{S_TMP}, v13")
    e(f"ds_write_b64 v13, v[{V_MC}:{V_L}] offset:{L_ML}")
    e(f"v_lshlrev_b32 v13, 10, v12")
    e(f"v_lshl_add_u32 v13, v10, 7, v13")
    e(f"v_and_b32 v14, 7, v{V_LANE}")
    e(f"v_lshl_add_u32 v13, v14, 2, v13")
    e(f"s_lshl_b32 s{S_TMP}, s{S_W}, 11")
    e(f"v_add_u32 v13, s{S_TMP}, v13")
    g.nop(8)
    for h in range(2):
        for r in range(4):
            e(f"ds_write_b32 v13, v{V_ACC+4*h+r} offset:{L_O + h*512 + r*32}")
    e("s_waitcnt lgkmcnt(0)")
    e("s_barrier")
    e(f"v_lshrrev_b32 v10, 8, v{V_TID}")
    e(f"v_lshlrev_b32 v11, 3, v10")
    e(f"v_lshlrev_b32 v12, 2, v{V_TID}")
    for w in range(8):
        e(f"ds_read_b64 v[{40+2*w}:{41+2*w}], v11 offset:{L_ML + w*16}")
    for w in range(8):
        e(f"ds_read_b32 v{72+w}, v12 offset:{L_O + w*2048}")
    e("s_waitcnt lgkmcnt(0)")
    e("v_max3_f32 v13, v40, v42, v44")
    e("v_max3_f32 v13, v13, v46, v48")
    e("v_max3_f32 v13, v13, v50, v52")
    e("v_max_f32 v13, v13, v54")
    for w in range(8):
        e(f"v_sub_f32 v{40+2*w}, v{40+2*w}, v13")
    for w in range(8):
        e(f"v_exp_f32 v{40+2*w}, v{40+2*w}")
    g.nop(1)
    e("v_mul_f32 v14, v40, v41")
    e("v_mul_f32 v15, v40, v72")
    for w in range(1, 8):
        e(f"v_fmac_f32 v14, v{40+2*w}, v{41+2*w}")
        e(f"v_fmac_f32 v15, v{40+2*w}, v{72+w}")
    e(f"s_lshl_b32 s{S_TMP}, s{S_GRP}, 15")
    e(f"s_add_u32 s{S_TMP}, s{S_TMP}, {WS_P}")
    e(f"s_lshl_b32 s{S_TMP2}, s{S_S}, 13")
    e(f"s_add_u32 s{S_TMP2}, s{S_TMP2}, s{S_TMP}")
    e(f"v_mov_b32 v40, v15")
    e(f"v_mov_b32 v41, v{V_TAG}")
    e(f"v_lshlrev_b32 v12, 3, v{V_TID}")
    e(f"buffer_store_dwordx2 v[40:41], v12, s[{R_WS}:{R_WS+3}], s{S_TMP2} offen offset:64 sc1")
    e(f"v_mov_b32 v44, v13")
    e(f"v_mov_b32 v45, s{S_TA}")
    e(f"v_mov_b32 v46, v14")
    e(f"v_mov_b32 v47, s{S_TB}")
    e(f"v_lshlrev_b32 v11, 4, v10")
    e(f"v_and_b32 v13, 255, v{V_TID}")
    e(f"v_cmp_eq_u32 vcc, 0, v13")
    e(f"s_and_saveexec_b64 s[{S_EX}:{S_EX+1}], vcc")
    e("s_cbranch_execz L_noml")
    e(f"buffer_store_dwordx4 v[44:47], v11, s[{R_WS}:{R_WS+3}], s{S_TMP2} offen sc1")
    g.label("L_noml")
    e(f"s_mov_b64 exec, -1")
    stamp(6)
    e(f"s_cmp_ge_u32 s{S_W}, 4")
    e("s_cbranch_scc1 L_comb_done")
    e(f"v_lshlrev_b32 v12, 4, v{V_TID}")
    e(f"v_lshrrev_b32 v11, 7, v{V_TID}")
    e(f"v_lshlrev_b32 v11, 4, v11")
    e(f"s_mov_b32 s{S_CNT}, {SPIN}")
    g.label("L_poll2")
    e(f"s_mov_b32 s{S_TMP2}, s{S_TMP}")
    for s_ in range(4):
        e(f"buffer_load_dwordx4 v[{72+4*s_}:{75+4*s_}], v12, s[{R_WS}:{R_WS+3}], s{S_TMP2} offen offset:64 sc1")
        e(f"buffer_load_dwordx4 v[{88+4*s_}:{91+4*s_}], v11, s[{R_WS}:{R_WS+3}], s{S_TMP2} offen sc1")
        if s_ < 3:
            e(f"s_add_u32 s{S_TMP2}, s{S_TMP2}, 8192")
    e("s_waitcnt vmcnt(0)")
    tagcheck(72, 16)
    pollend("L_poll2")
    stamp(7)
    e("v_max3_f32 v13, v88, v92, v96")
    e("v_max_f32 v13, v13, v100")
    for s_ in range(4):
        e(f"v_sub_f32 v{88+4*s_}, v{88+4*s_}, v13")
    for s_ in range(4):
        e(f"v_exp_f32 v{88+4*s_}, v{88+4*s_}")
    g.nop(1)
    e("v_mul_f32 v14, v88, v90")
    e("v_mul_f32 v15, v88, v72")
    e("v_mul_f32 v13, v88, v74")
    for s_ in range(1, 4):
        e(f"v_fmac_f32 v14, v{88+4*s_}, v{90+4*s_}")
        e(f"v_fmac_f32 v15, v{88+4*s_}, v{72+4*s_}")
        e(f"v_fmac_f32 v13, v{88+4*s_}, v{74+4*s_}")
    e("v_rcp_f32 v14, v14")
    g.nop(1)
    e("v_mul_f32 v15, v15, v14")
    e("v_mul_f32 v13, v13, v14")
    e("v_cvt_pk_bf16_f32 v15, v15, v13")
    e(f"v_lshlrev_b32 v13, 2, v{V_TID}")
    e(f"ds_write_b32 v13, v15 offset:{L_OB}")
    e("s_waitcnt lgkmcnt(0)")
    g.label("L_comb_done")
    e("s_barrier")
    e(f"v_lshrrev_b32 v10, 4, v{V_LANE}")
    e(f"s_lshl_b32 s{S_TMP}, s{S_W}, 7")
    e(f"v_lshlrev_b32 v12, 5, v10")
    e(f"v_add_u32 v12, s{S_TMP}, v12")
    e(f"ds_read_b128 v[40:43], v12 offset:{L_OB}")
    e(f"ds_read_b128 v[44:47], v12 offset:{L_OB+16}")
    e("s_waitcnt lgkmcnt(0)")
    for i in range(16):
        sel = S_SELO if (i & 1) else S_SELE
        bb = 48 + 4 * (i & 1)
        e(f"v_perm_b32 v60, v{40+(i>>1)}, v{40+(i>>1)}, s{sel}")
        for t in range(4):
            e(f"v_and_b32 v{bb+t}, v60, v{V_M+t}")
        g.nop(2)
        csrc = "0" if i == 0 else vr(QA, 4)
        e(f"v_mfma_f32_16x16x32_bf16 {vr(QA,4)}, {vr(V_WO+4*i,4)}, {vr(bb,4)}, {csrc}")
    e(f"v_and_b32 v12, 7, v{V_LANE}")
    e(f"v_lshlrev_b32 v12, 2, v12")
    e(f"v_lshl_add_u32 v12, v10, 7, v12")
    e(f"s_lshl_b32 s{S_TMP}, s{S_W}, 9")
    e(f"v_add_u32 v12, s{S_TMP}, v12")
    g.nop(8)
    for r in range(4):
        e(f"ds_write_b32 v12, v{QA+r} offset:{L_QP + r*32}")
    e("s_waitcnt lgkmcnt(0)")
    e("s_barrier")
    e(f"s_cmp_ge_u32 s{S_W}, 2")
    e("s_cbranch_scc1 L_end")
    e(f"v_cmp_gt_u32 vcc, 112, v{V_TID}")
    e(f"s_and_saveexec_b64 s[{S_EX}:{S_EX+1}], vcc")
    e("s_cbranch_execz L_end")
    e(f"v_lshlrev_b32 v12, 2, v{V_TID}")
    for w in range(8):
        e(f"ds_read_b32 v{40+w}, v12 offset:{L_QP + w*512}")
    e("s_waitcnt lgkmcnt(0)")
    for w in range(1, 8):
        e(f"v_add_f32 v40, v40, v{40+w}")
    e(f"v_mov_b32 v41, v{V_TAG}")
    e(f"s_lshl_b32 s{S_TMP}, s{S_FIN}, 13")
    e(f"s_add_u32 s{S_TMP}, s{S_TMP}, {WS_F}")
    e(f"s_lshl_b32 s{S_TMP2}, s{S_KVH}, 10")
    e(f"s_add_u32 s{S_TMP2}, s{S_TMP2}, s{S_TMP}")
    e(f"v_lshlrev_b32 v12, 3, v{V_TID}")
    e(f"buffer_store_dwordx2 v[40:41], v12, s[{R_WS}:{R_WS+3}], s{S_TMP2} offen sc1")
    stamp(8)
    e(f"s_cmp_lg_u32 s{S_KVH}, s{S_KVR}")
    e("s_cbranch_scc1 L_end")
    e(f"v_lshrrev_b32 v12, 1, v{V_TID}")
    e(f"v_lshlrev_b32 v12, 4, v12")
    e(f"s_add_u32 s{S_TMP2}, s{S_TMP}, 4096")
    e(f"s_mov_b32 s{S_CNT}, {SPIN}")
    g.label("L_poll3")
    for k in range(8):
        so = S_TMP if k < 4 else S_TMP2
        e(f"buffer_load_dwordx4 v[{72+4*k}:{75+4*k}], v12, s[{R_WS}:{R_WS+3}], s{so} offen offset:{(k&3)*1024} sc1")
    e("s_waitcnt vmcnt(0)")
    tagcheck(72, 16)
    pollend("L_poll3")
    e(f"v_and_b32 v13, 1, v{V_TID}")
    e(f"v_cmp_eq_u32 vcc, 1, v13")
    g.nop(2)
    for k in range(8):
        e(f"v_cndmask_b32 v{72+4*k}, v{72+4*k}, v{74+4*k}, vcc")
    for k in range(1, 8):
        e(f"v_add_f32 v72, v72, v{72+4*k}")
    e("v_cvt_pk_bf16_f32 v40, v72, v72")
    e(f"s_mul_i32 s{S_TMP}, s{S_B}, 1792")
    e(f"s_mul_i32 s{S_TMP2}, s{S_AB}, 896")
    e(f"s_add_u32 s{S_TMP}, s{S_TMP}, s{S_TMP2}")
    e(f"s_mul_i32 s{S_TMP2}, s{S_S}, 224")
    e(f"s_add_u32 s{S_TMP}, s{S_TMP}, s{S_TMP2}")
    e(f"v_lshlrev_b32 v12, 1, v{V_TID}")
    e(f"buffer_store_short v40, v12, s[{R_OUT}:{R_OUT+3}], s{S_TMP} offen")
    stamp(9)
    e(f"s_or_b32 s{S_TMP}, s{S_S}, s{S_W}")
    e(f"s_cmp_lg_u32 s{S_TMP}, 0")
    e("s_cbranch_scc1 L_end")
    e(f"s_lshr_b32 s{S_TMP}, s2, 5")
    e(f"s_lshl_b32 s{S_TMP}, s{S_TMP}, 7")
    e(f"v_mov_b32 v12, s{S_TMP}")
    e(f"v_mov_b32 v40, s{S_E}")
    e(f"v_mov_b32 v41, s{S_E+1}")
    e("s_mov_b64 exec, 1")
    e(f"buffer_store_dwordx2 v[40:41], v12, s[{R_WS}:{R_WS+3}], 0 offen offset:{WS_E} sc1")
    g.label("L_end")
    e("s_endpgm")
    g.l.append('.section .rodata,"a"')
    g.l.append(".p2align 6")
    g.l.append(f".amdhsa_kernel {KN}")
    g.l.append("  .amdhsa_next_free_vgpr 256")
    g.l.append("  .amdhsa_next_free_sgpr 102")
    g.l.append("  .amdhsa_accum_offset 256")
    g.l.append("  .amdhsa_group_segment_fixed_size 0")
    g.l.append("  .amdhsa_kernarg_size 104")
    g.l.append("  .amdhsa_user_sgpr_count 2")
    g.l.append("  .amdhsa_user_sgpr_kernarg_segment_ptr 1")
    g.l.append("  .amdhsa_system_sgpr_workgroup_id_x 1")
    g.l.append(".end_amdhsa_kernel")
    return "\n".join(g.l) + "\n"


if __name__ == "__main__":
    out = sys.argv[1]
    opt = {}
    for a in sys.argv[2:]:
        k, v = a.split("=")
        opt[k] = int(v, 0)
    open(out, "w").write(gen(opt))
```

```python
import sys
from gen import G, vr, HEADER, KN

WS_E = 0x0
WS_Q = 0x4000
WS_F = 0x40000
WS_P = 0x100000
WS_T = 0x400000
WS_C = 0x800000
WS_SIZE = 0x1000000

L_QP = 0
L_Q = 4096
L_ML = 5120
L_TK = 5248
L_OB = 5376
L_O = 8192
LDS_MIN = 8192 + 16384

S_X, S_K, S_V, S_WQ, S_WO = 4, 6, 8, 10, 12
S_OUT, S_DBG, S_WS = 44, 46, 48
S_KVH, S_S, S_B, S_AB, S_W, S_GRP = 14, 15, 16, 17, 18, 19
R_K, R_V, R_W, R_X, R_WS, R_OUT = 52, 56, 60, 68, 72, 80
S_T0 = 84
S_CNT = 88
S_TMP, S_TMP2, S_TMP3 = 89, 90, 91
S_C = 92
S_SELE, S_SELO = 93, 94
S_EX = 96
S_KVR = 3
S_ST = 64
S_FIN = 50
S_TA, S_TB = 76, 77
S_E = 78
S_CUR, S_NXT = 98, 99
S_N2 = 51
S_SA = 100
S_PEND = 101
S_CB = 66
S_ROT = 42
S_NC = 20
S_RDY = 21
R_WO = 36
S_SB = 43

V_TID, V_LANE, V_KOFF, V_VOFF = 0, 1, 2, 3
V_M = 4
V_MC, V_L = 8, 9
V_Q = 16
V_ACC = 24
V_P = 32
V_TK, V_TKA, V_ONE, V_WOFF = 36, 37, 38, 39
V_S = 40
V_TAG = 61


def gen(opt):
    g = G(opt)
    e, c = g.e, g.c
    NG = 4
    NT = " nt" if opt.get("nt", 1) else ""
    NTW = " nt" if opt.get("ntw", 0) else ""
    stamps = opt.get("stamps", 0)
    pre = opt.get("pre", 8)
    spread = opt.get("spread", 1)
    SW = opt.get("sw", 96)
    cstride = opt.get("cstride", 4096)
    lds = max(opt.get("lds", 0), LDS_MIN)
    SPIN = opt.get("spin", 0x20000)
    cpf = opt.get("cpf", 0)
    tile_bytes = NG * 2048
    ntiles = 8192 // (4 * NG)
    V_KR = 72
    V_VR = V_KR + 8 * NG
    V_WO = V_VR + 8 * NG
    V_WQ = 200

    def stamp(idx):
        if not stamps:
            return
        e(f"s_memrealtime s[{S_ST}:{S_ST+1}]")
        e("s_waitcnt lgkmcnt(0)")
        e(f"v_mov_b32 v14, s{S_ST}")
        e(f"v_mov_b32 v15, s{S_ST+1}")
        e(f"v_mov_b32 v13, s95")
        e(f"buffer_store_dwordx2 v[14:15], v13, s[{R_WS}:{R_WS+3}], 0 offen offset:{idx*8}")

    def srd(R, base, off_s, nrec):
        if off_s is None:
            e(f"s_mov_b32 s{R}, s{base}")
            e(f"s_mov_b32 s{R+1}, s{base+1}")
        else:
            e(f"s_add_u32 s{R}, s{base}, {off_s}")
            e(f"s_addc_u32 s{R+1}, s{base+1}, 0")
        e(f"s_mov_b32 s{R+2}, {nrec}")
        e(f"s_mov_b32 s{R+3}, 0x00020000")

    def tagcheck(first_reg, n):
        e(f"v_cmp_ne_u32 vcc, s{S_TA}, v{first_reg+1}")
        for k in range(1, n):
            tg = S_TB if (k & 1) else S_TA
            e(f"v_cmp_ne_u32 s[{S_EX}:{S_EX+1}], s{tg}, v{first_reg+2*k+1}")
            e(f"s_or_b64 vcc, vcc, s[{S_EX}:{S_EX+1}]")

    def pollend(lab):
        e(f"s_sub_u32 s{S_CNT}, s{S_CNT}, 1")
        e(f"s_cbranch_scc1 {lab}_done")
        e("s_cmp_lg_u64 vcc, 0")
        e(f"s_cbranch_scc1 {lab}")
        g.label(f"{lab}_done")

    g.l.append(HEADER.rstrip("\n"))
    g.l.append(f"; @launch grid=(256,1,1) block=(512,1,1) lds={lds}")
    g.l.append('.amdgcn_target "amdgcn-amd-amdhsa--gfx950"')
    g.l.append(".text")
    g.l.append(f".globl {KN}")
    g.l.append(".p2align 8")
    g.l.append(f".type {KN},@function")
    g.l.append(f"{KN}:")
    if stamps:
        e("s_memrealtime s[30:31]")
    e("s_cmp_ge_u32 s2, 256")
    e("s_cbranch_scc1 L_end")
    e("s_load_dwordx8 s[20:27], s[0:1], 0")
    e("s_load_dwordx2 s[28:29], s[0:1], 32")
    e("s_load_dwordx8 s[32:39], s[0:1], 40")
    e("s_load_dwordx2 s[40:41], s[0:1], 72")
    e(f"s_load_dwordx4 s[{S_OUT}:{S_OUT+3}], s[0:1], 80")
    e(f"s_load_dwordx2 s[{S_WS}:{S_WS+1}], s[0:1], 96")
    e(f"v_lshrrev_b32 v10, 6, v0")
    e(f"v_and_b32 v{V_LANE}, 63, v0")
    e(f"v_readfirstlane_b32 s{S_W}, v10")
    e(f"s_lshr_b32 s{S_S}, s2, 3")
    e(f"s_and_b32 s{S_S}, s{S_S}, 3")
    e(f"s_and_b32 s{S_KVH}, s2, 7")
    if spread:
        e(f"s_and_b32 s{S_TMP}, s{S_S}, 1")
        e(f"s_lshr_b32 s{S_TMP2}, s{S_S}, 1")
        e(f"s_lshl_b32 s{S_TMP2}, s{S_TMP2}, 2")
        e(f"s_add_u32 s{S_TMP}, s{S_TMP}, s{S_TMP2}")
        e(f"s_sub_u32 s{S_KVH}, s{S_KVH}, s{S_TMP}")
        e(f"s_and_b32 s{S_KVH}, s{S_KVH}, 7")
    e(f"s_lshr_b32 s{S_B}, s2, 5")
    e(f"s_and_b32 s{S_B}, s{S_B}, 3")
    e(f"s_lshr_b32 s{S_AB}, s2, 7")
    e(f"s_lshr_b32 s{S_TMP}, s2, 5")
    e(f"s_lshl_b32 s{S_GRP}, s{S_TMP}, 3")
    e(f"s_or_b32 s{S_GRP}, s{S_GRP}, s{S_KVH}")
    e(f"s_lshl_b32 s{S_FIN}, s{S_TMP}, 2")
    e(f"s_or_b32 s{S_FIN}, s{S_FIN}, s{S_S}")
    e(f"s_and_b32 s{S_KVR}, s{S_FIN}, 7")
    e(f"s_lshl_b32 s{S_TMP3}, s{S_TMP}, 7")
    e(f"s_mov_b32 s{S_C}, 0x3db8aa3b")
    e(f"s_mov_b32 s{S_SELE}, 0x01000100")
    e(f"s_mov_b32 s{S_SELO}, 0x03020302")
    e(f"v_lshrrev_b32 v10, 4, v{V_LANE}")
    e(f"v_and_b32 v11, 15, v{V_LANE}")
    e(f"v_bfe_u32 v12, v{V_LANE}, 2, 2")
    e(f"v_lshlrev_b32 v12, 9, v12")
    e(f"v_lshl_add_u32 v12, v10, 6, v12")
    e(f"v_and_b32 v13, 3, v{V_LANE}")
    e(f"v_lshl_add_u32 v{V_KOFF}, v13, 4, v12")
    e(f"v_lshlrev_b32 v12, 9, v10")
    e(f"v_lshl_add_u32 v{V_VOFF}, v11, 4, v12")
    e(f"v_and_b32 v12, 1, v{V_LANE}")
    e(f"v_lshlrev_b32 v12, 4, v12")
    e(f"v_mov_b32 v13, 0xffff")
    e(f"v_lshlrev_b32 v13, v12, v13")
    e(f"v_bfe_u32 v12, v{V_LANE}, 1, 2")
    for t in range(4):
        e(f"v_cmp_eq_u32 vcc, {t}, v12")
        g.nop(2)
        e(f"v_cndmask_b32 v{V_M+t}, 0, v13, vcc")
    e("s_waitcnt lgkmcnt(0)")
    e(f"s_add_u32 s{S_ST}, s{S_WS}, s{S_TMP3}")
    e(f"s_addc_u32 s{S_ST+1}, s{S_WS+1}, 0")
    e(f"s_load_dwordx2 s[{S_E}:{S_E+1}], s[{S_ST}:{S_ST+1}], {WS_E}")
    e(f"s_cmp_eq_u32 s{S_AB}, 0")
    for i, dst in enumerate([S_X, S_K, S_V, S_WQ, S_WO]):
        e(f"s_cselect_b64 s[{dst}:{dst+1}], s[{20+2*i}:{21+2*i}], s[{32+2*i}:{33+2*i}]")
    srd(R_X, S_X, None, "3584")
    e(f"s_mul_i32 s{S_TMP}, s{S_W}, {56*8192}")
    e(f"s_lshl_b32 s{S_TMP2}, s{S_KVH}, 10")
    e(f"s_add_u32 s{S_TMP}, s{S_TMP}, s{S_TMP2}")
    e(f"s_lshl_b32 s{S_TMP2}, s{S_S}, 8")
    e(f"s_add_u32 s{S_TMP}, s{S_TMP}, s{S_TMP2}")
    e(f"s_sub_u32 s{S_TMP2}, {448*8192}, s{S_TMP}")
    srd(R_W, S_WQ, f"s{S_TMP}", f"s{S_TMP2}")
    e(f"s_mul_i32 s{S_TMP}, s{S_B}, 896")
    e(f"s_mul_i32 s{S_TMP2}, s{S_W}, 112")
    e(f"s_add_u32 s{S_TMP}, s{S_TMP}, s{S_TMP2}")
    e(f"v_mul_u32_u24 v12, 28, v10")
    e(f"buffer_load_dwordx4 v[40:43], v12, s[{R_X}:{R_X+3}], s{S_TMP} offen")
    e(f"buffer_load_dwordx4 v[44:47], v12, s[{R_X}:{R_X+3}], s{S_TMP} offen offset:16")
    e(f"v_mul_u32_u24 v12, {14*8192//16}, v10")
    e(f"v_add_lshl_u32 v12, v12, v11, 4")
    e(f"s_mov_b32 s{S_TMP}, 0")
    for i in range(14):
        if not opt.get("noq", 0): e(f"buffer_load_dwordx4 {vr(V_WQ+4*i,4)}, v12, s[{R_W}:{R_W+3}], s{S_TMP} offen{NTW}")
        if i < 13:
            e(f"s_add_u32 s{S_TMP}, s{S_TMP}, 8192")
    e(f"s_lshl_b32 s{S_TMP}, s{S_B}, 3")
    e(f"s_or_b32 s{S_TMP}, s{S_TMP}, s{S_KVH}")
    e(f"s_lshl_b32 s{S_TMP}, s{S_TMP}, 22")
    srd(R_K, S_K, f"s{S_TMP}", "0x400000")
    srd(R_V, S_V, f"s{S_TMP}", "0x400000")
    srd(R_WS, S_WS, None, hex(WS_SIZE))
    srd(R_OUT, S_OUT, None, "7168")
    e(f"s_mul_i32 s{S_TMP3}, s{S_GRP}, {cstride}")
    e(f"s_add_u32 s{S_TMP3}, s{S_TMP3}, {WS_C}")
    e(f"s_add_u32 s{S_CB}, s{S_WS}, s{S_TMP3}")
    e(f"s_addc_u32 s{S_CB+1}, s{S_WS+1}, 0")
    if stamps:
        e(f"s_lshl_b32 s95, s2, 11")
        e(f"s_lshl_b32 s{S_TMP}, s{S_W}, 8")
        e(f"s_add_u32 s95, s95, s{S_TMP}")
        e(f"s_add_u32 s95, s95, {WS_T}")
    e(f"v_mov_b32 v{V_TKA}, {L_TK}")
    e(f"v_mov_b32 v{V_ONE}, 1")
    if SW < 128:
        e(f"s_or_b32 s{S_TMP}, s{S_S}, s{S_W}")
        e(f"s_cmp_lg_u32 s{S_TMP}, 0")
        e("s_cbranch_scc1 L_noinit")
        e(f"v_mov_b32 v12, s{S_TMP3}")
        e(f"v_mov_b32 v13, {4*SW}")
        e(f"s_mov_b64 exec, 1")
        e(f"buffer_store_dword v13, v12, s[{R_WS}:{R_WS+3}], 0 offen sc1")
        e(f"s_mov_b64 exec, -1")
        g.label("L_noinit")
    e(f"s_mul_i32 s{S_SB}, s{S_S}, {SW}")
    e(f"s_add_u32 s{S_CUR}, s{S_SB}, s{S_W}")
    e(f"s_add_u32 s{S_NXT}, s{S_CUR}, 8")
    e(f"s_mov_b32 s{S_PEND}, 0")

    def set_offsets(sidx):
        e(f"s_lshl_b32 s{S_T0}, s{sidx}, 13")
        e(f"s_add_u32 s{S_T0+1}, s{S_T0}, 4096")

    set_offsets(S_CUR)

    def ld_k(i, h):
        e(f"buffer_load_dwordx4 {vr(V_KR+8*i+4*h,4)}, v{V_KOFF}, s[{R_K}:{R_K+3}], s{S_T0+(i>>1)} offen offset:{(i&1)*2048+h*256}{NT}")

    def ld_v(i, h):
        e(f"buffer_load_dwordx4 {vr(V_VR+8*i+4*h,4)}, v{V_VOFF}, s[{R_V}:{R_V+3}], s{S_T0+(i>>1)} offen offset:{(i&1)*2048+h*256}{NT}")

    def ld_wo(ii, _):
        e(f"s_mov_b32 s{S_TMP2}, {ii*896}")
        e(f"buffer_load_dwordx4 {vr(V_WO+4*ii,4)}, v{V_WOFF}, s[{R_WO}:{R_WO+3}], s{S_TMP2} offen{NTW}")

    seq = [(ld_k, i, h) for i in range(NG) for h in range(2)] + [(ld_v, i, h) for i in range(NG) for h in range(2)] + [(ld_wo, ii, 0) for ii in range(16)]
    e(f"s_lshl_b32 s{S_TMP}, s{S_KVH}, 9")
    e(f"s_lshl_b32 s{S_TMP2}, s{S_W}, 6")
    e(f"s_add_u32 s{S_TMP}, s{S_TMP}, s{S_TMP2}")
    e(f"s_mul_i32 s{S_TMP}, s{S_TMP}, 896")
    e(f"s_lshl_b32 s{S_TMP2}, s{S_S}, 8")
    e(f"s_add_u32 s{S_TMP}, s{S_TMP}, s{S_TMP2}")
    e(f"s_sub_u32 s{S_TMP2}, {4096*896}, s{S_TMP}")
    srd(R_WO, S_WO, f"s{S_TMP}", f"s{S_TMP2}")
    e(f"v_mul_u32_u24 v12, {16*896//16}, v10")
    e(f"v_add_lshl_u32 v12, v12, v11, 4")
    e(f"s_cmp_eq_u32 s{S_S}, 3")
    e(f"s_cselect_b32 s{S_NC}, 64, 128")
    e(f"v_lshlrev_b32 v13, 3, v11")
    e(f"v_cmp_le_u32 vcc, s{S_NC}, v13")
    e(f"v_mov_b32 v13, 0x40000000")
    g.nop(1)
    e(f"v_cndmask_b32 v{V_WOFF}, v12, v13, vcc")
    stamp(0)
    if stamps:
        e(f"v_mov_b32 v14, s30")
        e(f"v_mov_b32 v15, s31")
        e(f"buffer_store_dwordx2 v[14:15], v13, s[{R_WS}:{R_WS+3}], 0 offen offset:80")
    bench = opt.get("bench", 0)
    if bench:
        for f, i, h in seq[:16]:
            f(i, h)
        for r in range(8):
            e(f"v_mov_b32 v{V_Q+r}, 0x3f9d3e80")
        e("s_branch L_bench")
    W0 = opt.get("w0", 4)
    STEP = opt.get("step", 2)
    b0 = opt.get("b0", 1)
    if b0:
        e("s_barrier")
    e(f"s_cmp_eq_u32 s{S_W}, 0")
    e("s_cbranch_scc1 L_nopre")
    for f, i, h in seq[:W0]:
        f(i, h)
    g.label("L_nopre")
    e("s_waitcnt lgkmcnt(0)")
    e(f"s_add_u32 s{S_E}, s{S_E}, 1")
    e(f"s_addc_u32 s{S_E+1}, s{S_E+1}, 0")
    e(f"s_mov_b32 s{S_TA}, s{S_E}")
    e(f"s_brev_b32 s{S_TB}, s{S_E}")
    e(f"s_xor_b32 s{S_TB}, s{S_TB}, s{S_E+1}")
    e(f"v_mov_b32 v12, s{S_TA}")
    e(f"v_mov_b32 v13, s{S_TB}")
    e(f"v_and_b32 v14, 1, v{V_LANE}")
    e(f"v_cmp_eq_u32 vcc, 1, v14")
    g.nop(2)
    e(f"v_cndmask_b32 v{V_TAG}, v12, v13, vcc")
    e(f"s_cmp_eq_u32 s{S_W}, 0")
    e("s_cbranch_scc1 L_w0w")
    e(f"s_waitcnt vmcnt({W0})")
    e("s_branch L_qc")
    g.label("L_w0w")
    e(f"s_waitcnt vmcnt(0)")
    g.label("L_qc")
    stamp(1)
    QA = 56
    for i in range(14):
        sel = S_SELO if (i & 1) else S_SELE
        bb = 48 + 4 * (i & 1)
        e(f"v_perm_b32 v60, v{40+(i>>1)}, v{40+(i>>1)}, s{sel}")
        for t in range(4):
            e(f"v_and_b32 v{bb+t}, v60, v{V_M+t}")
        g.nop(2)
        csrc = "0" if i == 0 else vr(QA, 4)
        e(f"v_mfma_f32_16x16x32_bf16 {vr(QA,4)}, {vr(V_WQ+4*i,4)}, {vr(bb,4)}, {csrc}")
    e(f"v_and_b32 v12, 7, v{V_LANE}")
    e(f"v_lshlrev_b32 v12, 2, v12")
    e(f"v_lshl_add_u32 v12, v10, 7, v12")
    e(f"s_lshl_b32 s{S_TMP}, s{S_W}, 9")
    e(f"v_add_u32 v12, s{S_TMP}, v12")
    e(f"v_mov_b32 v13, 16")
    e(f"v_mov_b32 v14, 0")
    g.nop(6)
    for r in range(4):
        e(f"ds_write_b32 v12, v{QA+r} offset:{L_QP + r*32}")
    e(f"ds_write_b32 v{V_TKA}, v13")
    e(f"ds_write_b32 v{V_TKA}, v14 offset:4")
    e("s_waitcnt lgkmcnt(0)")
    e("s_barrier")
    e(f"s_cmp_lg_u32 s{S_W}, 0")
    e("s_cbranch_scc1 L_paced")
    e(f"v_lshlrev_b32 v12, 3, v{V_LANE}")
    for w in range(8):
        e(f"ds_read_b64 v[{40+2*w}:{41+2*w}], v12 offset:{L_QP + w*512}")
    e("s_waitcnt lgkmcnt(0)")
    for w in range(1, 8):
        e(f"v_add_f32 v40, v40, v{40+2*w}")
        e(f"v_add_f32 v41, v41, v{41+2*w}")
    e(f"v_cvt_pk_bf16_f32 v40, v40, v41")
    e(f"v_mov_b32 v41, v{V_TAG}")
    e(f"s_lshl_b32 s{S_TMP}, s{S_GRP}, 11")
    e(f"s_add_u32 s{S_TMP}, s{S_TMP}, {WS_Q}")
    e(f"s_lshl_b32 s{S_TMP2}, s{S_S}, 9")
    e(f"s_add_u32 s{S_TMP2}, s{S_TMP2}, s{S_TMP}")
    e(f"buffer_store_dwordx2 v[40:41], v12, s[{R_WS}:{R_WS+3}], s{S_TMP2} offen sc1")
    stamp(2)
    e(f"v_lshlrev_b32 v12, 4, v{V_LANE}")
    e(f"s_mov_b32 s{S_CNT}, {SPIN}")
    g.label("L_poll1")
    e(f"buffer_load_dwordx4 v[40:43], v12, s[{R_WS}:{R_WS+3}], s{S_TMP} offen sc1")
    e(f"buffer_load_dwordx4 v[44:47], v12, s[{R_WS}:{R_WS+3}], s{S_TMP} offen offset:1024 sc1")
    e("s_waitcnt vmcnt(0)")
    tagcheck(40, 4)
    pollend("L_poll1")
    e(f"v_mov_b32 v41, v42")
    e(f"v_mov_b32 v45, v46")
    e(f"v_lshlrev_b32 v12, 3, v{V_LANE}")
    e(f"ds_write_b64 v12, v[40:41] offset:{L_Q}")
    e(f"ds_write_b64 v12, v[44:45] offset:{L_Q+512}")
    e("s_waitcnt lgkmcnt(0)")
    e(f"ds_write_b32 v{V_TKA}, v{V_ONE} offset:4")
    stamp(3)
    for f, i, h in seq:
        f(i, h)
    e("s_branch L_go")
    g.label("L_paced")
    e(f"s_mov_b32 s{S_RDY}, 0")

    def chk(lab):
        e(f"s_cmp_lg_u32 s{S_RDY}, 0")
        e(f"s_cbranch_scc1 {lab}")
        e(f"ds_read_b32 v13, v{V_TKA} offset:4")
        e("s_waitcnt lgkmcnt(0)")
        e(f"v_readfirstlane_b32 s{S_RDY}, v13")
        g.nop(4)
        e(f"s_cmp_lg_u32 s{S_RDY}, 0")
        e(f"s_cbranch_scc1 {lab}")
    j = W0
    while j < len(seq):
        chk(f"L_pi{j}")
        e(f"s_waitcnt vmcnt({max(W0-STEP,0)})")
        g.label(f"L_pi{j}")
        for f, i, h in seq[j:j+STEP]:
            f(i, h)
        j += STEP
    e(f"s_mov_b32 s{S_CNT}, {SPIN*16}")
    g.label("L_wflag")
    chk("L_go")
    e(f"s_sub_u32 s{S_CNT}, s{S_CNT}, 1")
    e("s_cbranch_scc0 L_wflag")
    g.label("L_go")
    e(f"v_lshrrev_b32 v12, 3, v11")
    e(f"v_lshlrev_b32 v12, 9, v12")
    e(f"v_lshl_add_u32 v12, v10, 6, v12")
    e(f"v_and_b32 v13, 3, v{V_LANE}")
    e(f"v_lshl_add_u32 v12, v13, 4, v12")
    e(f"ds_read_b128 {vr(V_Q,4)}, v12 offset:{L_Q}")
    e(f"ds_read_b128 {vr(V_Q+4,4)}, v12 offset:{L_Q+256}")
    g.label("L_bench")
    e(f"v_mov_b32 v{V_MC}, 0xff800000")
    e(f"v_mov_b32 v{V_L}, 0")
    for r in range(8):
        e(f"v_mov_b32 v{V_ACC+r}, 0")
    e("s_waitcnt lgkmcnt(0)")
    stamp(4)

    W = 4 * NG - 2

    def tile(first):
        u = g.lab; g.lab += 1
        extra = 16 if (first and not opt.get("bench", 0)) else 0
        for i in range(NG):
            e(f"s_waitcnt vmcnt({W + extra})")
            if i == 0:
                if not first:
                    e(f"s_cmp_eq_u32 s{S_PEND}, 0")
                    e(f"s_cbranch_scc1 L_np{u}")
                    e("s_waitcnt lgkmcnt(0)")
                    e(f"s_mov_b32 s{S_NXT}, s{S_SA}")
                    e(f"s_mov_b32 s{S_PEND}, 0")
                    g.label(f"L_np{u}")
                set_offsets(S_NXT)
                e("s_mov_b64 exec, 1")
                e(f"ds_add_rtn_u32 v{V_TK}, v{V_TKA}, v{V_ONE}")
                e("s_mov_b64 exec, -1")
            e(f"v_mfma_f32_16x16x32_bf16 {vr(V_S+4*i,4)}, {vr(V_KR+8*i,4)}, {vr(V_Q,4)}, 0")
            e(f"v_mfma_f32_16x16x32_bf16 {vr(V_S+4*i,4)}, {vr(V_KR+8*i+4,4)}, {vr(V_Q+4,4)}, {vr(V_S+4*i,4)}")
            ld_k(i, 0); ld_k(i, 1)
        e("s_waitcnt lgkmcnt(0)")
        e(f"v_readfirstlane_b32 s{S_N2}, v{V_TK}")
        g.nop(4)
        e(f"s_cmp_ge_u32 s{S_NXT}, {ntiles}")
        e(f"s_cbranch_scc1 L_inv{u}")
        e(f"s_cmp_ge_u32 s{S_N2}, {SW}")
        e(f"s_cbranch_scc1 L_pool{u}")
        e(f"s_add_u32 s{S_N2}, s{S_N2}, s{S_SB}")
        e(f"s_branch L_tkd{u}")
        g.label(f"L_pool{u}")
        if SW < 128:
            e(f"s_mov_b32 s{S_SA}, 1")
            e(f"s_atomic_add s{S_SA}, s[{S_CB}:{S_CB+1}], 0 glc")
            e(f"s_mov_b32 s{S_PEND}, 1")
            e(f"s_branch L_tkd{u}")
        g.label(f"L_inv{u}")
        e(f"s_mov_b32 s{S_N2}, {ntiles}")
        g.label(f"L_tkd{u}")
        for i in range(NG):
            s = V_S + 4 * i
            p = V_P + i
            e(f"v_mov_b32_dpp v{p}, v{s} quad_perm:[0,0,0,0] row_mask:0xf bank_mask:0xf")
            for k in range(1, 4):
                e(f"v_add_f32_dpp v{p}, v{s+k}, v{p} quad_perm:[{k},{k},{k},{k}] row_mask:0xf bank_mask:0xf")
        e(f"v_max3_f32 v10, v{V_P}, v{V_P+1}, v{V_P+2}")
        e(f"v_max_f32 v10, v10, v{V_P+3}")
        e(f"v_mov_b32 v11, v10")
        g.nop(2)
        e(f"v_permlane32_swap_b32 v10, v11")
        g.nop(1)
        e(f"v_max_f32 v10, v10, v11")
        e(f"v_mov_b32 v11, v10")
        g.nop(2)
        e(f"v_permlane16_swap_b32 v10, v11")
        g.nop(1)
        e(f"v_max_f32 v10, v10, v11")
        e(f"v_mul_f32 v10, s{S_C}, v10")
        e(f"v_max_f32 v10, v10, v{V_MC}")
        e(f"v_sub_f32 v11, v{V_MC}, v10")
        e(f"v_exp_f32 v11, v11")
        e(f"v_mov_b32 v{V_MC}, v10")
        for i in range(NG):
            e(f"v_fma_f32 v{V_P+i}, v{V_P+i}, s{S_C}, -v10")
        for i in range(NG):
            e(f"v_exp_f32 v{V_P+i}, v{V_P+i}")
        for r in range(8):
            e(f"v_mul_f32 v{V_ACC+r}, v{V_ACC+r}, v11")
        e(f"v_mul_f32 v{V_L}, v{V_L}, v11")
        for i in range(NG):
            s = V_S + 4 * i
            e(f"v_cvt_pk_bf16_f32 v12, v{V_P+i}, v{V_P+i}")
            e(f"v_add_f32 v{V_L}, v{V_L}, v{V_P+i}")
            for t in range(4):
                e(f"v_and_b32 v{s+t}, v12, v{V_M+t}")
        g.nop(2)
        for i in range(NG):
            e(f"s_waitcnt vmcnt({W + extra})")
            for h in range(2):
                e(f"v_mfma_f32_16x16x32_bf16 {vr(V_ACC+4*h,4)}, {vr(V_VR+8*i+4*h,4)}, {vr(V_S+4*i,4)}, {vr(V_ACC+4*h,4)}")
            ld_v(i, 0); ld_v(i, 1)
        e(f"s_mov_b32 s{S_CUR}, s{S_NXT}")
        e(f"s_mov_b32 s{S_NXT}, s{S_N2}")

    tile(True)
    g.l.append(".p2align 6")
    g.label("L_loop")
    tile(False)
    e(f"s_cmp_lt_u32 s{S_CUR}, {ntiles}")
    e("s_cbranch_scc1 L_loop")
    e("s_waitcnt vmcnt(0) lgkmcnt(0)")
    stamp(5)
    if bench:
        e("s_endpgm")

    e(f"v_lshrrev_b32 v10, 4, v{V_LANE}")
    e(f"v_and_b32 v11, 15, v{V_LANE}")
    e(f"v_mov_b32 v12, v{V_L}")
    g.nop(2)
    e(f"v_permlane32_swap_b32 v{V_L}, v12")
    g.nop(1)
    e(f"v_add_f32 v{V_L}, v{V_L}, v12")
    e(f"v_mov_b32 v12, v{V_L}")
    g.nop(2)
    e(f"v_permlane16_swap_b32 v{V_L}, v12")
    g.nop(1)
    e(f"v_add_f32 v{V_L}, v{V_L}, v12")
    e(f"v_lshrrev_b32 v12, 3, v11")
    e(f"s_lshl_b32 s{S_TMP}, s{S_W}, 4")
    e(f"v_lshlrev_b32 v13, 3, v12")
    e(f"v_add_u32 v13, s{S_TMP}, v13")
    e(f"ds_write_b64 v13, v[{V_MC}:{V_L}] offset:{L_ML}")
    e(f"v_lshlrev_b32 v13, 10, v12")
    e(f"v_lshl_add_u32 v13, v10, 7, v13")
    e(f"v_and_b32 v14, 7, v{V_LANE}")
    e(f"v_lshl_add_u32 v13, v14, 2, v13")
    e(f"s_lshl_b32 s{S_TMP}, s{S_W}, 11")
    e(f"v_add_u32 v13, s{S_TMP}, v13")
    g.nop(8)
    for h in range(2):
        for r in range(4):
            e(f"ds_write_b32 v13, v{V_ACC+4*h+r} offset:{L_O + h*512 + r*32}")
    e("s_waitcnt lgkmcnt(0)")
    e("s_barrier")
    e(f"v_lshrrev_b32 v10, 8, v{V_TID}")
    e(f"v_lshlrev_b32 v11, 3, v10")
    e(f"v_lshlrev_b32 v12, 2, v{V_TID}")
    for w in range(8):
        e(f"ds_read_b64 v[{40+2*w}:{41+2*w}], v11 offset:{L_ML + w*16}")
    for w in range(8):
        e(f"ds_read_b32 v{72+w}, v12 offset:{L_O + w*2048}")
    e("s_waitcnt lgkmcnt(0)")
    e("v_max3_f32 v13, v40, v42, v44")
    e("v_max3_f32 v13, v13, v46, v48")
    e("v_max3_f32 v13, v13, v50, v52")
    e("v_max_f32 v13, v13, v54")
    for w in range(8):
        e(f"v_sub_f32 v{40+2*w}, v{40+2*w}, v13")
    for w in range(8):
        e(f"v_exp_f32 v{40+2*w}, v{40+2*w}")
    g.nop(1)
    e("v_mul_f32 v14, v40, v41")
    e("v_mul_f32 v15, v40, v72")
    for w in range(1, 8):
        e(f"v_fmac_f32 v14, v{40+2*w}, v{41+2*w}")
        e(f"v_fmac_f32 v15, v{40+2*w}, v{72+w}")
    e(f"s_lshl_b32 s{S_TMP}, s{S_GRP}, 15")
    e(f"s_add_u32 s{S_TMP}, s{S_TMP}, {WS_P}")
    e(f"s_lshl_b32 s{S_TMP2}, s{S_S}, 13")
    e(f"s_add_u32 s{S_TMP2}, s{S_TMP2}, s{S_TMP}")
    e(f"v_mov_b32 v40, v15")
    e(f"v_mov_b32 v41, v{V_TAG}")
    e(f"v_lshlrev_b32 v12, 3, v{V_TID}")
    e(f"buffer_store_dwordx2 v[40:41], v12, s[{R_WS}:{R_WS+3}], s{S_TMP2} offen offset:64 sc1")
    e(f"v_mov_b32 v44, v13")
    e(f"v_mov_b32 v45, s{S_TA}")
    e(f"v_mov_b32 v46, v14")
    e(f"v_mov_b32 v47, s{S_TB}")
    e(f"v_lshlrev_b32 v11, 4, v10")
    e(f"v_and_b32 v13, 255, v{V_TID}")
    e(f"v_cmp_eq_u32 vcc, 0, v13")
    e(f"s_and_saveexec_b64 s[{S_EX}:{S_EX+1}], vcc")
    e("s_cbranch_execz L_noml")
    e(f"buffer_store_dwordx4 v[44:47], v11, s[{R_WS}:{R_WS+3}], s{S_TMP2} offen sc1")
    g.label("L_noml")
    e(f"s_mov_b64 exec, -1")
    stamp(6)
    e(f"s_cmp_ge_u32 s{S_W}, 4")
    e("s_cbranch_scc1 L_comb_done")
    e(f"v_lshlrev_b32 v12, 4, v{V_TID}")
    e(f"v_lshrrev_b32 v11, 7, v{V_TID}")
    e(f"v_lshlrev_b32 v11, 4, v11")
    e(f"s_mov_b32 s{S_CNT}, {SPIN}")
    g.label("L_poll2")
    e(f"s_mov_b32 s{S_TMP2}, s{S_TMP}")
    for s_ in range(4):
        e(f"buffer_load_dwordx4 v[{72+4*s_}:{75+4*s_}], v12, s[{R_WS}:{R_WS+3}], s{S_TMP2} offen offset:64 sc1")
        e(f"buffer_load_dwordx4 v[{88+4*s_}:{91+4*s_}], v11, s[{R_WS}:{R_WS+3}], s{S_TMP2} offen sc1")
        if s_ < 3:
            e(f"s_add_u32 s{S_TMP2}, s{S_TMP2}, 8192")
    e("s_waitcnt vmcnt(0)")
    tagcheck(72, 16)
    pollend("L_poll2")
    stamp(7)
    e("v_max3_f32 v13, v88, v92, v96")
    e("v_max_f32 v13, v13, v100")
    for s_ in range(4):
        e(f"v_sub_f32 v{88+4*s_}, v{88+4*s_}, v13")
    for s_ in range(4):
        e(f"v_exp_f32 v{88+4*s_}, v{88+4*s_}")
    g.nop(1)
    e("v_mul_f32 v14, v88, v90")
    e("v_mul_f32 v15, v88, v72")
    e("v_mul_f32 v13, v88, v74")
    for s_ in range(1, 4):
        e(f"v_fmac_f32 v14, v{88+4*s_}, v{90+4*s_}")
        e(f"v_fmac_f32 v15, v{88+4*s_}, v{72+4*s_}")
        e(f"v_fmac_f32 v13, v{88+4*s_}, v{74+4*s_}")
    e("v_rcp_f32 v14, v14")
    g.nop(1)
    e("v_mul_f32 v15, v15, v14")
    e("v_mul_f32 v13, v13, v14")
    e("v_cvt_pk_bf16_f32 v15, v15, v13")
    e(f"v_lshlrev_b32 v13, 2, v{V_TID}")
    e(f"ds_write_b32 v13, v15 offset:{L_OB}")
    e("s_waitcnt lgkmcnt(0)")
    g.label("L_comb_done")
    e("s_barrier")
    e(f"v_lshrrev_b32 v10, 4, v{V_LANE}")
    e(f"s_lshl_b32 s{S_TMP}, s{S_W}, 7")
    e(f"v_lshlrev_b32 v12, 5, v10")
    e(f"v_add_u32 v12, s{S_TMP}, v12")
    e(f"ds_read_b128 v[40:43], v12 offset:{L_OB}")
    e(f"ds_read_b128 v[44:47], v12 offset:{L_OB+16}")
    e("s_waitcnt lgkmcnt(0)")
    for i in range(16):
        sel = S_SELO if (i & 1) else S_SELE
        bb = 48 + 4 * (i & 1)
        e(f"v_perm_b32 v60, v{40+(i>>1)}, v{40+(i>>1)}, s{sel}")
        for t in range(4):
            e(f"v_and_b32 v{bb+t}, v60, v{V_M+t}")
        g.nop(2)
        csrc = "0" if i == 0 else vr(QA, 4)
        e(f"v_mfma_f32_16x16x32_bf16 {vr(QA,4)}, {vr(V_WO+4*i,4)}, {vr(bb,4)}, {csrc}")
    e(f"v_and_b32 v12, 7, v{V_LANE}")
    e(f"v_lshlrev_b32 v12, 2, v12")
    e(f"v_lshl_add_u32 v12, v10, 7, v12")
    e(f"s_lshl_b32 s{S_TMP}, s{S_W}, 9")
    e(f"v_add_u32 v12, s{S_TMP}, v12")
    g.nop(8)
    for r in range(4):
        e(f"ds_write_b32 v12, v{QA+r} offset:{L_QP + r*32}")
    e("s_waitcnt lgkmcnt(0)")
    e("s_barrier")
    e(f"s_cmp_ge_u32 s{S_W}, 2")
    e("s_cbranch_scc1 L_end")
    e(f"v_cmp_gt_u32 vcc, s{S_NC}, v{V_TID}")
    e(f"s_and_saveexec_b64 s[{S_EX}:{S_EX+1}], vcc")
    e("s_cbranch_execz L_end")
    e(f"v_lshlrev_b32 v12, 2, v{V_TID}")
    for w in range(8):
        e(f"ds_read_b32 v{40+w}, v12 offset:{L_QP + w*512}")
    e("s_waitcnt lgkmcnt(0)")
    for w in range(1, 8):
        e(f"v_add_f32 v40, v40, v{40+w}")
    e(f"v_mov_b32 v41, v{V_TAG}")
    e(f"s_lshl_b32 s{S_TMP}, s{S_FIN}, 13")
    e(f"s_add_u32 s{S_TMP}, s{S_TMP}, {WS_F}")
    e(f"s_lshl_b32 s{S_TMP2}, s{S_KVH}, 10")
    e(f"s_add_u32 s{S_TMP2}, s{S_TMP2}, s{S_TMP}")
    e(f"v_lshlrev_b32 v12, 3, v{V_TID}")
    e(f"buffer_store_dwordx2 v[40:41], v12, s[{R_WS}:{R_WS+3}], s{S_TMP2} offen sc1")
    stamp(8)
    e(f"s_cmp_lg_u32 s{S_KVH}, s{S_KVR}")
    e("s_cbranch_scc1 L_end")
    e(f"v_lshrrev_b32 v12, 1, v{V_TID}")
    e(f"v_lshlrev_b32 v12, 4, v12")
    e(f"s_add_u32 s{S_TMP2}, s{S_TMP}, 4096")
    e(f"s_mov_b32 s{S_CNT}, {SPIN}")
    g.label("L_poll3")
    for k in range(8):
        so = S_TMP if k < 4 else S_TMP2
        e(f"buffer_load_dwordx4 v[{72+4*k}:{75+4*k}], v12, s[{R_WS}:{R_WS+3}], s{so} offen offset:{(k&3)*1024} sc1")
    e("s_waitcnt vmcnt(0)")
    tagcheck(72, 16)
    pollend("L_poll3")
    e(f"v_and_b32 v13, 1, v{V_TID}")
    e(f"v_cmp_eq_u32 vcc, 1, v13")
    g.nop(2)
    for k in range(8):
        e(f"v_cndmask_b32 v{72+4*k}, v{72+4*k}, v{74+4*k}, vcc")
    for k in range(1, 8):
        e(f"v_add_f32 v72, v72, v{72+4*k}")
    e("v_cvt_pk_bf16_f32 v40, v72, v72")
    e(f"s_mul_i32 s{S_TMP}, s{S_B}, 1792")
    e(f"s_mul_i32 s{S_TMP2}, s{S_AB}, 896")
    e(f"s_add_u32 s{S_TMP}, s{S_TMP}, s{S_TMP2}")
    e(f"s_lshl_b32 s{S_TMP2}, s{S_S}, 8")
    e(f"s_add_u32 s{S_TMP}, s{S_TMP}, s{S_TMP2}")
    e(f"v_lshlrev_b32 v12, 1, v{V_TID}")
    e(f"buffer_store_short v40, v12, s[{R_OUT}:{R_OUT+3}], s{S_TMP} offen")
    stamp(9)
    e(f"s_or_b32 s{S_TMP}, s{S_S}, s{S_W}")
    e(f"s_cmp_lg_u32 s{S_TMP}, 0")
    e("s_cbranch_scc1 L_end")
    e(f"s_lshr_b32 s{S_TMP}, s2, 5")
    e(f"s_lshl_b32 s{S_TMP}, s{S_TMP}, 7")
    e(f"v_mov_b32 v12, s{S_TMP}")
    e(f"v_mov_b32 v40, s{S_E}")
    e(f"v_mov_b32 v41, s{S_E+1}")
    e("s_mov_b64 exec, 1")
    e(f"buffer_store_dwordx2 v[40:41], v12, s[{R_WS}:{R_WS+3}], 0 offen offset:{WS_E} sc1")
    g.label("L_end")
    e("s_endpgm")
    g.l.append('.section .rodata,"a"')
    g.l.append(".p2align 6")
    g.l.append(f".amdhsa_kernel {KN}")
    g.l.append("  .amdhsa_next_free_vgpr 256")
    g.l.append("  .amdhsa_next_free_sgpr 102")
    g.l.append("  .amdhsa_accum_offset 256")
    g.l.append("  .amdhsa_group_segment_fixed_size 0")
    g.l.append("  .amdhsa_kernarg_size 104")
    g.l.append("  .amdhsa_user_sgpr_count 2")
    g.l.append("  .amdhsa_user_sgpr_kernarg_segment_ptr 1")
    g.l.append("  .amdhsa_system_sgpr_workgroup_id_x 1")
    g.l.append(".end_amdhsa_kernel")
    return "\n".join(g.l) + "\n"


if __name__ == "__main__":
    out = sys.argv[1]
    opt = {}
    for a in sys.argv[2:]:
        k, v = a.split("=")
        opt[k] = int(v, 0)
    open(out, "w").write(gen(opt))
```

```python
import sys
from gen import G, vr, HEADER, KN

WS_E = 0x0
WS_Q = 0x4000
WS_F = 0x40000
WS_P = 0x100000
WS_T = 0x400000
WS_C = 0x800000
WS_SIZE = 0x1000000

L_QP = 0
L_Q = 4096
L_ML = 5120
L_TK = 5248
L_OB = 5376
L_O = 8192
LDS_MIN = 8192 + 16384

S_X, S_K, S_V, S_WQ, S_WO = 4, 6, 8, 10, 12
S_OUT, S_DBG, S_WS = 44, 46, 48
S_KVH, S_S, S_B, S_AB, S_W, S_GRP = 14, 15, 16, 17, 18, 19
R_K, R_V, R_W, R_X, R_WS, R_OUT = 52, 56, 60, 68, 72, 80
S_T0 = 84
S_CNT = 88
S_TMP, S_TMP2, S_TMP3 = 89, 90, 91
S_C = 92
S_SELE, S_SELO = 93, 94
S_EX = 96
S_KVR = 3
S_ST = 64
S_FIN = 50
S_TA, S_TB = 76, 77
S_E = 78
S_CUR, S_NXT = 98, 99
S_N2 = 51
S_SA = 100
S_PEND = 101
S_CB = 66
S_ROT = 42
S_NC = 20
S_RDY = 21
S_VM = 22
R_WO = 36
S_SB = 43

V_TID, V_LANE, V_KOFF, V_VOFF = 0, 1, 2, 3
V_M = 4
V_MC, V_L = 8, 9
V_Q = 16
V_ACC = 24
V_P = 32
V_TK, V_TKA, V_ONE, V_WOFF = 36, 37, 38, 39
V_S = 40
V_TAG = 61


def gen(opt):
    g = G(opt)
    e, c = g.e, g.c
    NG = 4
    NT = " nt" if opt.get("nt", 1) else ""
    NTW = " nt" if opt.get("ntw", 0) else ""
    stamps = opt.get("stamps", 0)
    pre = opt.get("pre", 8)
    spread = opt.get("spread", 1)
    SW = opt.get("sw", 96)
    cstride = opt.get("cstride", 4096)
    lds = max(opt.get("lds", 0), LDS_MIN)
    SPIN = opt.get("spin", 0x20000)
    cpf = opt.get("cpf", 0)
    tile_bytes = NG * 2048
    ntiles = 8192 // (4 * NG)
    V_KR = 72
    V_VR = V_KR + 8 * NG
    V_WO = V_VR + 8 * NG
    V_WQ = 200

    def stamp(idx):
        if not stamps:
            return
        e(f"s_memrealtime s[{S_ST}:{S_ST+1}]")
        e("s_waitcnt lgkmcnt(0)")
        e(f"v_mov_b32 v14, s{S_ST}")
        e(f"v_mov_b32 v15, s{S_ST+1}")
        e(f"v_mov_b32 v13, s95")
        e(f"buffer_store_dwordx2 v[14:15], v13, s[{R_WS}:{R_WS+3}], 0 offen offset:{idx*8}")

    def srd(R, base, off_s, nrec):
        if off_s is None:
            e(f"s_mov_b32 s{R}, s{base}")
            e(f"s_mov_b32 s{R+1}, s{base+1}")
        else:
            e(f"s_add_u32 s{R}, s{base}, {off_s}")
            e(f"s_addc_u32 s{R+1}, s{base+1}, 0")
        e(f"s_mov_b32 s{R+2}, {nrec}")
        e(f"s_mov_b32 s{R+3}, 0x00020000")

    def tagcheck(first_reg, n):
        e(f"v_cmp_ne_u32 vcc, s{S_TA}, v{first_reg+1}")
        for k in range(1, n):
            tg = S_TB if (k & 1) else S_TA
            e(f"v_cmp_ne_u32 s[{S_EX}:{S_EX+1}], s{tg}, v{first_reg+2*k+1}")
            e(f"s_or_b64 vcc, vcc, s[{S_EX}:{S_EX+1}]")

    def pollend(lab):
        e(f"s_sub_u32 s{S_CNT}, s{S_CNT}, 1")
        e(f"s_cbranch_scc1 {lab}_done")
        e("s_cmp_lg_u64 vcc, 0")
        e(f"s_cbranch_scc1 {lab}")
        g.label(f"{lab}_done")

    g.l.append(HEADER.rstrip("\n"))
    g.l.append(f"; @launch grid=(256,1,1) block=(512,1,1) lds={lds}")
    g.l.append('.amdgcn_target "amdgcn-amd-amdhsa--gfx950"')
    g.l.append(".text")
    g.l.append(f".globl {KN}")
    g.l.append(".p2align 8")
    g.l.append(f".type {KN},@function")
    g.l.append(f"{KN}:")
    if stamps:
        e("s_memrealtime s[30:31]")
    e("s_cmp_ge_u32 s2, 256")
    e("s_cbranch_scc1 L_end")
    e("s_load_dwordx8 s[20:27], s[0:1], 0")
    e("s_load_dwordx2 s[28:29], s[0:1], 32")
    e("s_load_dwordx8 s[32:39], s[0:1], 40")
    e("s_load_dwordx2 s[40:41], s[0:1], 72")
    e(f"s_load_dwordx4 s[{S_OUT}:{S_OUT+3}], s[0:1], 80")
    e(f"s_load_dwordx2 s[{S_WS}:{S_WS+1}], s[0:1], 96")
    e(f"v_lshrrev_b32 v10, 6, v0")
    e(f"v_and_b32 v{V_LANE}, 63, v0")
    e(f"v_readfirstlane_b32 s{S_W}, v10")
    e(f"s_lshr_b32 s{S_S}, s2, 3")
    e(f"s_and_b32 s{S_S}, s{S_S}, 3")
    e(f"s_and_b32 s{S_KVH}, s2, 7")
    if spread:
        e(f"s_and_b32 s{S_TMP}, s{S_S}, 1")
        e(f"s_lshr_b32 s{S_TMP2}, s{S_S}, 1")
        e(f"s_lshl_b32 s{S_TMP2}, s{S_TMP2}, 2")
        e(f"s_add_u32 s{S_TMP}, s{S_TMP}, s{S_TMP2}")
        e(f"s_sub_u32 s{S_KVH}, s{S_KVH}, s{S_TMP}")
        e(f"s_and_b32 s{S_KVH}, s{S_KVH}, 7")
    e(f"s_lshr_b32 s{S_B}, s2, 5")
    e(f"s_and_b32 s{S_B}, s{S_B}, 3")
    e(f"s_lshr_b32 s{S_AB}, s2, 7")
    e(f"s_lshr_b32 s{S_TMP}, s2, 5")
    e(f"s_lshl_b32 s{S_GRP}, s{S_TMP}, 3")
    e(f"s_or_b32 s{S_GRP}, s{S_GRP}, s{S_KVH}")
    e(f"s_lshl_b32 s{S_FIN}, s{S_TMP}, 2")
    e(f"s_or_b32 s{S_FIN}, s{S_FIN}, s{S_S}")
    e(f"s_and_b32 s{S_KVR}, s{S_FIN}, 7")
    e(f"s_lshl_b32 s{S_TMP3}, s{S_TMP}, 7")
    e(f"s_mov_b32 s{S_C}, 0x3db8aa3b")
    e(f"s_mov_b32 s{S_SELE}, 0x01000100")
    e(f"s_mov_b32 s{S_SELO}, 0x03020302")
    e(f"v_lshrrev_b32 v10, 4, v{V_LANE}")
    e(f"v_and_b32 v11, 15, v{V_LANE}")
    e(f"v_bfe_u32 v12, v{V_LANE}, 2, 2")
    e(f"v_lshlrev_b32 v12, 9, v12")
    e(f"v_lshl_add_u32 v12, v10, 6, v12")
    e(f"v_and_b32 v13, 3, v{V_LANE}")
    e(f"v_lshl_add_u32 v{V_KOFF}, v13, 4, v12")
    e(f"v_lshlrev_b32 v12, 9, v10")
    e(f"v_lshl_add_u32 v{V_VOFF}, v11, 4, v12")
    e(f"v_and_b32 v12, 1, v{V_LANE}")
    e(f"v_lshlrev_b32 v12, 4, v12")
    e(f"v_mov_b32 v13, 0xffff")
    e(f"v_lshlrev_b32 v13, v12, v13")
    e(f"v_bfe_u32 v12, v{V_LANE}, 1, 2")
    for t in range(4):
        e(f"v_cmp_eq_u32 vcc, {t}, v12")
        g.nop(2)
        e(f"v_cndmask_b32 v{V_M+t}, 0, v13, vcc")
    e("s_waitcnt lgkmcnt(0)")
    e(f"s_add_u32 s{S_ST}, s{S_WS}, s{S_TMP3}")
    e(f"s_addc_u32 s{S_ST+1}, s{S_WS+1}, 0")
    e(f"s_load_dwordx2 s[{S_E}:{S_E+1}], s[{S_ST}:{S_ST+1}], {WS_E}")
    e(f"s_cmp_eq_u32 s{S_AB}, 0")
    for i, dst in enumerate([S_X, S_K, S_V, S_WQ, S_WO]):
        e(f"s_cselect_b64 s[{dst}:{dst+1}], s[{20+2*i}:{21+2*i}], s[{32+2*i}:{33+2*i}]")
    srd(R_X, S_X, None, "3584")
    e(f"s_mul_i32 s{S_TMP}, s{S_W}, {56*8192}")
    e(f"s_lshl_b32 s{S_TMP2}, s{S_KVH}, 10")
    e(f"s_add_u32 s{S_TMP}, s{S_TMP}, s{S_TMP2}")
    e(f"s_lshl_b32 s{S_TMP2}, s{S_S}, 8")
    e(f"s_add_u32 s{S_TMP}, s{S_TMP}, s{S_TMP2}")
    e(f"s_sub_u32 s{S_TMP2}, {448*8192}, s{S_TMP}")
    srd(R_W, S_WQ, f"s{S_TMP}", f"s{S_TMP2}")
    e(f"s_mul_i32 s{S_TMP}, s{S_B}, 896")
    e(f"s_mul_i32 s{S_TMP2}, s{S_W}, 112")
    e(f"s_add_u32 s{S_TMP}, s{S_TMP}, s{S_TMP2}")
    e(f"v_mul_u32_u24 v12, 28, v10")
    e(f"buffer_load_dwordx4 v[40:43], v12, s[{R_X}:{R_X+3}], s{S_TMP} offen")
    e(f"buffer_load_dwordx4 v[44:47], v12, s[{R_X}:{R_X+3}], s{S_TMP} offen offset:16")
    e(f"v_mul_u32_u24 v12, {14*8192//16}, v10")
    e(f"v_add_lshl_u32 v12, v12, v11, 4")
    e(f"s_mov_b32 s{S_TMP}, 0")
    for i in range(14):
        if not opt.get("noq", 0): e(f"buffer_load_dwordx4 {vr(V_WQ+4*i,4)}, v12, s[{R_W}:{R_W+3}], s{S_TMP} offen{NTW}")
        if i < 13:
            e(f"s_add_u32 s{S_TMP}, s{S_TMP}, 8192")
    e(f"s_lshl_b32 s{S_TMP}, s{S_B}, 3")
    e(f"s_or_b32 s{S_TMP}, s{S_TMP}, s{S_KVH}")
    e(f"s_lshl_b32 s{S_TMP}, s{S_TMP}, 22")
    srd(R_K, S_K, f"s{S_TMP}", "0x400000")
    srd(R_V, S_V, f"s{S_TMP}", "0x400000")
    srd(R_WS, S_WS, None, hex(WS_SIZE))
    srd(R_OUT, S_OUT, None, "7168")
    e(f"s_mul_i32 s{S_TMP3}, s{S_GRP}, {cstride}")
    e(f"s_add_u32 s{S_TMP3}, s{S_TMP3}, {WS_C}")
    e(f"s_add_u32 s{S_CB}, s{S_WS}, s{S_TMP3}")
    e(f"s_addc_u32 s{S_CB+1}, s{S_WS+1}, 0")
    if stamps:
        e(f"s_lshl_b32 s95, s2, 11")
        e(f"s_lshl_b32 s{S_TMP}, s{S_W}, 8")
        e(f"s_add_u32 s95, s95, s{S_TMP}")
        e(f"s_add_u32 s95, s95, {WS_T}")
    e(f"v_mov_b32 v{V_TKA}, {L_TK}")
    e(f"v_mov_b32 v{V_ONE}, 1")
    if SW < 128:
        e(f"s_or_b32 s{S_TMP}, s{S_S}, s{S_W}")
        e(f"s_cmp_lg_u32 s{S_TMP}, 0")
        e("s_cbranch_scc1 L_noinit")
        e(f"v_mov_b32 v12, s{S_TMP3}")
        e(f"v_mov_b32 v13, {4*SW}")
        e(f"s_mov_b64 exec, 1")
        e(f"buffer_store_dword v13, v12, s[{R_WS}:{R_WS+3}], 0 offen sc1")
        e(f"s_mov_b64 exec, -1")
        g.label("L_noinit")
    e(f"s_mul_i32 s{S_SB}, s{S_S}, {SW}")
    e(f"s_add_u32 s{S_CUR}, s{S_SB}, s{S_W}")
    LW = opt.get("lw", 8)
    e(f"s_add_u32 s{S_NXT}, s{S_CUR}, {LW}")
    if LW < 8:
        e(f"s_cmp_ge_u32 s{S_W}, {LW}")
        e(f"s_cselect_b32 s{S_CUR}, {ntiles}, s{S_CUR}")
        e(f"s_cselect_b32 s{S_NXT}, {ntiles}, s{S_NXT}")
    e(f"s_mov_b32 s{S_PEND}, 0")

    def set_offsets(sidx):
        e(f"s_lshl_b32 s{S_T0}, s{sidx}, 13")
        e(f"s_add_u32 s{S_T0+1}, s{S_T0}, 4096")

    set_offsets(S_CUR)

    def ld_k(i, h):
        e(f"buffer_load_dwordx4 {vr(V_KR+8*i+4*h,4)}, v{V_KOFF}, s[{R_K}:{R_K+3}], s{S_T0+(i>>1)} offen offset:{(i&1)*2048+h*256}{NT}")

    def ld_v(i, h):
        e(f"buffer_load_dwordx4 {vr(V_VR+8*i+4*h,4)}, v{V_VOFF}, s[{R_V}:{R_V+3}], s{S_T0+(i>>1)} offen offset:{(i&1)*2048+h*256}{NT}")

    def ld_wo(ii, _):
        e(f"s_mov_b32 s{S_TMP2}, {ii*896}")
        e(f"buffer_load_dwordx4 {vr(V_WO+4*ii,4)}, v{V_WOFF}, s[{R_WO}:{R_WO+3}], s{S_TMP2} offen{NTW}")

    peel = opt.get("peel", 1)
    kv = [(ld_k, i, h) for i in range(NG) for h in range(2)] + [(ld_v, i, h) for i in range(NG) for h in range(2)]
    wos = [(ld_wo, ii, 0) for ii in range(16)]
    seq = kv + wos if peel else wos + kv
    e(f"s_lshl_b32 s{S_TMP}, s{S_KVH}, 9")
    e(f"s_lshl_b32 s{S_TMP2}, s{S_W}, 6")
    e(f"s_add_u32 s{S_TMP}, s{S_TMP}, s{S_TMP2}")
    e(f"s_mul_i32 s{S_TMP}, s{S_TMP}, 896")
    e(f"s_lshl_b32 s{S_TMP2}, s{S_S}, 8")
    e(f"s_add_u32 s{S_TMP}, s{S_TMP}, s{S_TMP2}")
    e(f"s_sub_u32 s{S_TMP2}, {4096*896}, s{S_TMP}")
    srd(R_WO, S_WO, f"s{S_TMP}", f"s{S_TMP2}")
    e(f"v_mul_u32_u24 v12, {16*896//16}, v10")
    e(f"v_add_lshl_u32 v12, v12, v11, 4")
    e(f"s_cmp_eq_u32 s{S_S}, 3")
    e(f"s_cselect_b32 s{S_NC}, 64, 128")
    e(f"v_lshlrev_b32 v13, 3, v11")
    e(f"v_cmp_le_u32 vcc, s{S_NC}, v13")
    e(f"v_mov_b32 v13, 0x40000000")
    g.nop(1)
    e(f"v_cndmask_b32 v{V_WOFF}, v12, v13, vcc")
    stamp(0)
    if stamps:
        e(f"v_mov_b32 v14, s30")
        e(f"v_mov_b32 v15, s31")
        e(f"buffer_store_dwordx2 v[14:15], v13, s[{R_WS}:{R_WS+3}], 0 offen offset:80")
    bench = opt.get("bench", 0)
    if bench:
        for f, i, h in kv:
            f(i, h)
        for r in range(8):
            e(f"v_mov_b32 v{V_Q+r}, 0x3f9d3e80")
        e("s_branch L_bench")
    W0 = opt.get("w0", 8)
    STEP = opt.get("step", 4)
    b0 = opt.get("b0", 1)
    if b0:
        e("s_barrier")
    e(f"s_cmp_eq_u32 s{S_W}, 0")
    e("s_cbranch_scc1 L_nopre")
    for f, i, h in seq[:W0]:
        f(i, h)
    g.label("L_nopre")
    e("s_waitcnt lgkmcnt(0)")
    e(f"s_add_u32 s{S_E}, s{S_E}, 1")
    e(f"s_addc_u32 s{S_E+1}, s{S_E+1}, 0")
    e(f"s_mov_b32 s{S_TA}, s{S_E}")
    e(f"s_brev_b32 s{S_TB}, s{S_E}")
    e(f"s_xor_b32 s{S_TB}, s{S_TB}, s{S_E+1}")
    e(f"v_mov_b32 v12, s{S_TA}")
    e(f"v_mov_b32 v13, s{S_TB}")
    e(f"v_and_b32 v14, 1, v{V_LANE}")
    e(f"v_cmp_eq_u32 vcc, 1, v14")
    g.nop(2)
    e(f"v_cndmask_b32 v{V_TAG}, v12, v13, vcc")
    e(f"s_cmp_eq_u32 s{S_W}, 0")
    e("s_cbranch_scc1 L_w0w")
    e(f"s_waitcnt vmcnt({W0})")
    e("s_branch L_qc")
    g.label("L_w0w")
    e(f"s_waitcnt vmcnt(0)")
    g.label("L_qc")
    stamp(1)
    QA = 56
    for i in range(14):
        sel = S_SELO if (i & 1) else S_SELE
        bb = 48 + 4 * (i & 1)
        e(f"v_perm_b32 v60, v{40+(i>>1)}, v{40+(i>>1)}, s{sel}")
        for t in range(4):
            e(f"v_and_b32 v{bb+t}, v60, v{V_M+t}")
        g.nop(2)
        csrc = "0" if i == 0 else vr(QA, 4)
        e(f"v_mfma_f32_16x16x32_bf16 {vr(QA,4)}, {vr(V_WQ+4*i,4)}, {vr(bb,4)}, {csrc}")
    e(f"v_and_b32 v12, 7, v{V_LANE}")
    e(f"v_lshlrev_b32 v12, 2, v12")
    e(f"v_lshl_add_u32 v12, v10, 7, v12")
    e(f"s_lshl_b32 s{S_TMP}, s{S_W}, 9")
    e(f"v_add_u32 v12, s{S_TMP}, v12")
    e(f"v_mov_b32 v13, {2*LW}")
    e(f"v_mov_b32 v14, 0")
    g.nop(6)
    for r in range(4):
        e(f"ds_write_b32 v12, v{QA+r} offset:{L_QP + r*32}")
    e(f"ds_write_b32 v{V_TKA}, v13")
    e(f"ds_write_b32 v{V_TKA}, v14 offset:4")
    e("s_waitcnt lgkmcnt(0)")
    e("s_barrier")
    e(f"s_cmp_lg_u32 s{S_W}, 0")
    e("s_cbranch_scc1 L_paced")
    e(f"v_lshlrev_b32 v12, 3, v{V_LANE}")
    for w in range(8):
        e(f"ds_read_b64 v[{40+2*w}:{41+2*w}], v12 offset:{L_QP + w*512}")
    e("s_waitcnt lgkmcnt(0)")
    for w in range(1, 8):
        e(f"v_add_f32 v40, v40, v{40+2*w}")
        e(f"v_add_f32 v41, v41, v{41+2*w}")
    e(f"v_cvt_pk_bf16_f32 v40, v40, v41")
    e(f"v_mov_b32 v41, v{V_TAG}")
    e(f"s_lshl_b32 s{S_TMP}, s{S_GRP}, 11")
    e(f"s_add_u32 s{S_TMP}, s{S_TMP}, {WS_Q}")
    e(f"s_lshl_b32 s{S_TMP2}, s{S_S}, 9")
    e(f"s_add_u32 s{S_TMP2}, s{S_TMP2}, s{S_TMP}")
    e(f"buffer_store_dwordx2 v[40:41], v12, s[{R_WS}:{R_WS+3}], s{S_TMP2} offen sc1")
    stamp(2)
    e(f"v_lshlrev_b32 v12, 4, v{V_LANE}")
    e(f"s_mov_b32 s{S_CNT}, {SPIN}")
    g.label("L_poll1")
    e(f"buffer_load_dwordx4 v[40:43], v12, s[{R_WS}:{R_WS+3}], s{S_TMP} offen sc1")
    e(f"buffer_load_dwordx4 v[44:47], v12, s[{R_WS}:{R_WS+3}], s{S_TMP} offen offset:1024 sc1")
    e("s_waitcnt vmcnt(0)")
    tagcheck(40, 4)
    pollend("L_poll1")
    e(f"v_mov_b32 v41, v42")
    e(f"v_mov_b32 v45, v46")
    e(f"v_lshlrev_b32 v12, 3, v{V_LANE}")
    e(f"ds_write_b64 v12, v[40:41] offset:{L_Q}")
    e(f"ds_write_b64 v12, v[44:45] offset:{L_Q+512}")
    e("s_waitcnt lgkmcnt(0)")
    e(f"ds_write_b32 v{V_TKA}, v{V_ONE} offset:4")
    stamp(3)
    for f, i, h in seq:
        f(i, h)
    e("s_branch L_go")
    g.label("L_paced")
    e(f"s_mov_b32 s{S_RDY}, 0")

    def chk(lab):
        e(f"s_cmp_lg_u32 s{S_RDY}, 0")
        e(f"s_cbranch_scc1 {lab}")
        e(f"ds_read_b32 v13, v{V_TKA} offset:4")
        e("s_waitcnt lgkmcnt(0)")
        e(f"v_readfirstlane_b32 s{S_RDY}, v13")
        g.nop(4)
        e(f"s_cmp_lg_u32 s{S_RDY}, 0")
        e(f"s_cbranch_scc1 {lab}")
    j = W0
    while j < len(seq):
        chk(f"L_pi{j}")
        e(f"s_waitcnt vmcnt({max(W0-STEP,0)})")
        g.label(f"L_pi{j}")
        for f, i, h in seq[j:j+STEP]:
            f(i, h)
        j += STEP
    e(f"s_mov_b32 s{S_CNT}, {SPIN*16}")
    g.label("L_wflag")
    chk("L_go")
    e(f"s_sub_u32 s{S_CNT}, s{S_CNT}, 1")
    e("s_cbranch_scc0 L_wflag")
    g.label("L_go")
    e(f"v_lshrrev_b32 v12, 3, v11")
    e(f"v_lshlrev_b32 v12, 9, v12")
    e(f"v_lshl_add_u32 v12, v10, 6, v12")
    e(f"v_and_b32 v13, 3, v{V_LANE}")
    e(f"v_lshl_add_u32 v12, v13, 4, v12")
    e(f"ds_read_b128 {vr(V_Q,4)}, v12 offset:{L_Q}")
    e(f"ds_read_b128 {vr(V_Q+4,4)}, v12 offset:{L_Q+256}")
    g.label("L_bench")
    e(f"v_mov_b32 v{V_MC}, 0xff800000")
    e(f"v_mov_b32 v{V_L}, 0")
    for r in range(8):
        e(f"v_mov_b32 v{V_ACC+r}, 0")
    e("s_waitcnt lgkmcnt(0)")
    stamp(4)

    W = 4 * NG - 2

    def tile(first):
        u = g.lab; g.lab += 1
        extra = 16 if (first and not opt.get("bench", 0)) else 0
        for i in range(NG):
            e(f"s_waitcnt vmcnt({W + extra})")
            if i == 0:
                if not first:
                    e(f"s_cmp_eq_u32 s{S_PEND}, 0")
                    e(f"s_cbranch_scc1 L_np{u}")
                    e("s_waitcnt lgkmcnt(0)")
                    e(f"s_mov_b32 s{S_NXT}, s{S_SA}")
                    e(f"s_mov_b32 s{S_PEND}, 0")
                    g.label(f"L_np{u}")
                set_offsets(S_NXT)
                e("s_mov_b64 exec, 1")
                e(f"ds_add_rtn_u32 v{V_TK}, v{V_TKA}, v{V_ONE}")
                e("s_mov_b64 exec, -1")
            e(f"v_mfma_f32_16x16x32_bf16 {vr(V_S+4*i,4)}, {vr(V_KR+8*i,4)}, {vr(V_Q,4)}, 0")
            e(f"v_mfma_f32_16x16x32_bf16 {vr(V_S+4*i,4)}, {vr(V_KR+8*i+4,4)}, {vr(V_Q+4,4)}, {vr(V_S+4*i,4)}")
            ld_k(i, 0); ld_k(i, 1)
        e("s_waitcnt lgkmcnt(0)")
        e(f"v_readfirstlane_b32 s{S_N2}, v{V_TK}")
        g.nop(4)
        e(f"s_cmp_ge_u32 s{S_NXT}, {ntiles}")
        e(f"s_cbranch_scc1 L_inv{u}")
        e(f"s_cmp_ge_u32 s{S_N2}, {SW}")
        e(f"s_cbranch_scc1 L_pool{u}")
        e(f"s_add_u32 s{S_N2}, s{S_N2}, s{S_SB}")
        e(f"s_branch L_tkd{u}")
        g.label(f"L_pool{u}")
        if SW < 128:
            e(f"s_mov_b32 s{S_SA}, 1")
            e(f"s_atomic_add s{S_SA}, s[{S_CB}:{S_CB+1}], 0 glc")
            e(f"s_mov_b32 s{S_PEND}, 1")
            e(f"s_branch L_tkd{u}")
        g.label(f"L_inv{u}")
        e(f"s_mov_b32 s{S_N2}, {ntiles}")
        g.label(f"L_tkd{u}")
        for i in range(NG):
            s = V_S + 4 * i
            p = V_P + i
            e(f"v_mov_b32_dpp v{p}, v{s} quad_perm:[0,0,0,0] row_mask:0xf bank_mask:0xf")
            for k in range(1, 4):
                e(f"v_add_f32_dpp v{p}, v{s+k}, v{p} quad_perm:[{k},{k},{k},{k}] row_mask:0xf bank_mask:0xf")
        e(f"v_max3_f32 v10, v{V_P}, v{V_P+1}, v{V_P+2}")
        e(f"v_max_f32 v10, v10, v{V_P+3}")
        e(f"v_mov_b32 v11, v10")
        g.nop(2)
        e(f"v_permlane32_swap_b32 v10, v11")
        g.nop(1)
        e(f"v_max_f32 v10, v10, v11")
        e(f"v_mov_b32 v11, v10")
        g.nop(2)
        e(f"v_permlane16_swap_b32 v10, v11")
        g.nop(1)
        e(f"v_max_f32 v10, v10, v11")
        e(f"v_mul_f32 v10, s{S_C}, v10")
        e(f"v_max_f32 v10, v10, v{V_MC}")
        e(f"v_sub_f32 v11, v{V_MC}, v10")
        e(f"v_exp_f32 v11, v11")
        e(f"v_mov_b32 v{V_MC}, v10")
        for i in range(NG):
            e(f"v_fma_f32 v{V_P+i}, v{V_P+i}, s{S_C}, -v10")
        for i in range(NG):
            e(f"v_exp_f32 v{V_P+i}, v{V_P+i}")
        for r in range(8):
            e(f"v_mul_f32 v{V_ACC+r}, v{V_ACC+r}, v11")
        e(f"v_mul_f32 v{V_L}, v{V_L}, v11")
        for i in range(NG):
            s = V_S + 4 * i
            e(f"v_cvt_pk_bf16_f32 v12, v{V_P+i}, v{V_P+i}")
            e(f"v_add_f32 v{V_L}, v{V_L}, v{V_P+i}")
            for t in range(4):
                e(f"v_and_b32 v{s+t}, v12, v{V_M+t}")
        g.nop(2)
        for i in range(NG):
            e(f"s_waitcnt vmcnt({W + extra})")
            for h in range(2):
                e(f"v_mfma_f32_16x16x32_bf16 {vr(V_ACC+4*h,4)}, {vr(V_VR+8*i+4*h,4)}, {vr(V_S+4*i,4)}, {vr(V_ACC+4*h,4)}")
            ld_v(i, 0); ld_v(i, 1)
        e(f"s_mov_b32 s{S_CUR}, s{S_NXT}")
        e(f"s_mov_b32 s{S_NXT}, s{S_N2}")

    if LW < 8:
        e(f"s_cmp_ge_u32 s{S_W}, {LW}")
        e("s_cbranch_scc1 L_loopdone")
    if peel:
        tile(True)
    g.l.append(".p2align 6")
    g.label("L_loop")
    tile(False)
    e(f"s_cmp_lt_u32 s{S_CUR}, {ntiles}")
    e("s_cbranch_scc1 L_loop")
    g.label("L_loopdone")
    e("s_waitcnt vmcnt(0) lgkmcnt(0)")
    stamp(5)
    if bench:
        e("s_endpgm")

    e(f"v_lshrrev_b32 v10, 4, v{V_LANE}")
    e(f"v_and_b32 v11, 15, v{V_LANE}")
    e(f"v_mov_b32 v12, v{V_L}")
    g.nop(2)
    e(f"v_permlane32_swap_b32 v{V_L}, v12")
    g.nop(1)
    e(f"v_add_f32 v{V_L}, v{V_L}, v12")
    e(f"v_mov_b32 v12, v{V_L}")
    g.nop(2)
    e(f"v_permlane16_swap_b32 v{V_L}, v12")
    g.nop(1)
    e(f"v_add_f32 v{V_L}, v{V_L}, v12")
    e(f"v_lshrrev_b32 v12, 3, v11")
    e(f"s_lshl_b32 s{S_TMP}, s{S_W}, 4")
    e(f"v_lshlrev_b32 v13, 3, v12")
    e(f"v_add_u32 v13, s{S_TMP}, v13")
    e(f"ds_write_b64 v13, v[{V_MC}:{V_L}] offset:{L_ML}")
    e(f"v_lshlrev_b32 v13, 10, v12")
    e(f"v_lshl_add_u32 v13, v10, 7, v13")
    e(f"v_and_b32 v14, 7, v{V_LANE}")
    e(f"v_lshl_add_u32 v13, v14, 2, v13")
    e(f"s_lshl_b32 s{S_TMP}, s{S_W}, 11")
    e(f"v_add_u32 v13, s{S_TMP}, v13")
    g.nop(8)
    for h in range(2):
        for r in range(4):
            e(f"ds_write_b32 v13, v{V_ACC+4*h+r} offset:{L_O + h*512 + r*32}")
    e("s_waitcnt lgkmcnt(0)")
    e("s_barrier")
    e(f"v_lshrrev_b32 v10, 8, v{V_TID}")
    e(f"v_lshlrev_b32 v11, 3, v10")
    e(f"v_lshlrev_b32 v12, 2, v{V_TID}")
    for w in range(8):
        e(f"ds_read_b64 v[{40+2*w}:{41+2*w}], v11 offset:{L_ML + w*16}")
    for w in range(8):
        e(f"ds_read_b32 v{72+w}, v12 offset:{L_O + w*2048}")
    e("s_waitcnt lgkmcnt(0)")
    e("v_max3_f32 v13, v40, v42, v44")
    e("v_max3_f32 v13, v13, v46, v48")
    e("v_max3_f32 v13, v13, v50, v52")
    e("v_max_f32 v13, v13, v54")
    for w in range(8):
        e(f"v_sub_f32 v{40+2*w}, v{40+2*w}, v13")
    for w in range(8):
        e(f"v_exp_f32 v{40+2*w}, v{40+2*w}")
    g.nop(1)
    e("v_mul_f32 v14, v40, v41")
    e("v_mul_f32 v15, v40, v72")
    for w in range(1, 8):
        e(f"v_fmac_f32 v14, v{40+2*w}, v{41+2*w}")
        e(f"v_fmac_f32 v15, v{40+2*w}, v{72+w}")
    e(f"s_lshl_b32 s{S_TMP}, s{S_GRP}, 15")
    e(f"s_add_u32 s{S_TMP}, s{S_TMP}, {WS_P}")
    e(f"s_lshl_b32 s{S_TMP2}, s{S_S}, 13")
    e(f"s_add_u32 s{S_TMP2}, s{S_TMP2}, s{S_TMP}")
    e(f"v_mov_b32 v40, v15")
    e(f"v_mov_b32 v41, v{V_TAG}")
    e(f"v_lshlrev_b32 v12, 3, v{V_TID}")
    e(f"buffer_store_dwordx2 v[40:41], v12, s[{R_WS}:{R_WS+3}], s{S_TMP2} offen offset:64 sc1")
    e(f"v_mov_b32 v44, v13")
    e(f"v_mov_b32 v45, s{S_TA}")
    e(f"v_mov_b32 v46, v14")
    e(f"v_mov_b32 v47, s{S_TB}")
    e(f"v_lshlrev_b32 v11, 4, v10")
    e(f"v_and_b32 v13, 255, v{V_TID}")
    e(f"v_cmp_eq_u32 vcc, 0, v13")
    e(f"s_and_saveexec_b64 s[{S_EX}:{S_EX+1}], vcc")
    e("s_cbranch_execz L_noml")
    e(f"buffer_store_dwordx4 v[44:47], v11, s[{R_WS}:{R_WS+3}], s{S_TMP2} offen sc1")
    g.label("L_noml")
    e(f"s_mov_b64 exec, -1")
    stamp(6)
    e(f"s_cmp_ge_u32 s{S_W}, 4")
    e("s_cbranch_scc1 L_comb_done")
    e(f"v_lshlrev_b32 v12, 4, v{V_TID}")
    e(f"v_lshrrev_b32 v11, 7, v{V_TID}")
    e(f"v_lshlrev_b32 v11, 4, v11")
    e(f"s_mov_b32 s{S_CNT}, {SPIN}")
    e(f"s_mov_b32 s{S_VM}, 0")
    g.label("L_poll2")
    for s_ in range(4):
        e(f"s_bitcmp1_b32 s{S_VM}, {s_}")
        e(f"s_cbranch_scc1 L_p2s{s_}")
        e(f"s_add_u32 s{S_TMP2}, s{S_TMP}, {8192*s_}")
        e(f"buffer_load_dwordx4 v[{72+8*s_}:{75+8*s_}], v12, s[{R_WS}:{R_WS+3}], s{S_TMP2} offen offset:64 sc1")
        e(f"buffer_load_dwordx4 v[{76+8*s_}:{79+8*s_}], v11, s[{R_WS}:{R_WS+3}], s{S_TMP2} offen sc1")
        g.label(f"L_p2s{s_}")
    e("s_waitcnt vmcnt(0)")
    for s_ in range(4):
        tagcheck(72+8*s_, 4)
        e("s_cmp_eq_u64 vcc, 0")
        e(f"s_cselect_b32 s{S_TMP2}, {1<<s_}, 0")
        e(f"s_or_b32 s{S_VM}, s{S_VM}, s{S_TMP2}")
    e(f"s_sub_u32 s{S_CNT}, s{S_CNT}, 1")
    e("s_cbranch_scc1 L_poll2_done")
    e(f"s_cmp_lg_u32 s{S_VM}, 15")
    e("s_cbranch_scc1 L_poll2")
    g.label("L_poll2_done")
    stamp(7)
    e("v_max3_f32 v13, v76, v84, v92")
    e("v_max_f32 v13, v13, v100")
    for s_ in range(4):
        e(f"v_sub_f32 v{76+8*s_}, v{76+8*s_}, v13")
    for s_ in range(4):
        e(f"v_exp_f32 v{76+8*s_}, v{76+8*s_}")
    g.nop(1)
    e("v_mul_f32 v14, v76, v78")
    e("v_mul_f32 v15, v76, v72")
    e("v_mul_f32 v13, v76, v74")
    for s_ in range(1, 4):
        e(f"v_fmac_f32 v14, v{76+8*s_}, v{78+8*s_}")
        e(f"v_fmac_f32 v15, v{76+8*s_}, v{72+8*s_}")
        e(f"v_fmac_f32 v13, v{76+8*s_}, v{74+8*s_}")
    e("v_rcp_f32 v14, v14")
    g.nop(1)
    e("v_mul_f32 v15, v15, v14")
    e("v_mul_f32 v13, v13, v14")
    e("v_cvt_pk_bf16_f32 v15, v15, v13")
    e(f"v_lshlrev_b32 v13, 2, v{V_TID}")
    e(f"ds_write_b32 v13, v15 offset:{L_OB}")
    e("s_waitcnt lgkmcnt(0)")
    g.label("L_comb_done")
    e("s_barrier")
    e(f"v_lshrrev_b32 v10, 4, v{V_LANE}")
    e(f"s_lshl_b32 s{S_TMP}, s{S_W}, 7")
    e(f"v_lshlrev_b32 v12, 5, v10")
    e(f"v_add_u32 v12, s{S_TMP}, v12")
    e(f"ds_read_b128 v[40:43], v12 offset:{L_OB}")
    e(f"ds_read_b128 v[44:47], v12 offset:{L_OB+16}")
    e("s_waitcnt lgkmcnt(0)")
    for i in range(16):
        sel = S_SELO if (i & 1) else S_SELE
        bb = 48 + 4 * (i & 1)
        e(f"v_perm_b32 v60, v{40+(i>>1)}, v{40+(i>>1)}, s{sel}")
        for t in range(4):
            e(f"v_and_b32 v{bb+t}, v60, v{V_M+t}")
        g.nop(2)
        csrc = "0" if i == 0 else vr(QA, 4)
        e(f"v_mfma_f32_16x16x32_bf16 {vr(QA,4)}, {vr(V_WO+4*i,4)}, {vr(bb,4)}, {csrc}")
    e(f"v_and_b32 v12, 7, v{V_LANE}")
    e(f"v_lshlrev_b32 v12, 2, v12")
    e(f"v_lshl_add_u32 v12, v10, 7, v12")
    e(f"s_lshl_b32 s{S_TMP}, s{S_W}, 9")
    e(f"v_add_u32 v12, s{S_TMP}, v12")
    g.nop(8)
    for r in range(4):
        e(f"ds_write_b32 v12, v{QA+r} offset:{L_QP + r*32}")
    e("s_waitcnt lgkmcnt(0)")
    e("s_barrier")
    e(f"s_cmp_ge_u32 s{S_W}, 2")
    e("s_cbranch_scc1 L_end")
    e(f"v_cmp_gt_u32 vcc, s{S_NC}, v{V_TID}")
    e(f"s_and_saveexec_b64 s[{S_EX}:{S_EX+1}], vcc")
    e("s_cbranch_execz L_end")
    e(f"v_lshlrev_b32 v12, 2, v{V_TID}")
    for w in range(8):
        e(f"ds_read_b32 v{40+w}, v12 offset:{L_QP + w*512}")
    e("s_waitcnt lgkmcnt(0)")
    for w in range(1, 8):
        e(f"v_add_f32 v40, v40, v{40+w}")
    e(f"v_mov_b32 v41, v{V_TAG}")
    e(f"s_lshl_b32 s{S_TMP}, s{S_FIN}, 13")
    e(f"s_add_u32 s{S_TMP}, s{S_TMP}, {WS_F}")
    e(f"s_lshl_b32 s{S_TMP2}, s{S_KVH}, 10")
    e(f"s_add_u32 s{S_TMP2}, s{S_TMP2}, s{S_TMP}")
    e(f"v_lshlrev_b32 v12, 3, v{V_TID}")
    e(f"buffer_store_dwordx2 v[40:41], v12, s[{R_WS}:{R_WS+3}], s{S_TMP2} offen sc1")
    stamp(8)
    e(f"s_cmp_lg_u32 s{S_KVH}, s{S_KVR}")
    e("s_cbranch_scc1 L_end")
    e(f"v_lshrrev_b32 v12, 1, v{V_TID}")
    e(f"v_lshlrev_b32 v12, 4, v12")
    e(f"s_add_u32 s{S_TMP2}, s{S_TMP}, 4096")
    e(f"s_mov_b32 s{S_CNT}, {SPIN}")
    g.label("L_poll3")
    for k in range(8):
        so = S_TMP if k < 4 else S_TMP2
        e(f"buffer_load_dwordx4 v[{72+4*k}:{75+4*k}], v12, s[{R_WS}:{R_WS+3}], s{so} offen offset:{(k&3)*1024} sc1")
    e("s_waitcnt vmcnt(0)")
    tagcheck(72, 16)
    pollend("L_poll3")
    e(f"v_and_b32 v13, 1, v{V_TID}")
    e(f"v_cmp_eq_u32 vcc, 1, v13")
    g.nop(2)
    for k in range(8):
        e(f"v_cndmask_b32 v{72+4*k}, v{72+4*k}, v{74+4*k}, vcc")
    for k in range(1, 8):
        e(f"v_add_f32 v72, v72, v{72+4*k}")
    e("v_cvt_pk_bf16_f32 v40, v72, v72")
    e(f"s_mul_i32 s{S_TMP}, s{S_B}, 1792")
    e(f"s_mul_i32 s{S_TMP2}, s{S_AB}, 896")
    e(f"s_add_u32 s{S_TMP}, s{S_TMP}, s{S_TMP2}")
    e(f"s_lshl_b32 s{S_TMP2}, s{S_S}, 8")
    e(f"s_add_u32 s{S_TMP}, s{S_TMP}, s{S_TMP2}")
    e(f"v_lshlrev_b32 v12, 1, v{V_TID}")
    e(f"buffer_store_short v40, v12, s[{R_OUT}:{R_OUT+3}], s{S_TMP} offen")
    stamp(9)
    e(f"s_or_b32 s{S_TMP}, s{S_S}, s{S_W}")
    e(f"s_cmp_lg_u32 s{S_TMP}, 0")
    e("s_cbranch_scc1 L_end")
    e(f"s_lshr_b32 s{S_TMP}, s2, 5")
    e(f"s_lshl_b32 s{S_TMP}, s{S_TMP}, 7")
    e(f"v_mov_b32 v12, s{S_TMP}")
    e(f"v_mov_b32 v40, s{S_E}")
    e(f"v_mov_b32 v41, s{S_E+1}")
    e("s_mov_b64 exec, 1")
    e(f"buffer_store_dwordx2 v[40:41], v12, s[{R_WS}:{R_WS+3}], 0 offen offset:{WS_E} sc1")
    g.label("L_end")
    e("s_endpgm")
    g.l.append('.section .rodata,"a"')
    g.l.append(".p2align 6")
    g.l.append(f".amdhsa_kernel {KN}")
    g.l.append("  .amdhsa_next_free_vgpr 256")
    g.l.append("  .amdhsa_next_free_sgpr 102")
    g.l.append("  .amdhsa_accum_offset 256")
    g.l.append("  .amdhsa_group_segment_fixed_size 0")
    g.l.append("  .amdhsa_kernarg_size 104")
    g.l.append("  .amdhsa_user_sgpr_count 2")
    g.l.append("  .amdhsa_user_sgpr_kernarg_segment_ptr 1")
    g.l.append("  .amdhsa_system_sgpr_workgroup_id_x 1")
    g.l.append(".end_amdhsa_kernel")
    return "\n".join(g.l) + "\n"


if __name__ == "__main__":
    out = sys.argv[1]
    opt = {}
    for a in sys.argv[2:]:
        k, v = a.split("=")
        opt[k] = int(v, 0)
    open(out, "w").write(gen(opt))
```

```python
import sys
from gen import G, vr, HEADER, KN

WS_E = 0x0
WS_Q = 0x4000
WS_F = 0x40000
WS_P = 0x100000
WS_T = 0x400000
WS_C = 0x800000
WS_SIZE = 0x1000000

L_QP = 0
L_Q = 4096
L_ML = 5120
L_TK = 5248
L_OB = 5376
L_O = 8192
LDS_MIN = 8192 + 16384

S_X, S_K, S_V, S_WQ, S_WO = 4, 6, 8, 10, 12
S_OUT, S_DBG, S_WS = 44, 46, 48
S_KVH, S_S, S_B, S_AB, S_W, S_GRP = 14, 15, 16, 17, 18, 19
R_K, R_V, R_W, R_X, R_WS, R_OUT = 52, 56, 60, 68, 72, 80
S_T0 = 84
S_CNT = 88
S_TMP, S_TMP2, S_TMP3 = 89, 90, 91
S_C = 92
S_SELE, S_SELO = 93, 94
S_EX = 96
S_KVR = 3
S_ST = 64
S_FIN = 50
S_TA, S_TB = 76, 77
S_E = 78
S_CUR, S_NXT = 98, 99
S_N2 = 51
S_SA = 100
S_PEND = 101
S_CB = 66
S_ROT = 42
S_NC = 20
S_RDY = 21
S_VM = 22
R_WO = 36
S_SB = 43

V_TID, V_LANE, V_KOFF, V_VOFF = 0, 1, 2, 3
V_M = 4
V_MC, V_L = 8, 9
V_Q = 16
V_ACC = 24
V_P = 32
V_TK, V_TKA, V_ONE, V_WOFF = 36, 37, 38, 39
V_S = 40
V_TAG = 61


def gen(opt):
    g = G(opt)
    e, c = g.e, g.c
    NG = 4
    NT = " nt" if opt.get("nt", 1) else ""
    NTW = " nt" if opt.get("ntw", 0) else ""
    stamps = opt.get("stamps", 0)
    pre = opt.get("pre", 8)
    spread = opt.get("spread", 1)
    SW = opt.get("sw", 96)
    cstride = opt.get("cstride", 4096)
    lds = max(opt.get("lds", 0), LDS_MIN)
    SPIN = opt.get("spin", 0x20000)
    cpf = opt.get("cpf", 0)
    tile_bytes = NG * 2048
    ntiles = 8192 // (4 * NG)
    V_KR = 72
    V_VR = V_KR + 8 * NG
    V_WO = V_VR + 8 * NG
    V_WQ = 200

    def stamp(idx):
        if not stamps:
            return
        e(f"s_memrealtime s[{S_ST}:{S_ST+1}]")
        e("s_waitcnt lgkmcnt(0)")
        e(f"v_mov_b32 v14, s{S_ST}")
        e(f"v_mov_b32 v15, s{S_ST+1}")
        e(f"v_mov_b32 v13, s95")
        e(f"buffer_store_dwordx2 v[14:15], v13, s[{R_WS}:{R_WS+3}], 0 offen offset:{idx*8}")

    def srd(R, base, off_s, nrec):
        if off_s is None:
            e(f"s_mov_b32 s{R}, s{base}")
            e(f"s_mov_b32 s{R+1}, s{base+1}")
        else:
            e(f"s_add_u32 s{R}, s{base}, {off_s}")
            e(f"s_addc_u32 s{R+1}, s{base+1}, 0")
        e(f"s_mov_b32 s{R+2}, {nrec}")
        e(f"s_mov_b32 s{R+3}, 0x00020000")

    def tagcheck(first_reg, n):
        e(f"v_cmp_ne_u32 vcc, s{S_TA}, v{first_reg+1}")
        for k in range(1, n):
            tg = S_TB if (k & 1) else S_TA
            e(f"v_cmp_ne_u32 s[{S_EX}:{S_EX+1}], s{tg}, v{first_reg+2*k+1}")
            e(f"s_or_b64 vcc, vcc, s[{S_EX}:{S_EX+1}]")

    def pollend(lab):
        e(f"s_sub_u32 s{S_CNT}, s{S_CNT}, 1")
        e(f"s_cbranch_scc1 {lab}_done")
        e("s_cmp_lg_u64 vcc, 0")
        e(f"s_cbranch_scc1 {lab}")
        g.label(f"{lab}_done")

    g.l.append(HEADER.rstrip("\n"))
    g.l.append(f"; @launch grid=(256,1,1) block=(512,1,1) lds={lds}")
    g.l.append('.amdgcn_target "amdgcn-amd-amdhsa--gfx950"')
    g.l.append(".text")
    g.l.append(f".globl {KN}")
    g.l.append(".p2align 8")
    g.l.append(f".type {KN},@function")
    g.l.append(f"{KN}:")
    if stamps:
        e("s_memrealtime s[30:31]")
    e("s_cmp_ge_u32 s2, 256")
    e("s_cbranch_scc1 L_end")
    e("s_load_dwordx8 s[20:27], s[0:1], 0")
    e("s_load_dwordx2 s[28:29], s[0:1], 32")
    e("s_load_dwordx8 s[32:39], s[0:1], 40")
    e("s_load_dwordx2 s[40:41], s[0:1], 72")
    e(f"s_load_dwordx4 s[{S_OUT}:{S_OUT+3}], s[0:1], 80")
    e(f"s_load_dwordx2 s[{S_WS}:{S_WS+1}], s[0:1], 96")
    e(f"v_lshrrev_b32 v10, 6, v0")
    e(f"v_and_b32 v{V_LANE}, 63, v0")
    e(f"v_readfirstlane_b32 s{S_W}, v10")
    e(f"s_lshr_b32 s{S_S}, s2, 3")
    e(f"s_and_b32 s{S_S}, s{S_S}, 3")
    e(f"s_and_b32 s{S_KVH}, s2, 7")
    if spread:
        e(f"s_and_b32 s{S_TMP}, s{S_S}, 1")
        e(f"s_lshr_b32 s{S_TMP2}, s{S_S}, 1")
        e(f"s_lshl_b32 s{S_TMP2}, s{S_TMP2}, 2")
        e(f"s_add_u32 s{S_TMP}, s{S_TMP}, s{S_TMP2}")
        e(f"s_sub_u32 s{S_KVH}, s{S_KVH}, s{S_TMP}")
        e(f"s_and_b32 s{S_KVH}, s{S_KVH}, 7")
    e(f"s_lshr_b32 s{S_B}, s2, 5")
    e(f"s_and_b32 s{S_B}, s{S_B}, 3")
    e(f"s_lshr_b32 s{S_AB}, s2, 7")
    e(f"s_lshr_b32 s{S_TMP}, s2, 5")
    e(f"s_lshl_b32 s{S_GRP}, s{S_TMP}, 3")
    e(f"s_or_b32 s{S_GRP}, s{S_GRP}, s{S_KVH}")
    e(f"s_lshl_b32 s{S_FIN}, s{S_TMP}, 2")
    e(f"s_or_b32 s{S_FIN}, s{S_FIN}, s{S_S}")
    e(f"s_and_b32 s{S_KVR}, s{S_FIN}, 7")
    e(f"s_lshl_b32 s{S_TMP3}, s{S_TMP}, 7")
    e(f"s_mov_b32 s{S_C}, 0x3db8aa3b")
    e(f"s_mov_b32 s{S_SELE}, 0x01000100")
    e(f"s_mov_b32 s{S_SELO}, 0x03020302")
    e(f"v_lshrrev_b32 v10, 4, v{V_LANE}")
    e(f"v_and_b32 v11, 15, v{V_LANE}")
    e(f"v_bfe_u32 v12, v{V_LANE}, 2, 2")
    e(f"v_lshlrev_b32 v12, 9, v12")
    e(f"v_lshl_add_u32 v12, v10, 6, v12")
    e(f"v_and_b32 v13, 3, v{V_LANE}")
    e(f"v_lshl_add_u32 v{V_KOFF}, v13, 4, v12")
    e(f"v_lshlrev_b32 v12, 9, v10")
    e(f"v_lshl_add_u32 v{V_VOFF}, v11, 4, v12")
    e(f"v_and_b32 v12, 1, v{V_LANE}")
    e(f"v_lshlrev_b32 v12, 4, v12")
    e(f"v_mov_b32 v13, 0xffff")
    e(f"v_lshlrev_b32 v13, v12, v13")
    e(f"v_bfe_u32 v12, v{V_LANE}, 1, 2")
    for t in range(4):
        e(f"v_cmp_eq_u32 vcc, {t}, v12")
        g.nop(2)
        e(f"v_cndmask_b32 v{V_M+t}, 0, v13, vcc")
    e("s_waitcnt lgkmcnt(0)")
    e(f"s_add_u32 s{S_ST}, s{S_WS}, s{S_TMP3}")
    e(f"s_addc_u32 s{S_ST+1}, s{S_WS+1}, 0")
    e(f"s_load_dwordx2 s[{S_E}:{S_E+1}], s[{S_ST}:{S_ST+1}], {WS_E}")
    e(f"s_cmp_eq_u32 s{S_AB}, 0")
    for i, dst in enumerate([S_X, S_K, S_V, S_WQ, S_WO]):
        e(f"s_cselect_b64 s[{dst}:{dst+1}], s[{20+2*i}:{21+2*i}], s[{32+2*i}:{33+2*i}]")
    srd(R_X, S_X, None, "3584")
    e(f"s_mul_i32 s{S_TMP}, s{S_W}, {56*8192}")
    e(f"s_lshl_b32 s{S_TMP2}, s{S_KVH}, 10")
    e(f"s_add_u32 s{S_TMP}, s{S_TMP}, s{S_TMP2}")
    e(f"s_lshl_b32 s{S_TMP2}, s{S_S}, 8")
    e(f"s_add_u32 s{S_TMP}, s{S_TMP}, s{S_TMP2}")
    e(f"s_sub_u32 s{S_TMP2}, {448*8192}, s{S_TMP}")
    srd(R_W, S_WQ, f"s{S_TMP}", f"s{S_TMP2}")
    e(f"s_mul_i32 s{S_TMP}, s{S_B}, 896")
    e(f"s_mul_i32 s{S_TMP2}, s{S_W}, 112")
    e(f"s_add_u32 s{S_TMP}, s{S_TMP}, s{S_TMP2}")
    e(f"v_mul_u32_u24 v12, 28, v10")
    e(f"buffer_load_dwordx4 v[40:43], v12, s[{R_X}:{R_X+3}], s{S_TMP} offen")
    e(f"buffer_load_dwordx4 v[44:47], v12, s[{R_X}:{R_X+3}], s{S_TMP} offen offset:16")
    e(f"v_mul_u32_u24 v12, {14*8192//16}, v10")
    e(f"v_add_lshl_u32 v12, v12, v11, 4")
    e(f"s_mov_b32 s{S_TMP}, 0")
    for i in range(14):
        if not opt.get("noq", 0): e(f"buffer_load_dwordx4 {vr(V_WQ+4*i,4)}, v12, s[{R_W}:{R_W+3}], s{S_TMP} offen{NTW}")
        if i < 13:
            e(f"s_add_u32 s{S_TMP}, s{S_TMP}, 8192")
    e(f"s_lshl_b32 s{S_TMP}, s{S_B}, 3")
    e(f"s_or_b32 s{S_TMP}, s{S_TMP}, s{S_KVH}")
    e(f"s_lshl_b32 s{S_TMP}, s{S_TMP}, 22")
    srd(R_K, S_K, f"s{S_TMP}", "0x400000")
    srd(R_V, S_V, f"s{S_TMP}", "0x400000")
    srd(R_WS, S_WS, None, hex(WS_SIZE))
    srd(R_OUT, S_OUT, None, "7168")
    e(f"s_mul_i32 s{S_TMP3}, s{S_GRP}, {cstride}")
    e(f"s_add_u32 s{S_TMP3}, s{S_TMP3}, {WS_C}")
    e(f"s_add_u32 s{S_CB}, s{S_WS}, s{S_TMP3}")
    e(f"s_addc_u32 s{S_CB+1}, s{S_WS+1}, 0")
    if stamps:
        e(f"s_lshl_b32 s95, s2, 11")
        e(f"s_lshl_b32 s{S_TMP}, s{S_W}, 8")
        e(f"s_add_u32 s95, s95, s{S_TMP}")
        e(f"s_add_u32 s95, s95, {WS_T}")
    e(f"v_mov_b32 v{V_TKA}, {L_TK}")
    e(f"v_mov_b32 v{V_ONE}, 1")
    if SW < 128:
        e(f"s_or_b32 s{S_TMP}, s{S_S}, s{S_W}")
        e(f"s_cmp_lg_u32 s{S_TMP}, 0")
        e("s_cbranch_scc1 L_noinit")
        e(f"v_mov_b32 v12, s{S_TMP3}")
        e(f"v_mov_b32 v13, {4*SW}")
        e(f"s_mov_b64 exec, 1")
        e(f"buffer_store_dword v13, v12, s[{R_WS}:{R_WS+3}], 0 offen sc1")
        e(f"s_mov_b64 exec, -1")
        g.label("L_noinit")
    e(f"s_mul_i32 s{S_SB}, s{S_S}, {SW}")
    e(f"s_add_u32 s{S_CUR}, s{S_SB}, s{S_W}")
    LW = opt.get("lw", 4)
    hyb = opt.get("hyb", 1)
    if hyb:
        e(f"s_add_u32 s{S_NXT}, s{S_CUR}, 8")
        e(f"s_cmp_ge_u32 s{S_W}, {LW}")
        e(f"s_cselect_b32 s{S_NXT}, {ntiles}, s{S_NXT}")
        TK0 = 8 + LW
    else:
        e(f"s_add_u32 s{S_NXT}, s{S_CUR}, {LW}")
        if LW < 8:
            e(f"s_cmp_ge_u32 s{S_W}, {LW}")
            e(f"s_cselect_b32 s{S_CUR}, {ntiles}, s{S_CUR}")
            e(f"s_cselect_b32 s{S_NXT}, {ntiles}, s{S_NXT}")
        TK0 = 2 * LW
    e(f"s_mov_b32 s{S_PEND}, 0")

    def set_offsets(sidx):
        e(f"s_lshl_b32 s{S_T0}, s{sidx}, 13")
        e(f"s_add_u32 s{S_T0+1}, s{S_T0}, 4096")

    set_offsets(S_CUR)

    def ld_k(i, h):
        e(f"buffer_load_dwordx4 {vr(V_KR+8*i+4*h,4)}, v{V_KOFF}, s[{R_K}:{R_K+3}], s{S_T0+(i>>1)} offen offset:{(i&1)*2048+h*256}{NT}")

    def ld_v(i, h):
        e(f"buffer_load_dwordx4 {vr(V_VR+8*i+4*h,4)}, v{V_VOFF}, s[{R_V}:{R_V+3}], s{S_T0+(i>>1)} offen offset:{(i&1)*2048+h*256}{NT}")

    def ld_wo(ii, _):
        e(f"s_mov_b32 s{S_TMP2}, {ii*896}")
        e(f"buffer_load_dwordx4 {vr(V_WO+4*ii,4)}, v{V_WOFF}, s[{R_WO}:{R_WO+3}], s{S_TMP2} offen{NTW}")

    peel = opt.get("peel", 1)
    kv = [(ld_k, i, h) for i in range(NG) for h in range(2)] + [(ld_v, i, h) for i in range(NG) for h in range(2)]
    wos = [(ld_wo, ii, 0) for ii in range(16)]
    seq = kv + wos if peel else wos + kv
    e(f"s_lshl_b32 s{S_TMP}, s{S_KVH}, 9")
    e(f"s_lshl_b32 s{S_TMP2}, s{S_W}, 6")
    e(f"s_add_u32 s{S_TMP}, s{S_TMP}, s{S_TMP2}")
    e(f"s_mul_i32 s{S_TMP}, s{S_TMP}, 896")
    e(f"s_lshl_b32 s{S_TMP2}, s{S_S}, 8")
    e(f"s_add_u32 s{S_TMP}, s{S_TMP}, s{S_TMP2}")
    e(f"s_sub_u32 s{S_TMP2}, {4096*896}, s{S_TMP}")
    srd(R_WO, S_WO, f"s{S_TMP}", f"s{S_TMP2}")
    e(f"v_mul_u32_u24 v12, {16*896//16}, v10")
    e(f"v_add_lshl_u32 v12, v12, v11, 4")
    e(f"s_cmp_eq_u32 s{S_S}, 3")
    e(f"s_cselect_b32 s{S_NC}, 64, 128")
    e(f"v_lshlrev_b32 v13, 3, v11")
    e(f"v_cmp_le_u32 vcc, s{S_NC}, v13")
    e(f"v_mov_b32 v13, 0x40000000")
    g.nop(1)
    e(f"v_cndmask_b32 v{V_WOFF}, v12, v13, vcc")
    stamp(0)
    if stamps:
        e(f"v_mov_b32 v14, s30")
        e(f"v_mov_b32 v15, s31")
        e(f"buffer_store_dwordx2 v[14:15], v13, s[{R_WS}:{R_WS+3}], 0 offen offset:80")
    bench = opt.get("bench", 0)
    if bench:
        for f, i, h in kv:
            f(i, h)
        for r in range(8):
            e(f"v_mov_b32 v{V_Q+r}, 0x3f9d3e80")
        e("s_branch L_bench")
    W0 = opt.get("w0", 8)
    STEP = opt.get("step", 4)
    b0 = opt.get("b0", 1)
    if b0:
        e("s_barrier")
    e(f"s_cmp_eq_u32 s{S_W}, 0")
    e("s_cbranch_scc1 L_nopre")
    for f, i, h in seq[:W0]:
        f(i, h)
    g.label("L_nopre")
    e("s_waitcnt lgkmcnt(0)")
    e(f"s_add_u32 s{S_E}, s{S_E}, 1")
    e(f"s_addc_u32 s{S_E+1}, s{S_E+1}, 0")
    e(f"s_mov_b32 s{S_TA}, s{S_E}")
    e(f"s_brev_b32 s{S_TB}, s{S_E}")
    e(f"s_xor_b32 s{S_TB}, s{S_TB}, s{S_E+1}")
    e(f"v_mov_b32 v12, s{S_TA}")
    e(f"v_mov_b32 v13, s{S_TB}")
    e(f"v_and_b32 v14, 1, v{V_LANE}")
    e(f"v_cmp_eq_u32 vcc, 1, v14")
    g.nop(2)
    e(f"v_cndmask_b32 v{V_TAG}, v12, v13, vcc")
    e(f"s_cmp_eq_u32 s{S_W}, 0")
    e("s_cbranch_scc1 L_w0w")
    e(f"s_waitcnt vmcnt({W0})")
    e("s_branch L_qc")
    g.label("L_w0w")
    e(f"s_waitcnt vmcnt(0)")
    g.label("L_qc")
    stamp(1)
    QA = 56
    for i in range(14):
        sel = S_SELO if (i & 1) else S_SELE
        bb = 48 + 4 * (i & 1)
        e(f"v_perm_b32 v60, v{40+(i>>1)}, v{40+(i>>1)}, s{sel}")
        for t in range(4):
            e(f"v_and_b32 v{bb+t}, v60, v{V_M+t}")
        g.nop(2)
        csrc = "0" if i == 0 else vr(QA, 4)
        e(f"v_mfma_f32_16x16x32_bf16 {vr(QA,4)}, {vr(V_WQ+4*i,4)}, {vr(bb,4)}, {csrc}")
    e(f"v_and_b32 v12, 7, v{V_LANE}")
    e(f"v_lshlrev_b32 v12, 2, v12")
    e(f"v_lshl_add_u32 v12, v10, 7, v12")
    e(f"s_lshl_b32 s{S_TMP}, s{S_W}, 9")
    e(f"v_add_u32 v12, s{S_TMP}, v12")
    e(f"v_mov_b32 v13, {TK0}")
    e(f"v_mov_b32 v14, 0")
    g.nop(6)
    for r in range(4):
        e(f"ds_write_b32 v12, v{QA+r} offset:{L_QP + r*32}")
    e(f"ds_write_b32 v{V_TKA}, v13")
    e(f"ds_write_b32 v{V_TKA}, v14 offset:4")
    e("s_waitcnt lgkmcnt(0)")
    e("s_barrier")
    e(f"s_cmp_lg_u32 s{S_W}, 0")
    e("s_cbranch_scc1 L_paced")
    e(f"v_lshlrev_b32 v12, 3, v{V_LANE}")
    for w in range(8):
        e(f"ds_read_b64 v[{40+2*w}:{41+2*w}], v12 offset:{L_QP + w*512}")
    e("s_waitcnt lgkmcnt(0)")
    for w in range(1, 8):
        e(f"v_add_f32 v40, v40, v{40+2*w}")
        e(f"v_add_f32 v41, v41, v{41+2*w}")
    e(f"v_cvt_pk_bf16_f32 v40, v40, v41")
    e(f"v_mov_b32 v41, v{V_TAG}")
    e(f"s_lshl_b32 s{S_TMP}, s{S_GRP}, 11")
    e(f"s_add_u32 s{S_TMP}, s{S_TMP}, {WS_Q}")
    e(f"s_lshl_b32 s{S_TMP2}, s{S_S}, 9")
    e(f"s_add_u32 s{S_TMP2}, s{S_TMP2}, s{S_TMP}")
    e(f"buffer_store_dwordx2 v[40:41], v12, s[{R_WS}:{R_WS+3}], s{S_TMP2} offen sc1")
    stamp(2)
    e(f"v_lshlrev_b32 v12, 4, v{V_LANE}")
    e(f"s_mov_b32 s{S_CNT}, {SPIN}")
    g.label("L_poll1")
    e(f"buffer_load_dwordx4 v[40:43], v12, s[{R_WS}:{R_WS+3}], s{S_TMP} offen sc1")
    e(f"buffer_load_dwordx4 v[44:47], v12, s[{R_WS}:{R_WS+3}], s{S_TMP} offen offset:1024 sc1")
    e("s_waitcnt vmcnt(0)")
    tagcheck(40, 4)
    pollend("L_poll1")
    e(f"v_mov_b32 v41, v42")
    e(f"v_mov_b32 v45, v46")
    e(f"v_lshlrev_b32 v12, 3, v{V_LANE}")
    e(f"ds_write_b64 v12, v[40:41] offset:{L_Q}")
    e(f"ds_write_b64 v12, v[44:45] offset:{L_Q+512}")
    e("s_waitcnt lgkmcnt(0)")
    e(f"ds_write_b32 v{V_TKA}, v{V_ONE} offset:4")
    stamp(3)
    for f, i, h in seq:
        f(i, h)
    e("s_branch L_go")
    g.label("L_paced")
    e(f"s_mov_b32 s{S_RDY}, 0")

    def chk(lab):
        e(f"s_cmp_lg_u32 s{S_RDY}, 0")
        e(f"s_cbranch_scc1 {lab}")
        e(f"ds_read_b32 v13, v{V_TKA} offset:4")
        e("s_waitcnt lgkmcnt(0)")
        e(f"v_readfirstlane_b32 s{S_RDY}, v13")
        g.nop(4)
        e(f"s_cmp_lg_u32 s{S_RDY}, 0")
        e(f"s_cbranch_scc1 {lab}")
    j = W0
    while j < len(seq):
        chk(f"L_pi{j}")
        e(f"s_waitcnt vmcnt({max(W0-STEP,0)})")
        g.label(f"L_pi{j}")
        for f, i, h in seq[j:j+STEP]:
            f(i, h)
        j += STEP
    e(f"s_mov_b32 s{S_CNT}, {SPIN*16}")
    g.label("L_wflag")
    chk("L_go")
    e(f"s_sub_u32 s{S_CNT}, s{S_CNT}, 1")
    e("s_cbranch_scc0 L_wflag")
    g.label("L_go")
    e(f"v_lshrrev_b32 v12, 3, v11")
    e(f"v_lshlrev_b32 v12, 9, v12")
    e(f"v_lshl_add_u32 v12, v10, 6, v12")
    e(f"v_and_b32 v13, 3, v{V_LANE}")
    e(f"v_lshl_add_u32 v12, v13, 4, v12")
    e(f"ds_read_b128 {vr(V_Q,4)}, v12 offset:{L_Q}")
    e(f"ds_read_b128 {vr(V_Q+4,4)}, v12 offset:{L_Q+256}")
    g.label("L_bench")
    e(f"v_mov_b32 v{V_MC}, 0xff800000")
    e(f"v_mov_b32 v{V_L}, 0")
    for r in range(8):
        e(f"v_mov_b32 v{V_ACC+r}, 0")
    e("s_waitcnt lgkmcnt(0)")
    stamp(4)

    W = 4 * NG - 2

    def tile(first):
        u = g.lab; g.lab += 1
        extra = 16 if (first and not opt.get("bench", 0)) else 0
        for i in range(NG):
            e(f"s_waitcnt vmcnt({W + extra})")
            if i == 0:
                if not first:
                    e(f"s_cmp_eq_u32 s{S_PEND}, 0")
                    e(f"s_cbranch_scc1 L_np{u}")
                    e("s_waitcnt lgkmcnt(0)")
                    e(f"s_mov_b32 s{S_NXT}, s{S_SA}")
                    e(f"s_mov_b32 s{S_PEND}, 0")
                    g.label(f"L_np{u}")
                set_offsets(S_NXT)
                e(f"s_cmp_ge_u32 s{S_NXT}, {ntiles}")
                e(f"s_cbranch_scc1 L_ntk{u}")
                e("s_mov_b64 exec, 1")
                e(f"ds_add_rtn_u32 v{V_TK}, v{V_TKA}, v{V_ONE}")
                e("s_mov_b64 exec, -1")
                g.label(f"L_ntk{u}")
            e(f"v_mfma_f32_16x16x32_bf16 {vr(V_S+4*i,4)}, {vr(V_KR+8*i,4)}, {vr(V_Q,4)}, 0")
            e(f"v_mfma_f32_16x16x32_bf16 {vr(V_S+4*i,4)}, {vr(V_KR+8*i+4,4)}, {vr(V_Q+4,4)}, {vr(V_S+4*i,4)}")
            ld_k(i, 0); ld_k(i, 1)
        e("s_waitcnt lgkmcnt(0)")
        e(f"v_readfirstlane_b32 s{S_N2}, v{V_TK}")
        g.nop(4)
        e(f"s_cmp_ge_u32 s{S_NXT}, {ntiles}")
        e(f"s_cbranch_scc1 L_inv{u}")
        e(f"s_cmp_ge_u32 s{S_N2}, {SW}")
        e(f"s_cbranch_scc1 L_pool{u}")
        e(f"s_add_u32 s{S_N2}, s{S_N2}, s{S_SB}")
        e(f"s_branch L_tkd{u}")
        g.label(f"L_pool{u}")
        if SW < 128:
            e(f"s_mov_b32 s{S_SA}, 1")
            e(f"s_atomic_add s{S_SA}, s[{S_CB}:{S_CB+1}], 0 glc")
            e(f"s_mov_b32 s{S_PEND}, 1")
            e(f"s_branch L_tkd{u}")
        g.label(f"L_inv{u}")
        e(f"s_mov_b32 s{S_N2}, {ntiles}")
        g.label(f"L_tkd{u}")
        for i in range(NG):
            s = V_S + 4 * i
            p = V_P + i
            e(f"v_mov_b32_dpp v{p}, v{s} quad_perm:[0,0,0,0] row_mask:0xf bank_mask:0xf")
            for k in range(1, 4):
                e(f"v_add_f32_dpp v{p}, v{s+k}, v{p} quad_perm:[{k},{k},{k},{k}] row_mask:0xf bank_mask:0xf")
        e(f"v_max3_f32 v10, v{V_P}, v{V_P+1}, v{V_P+2}")
        e(f"v_max_f32 v10, v10, v{V_P+3}")
        e(f"v_mov_b32 v11, v10")
        g.nop(2)
        e(f"v_permlane32_swap_b32 v10, v11")
        g.nop(1)
        e(f"v_max_f32 v10, v10, v11")
        e(f"v_mov_b32 v11, v10")
        g.nop(2)
        e(f"v_permlane16_swap_b32 v10, v11")
        g.nop(1)
        e(f"v_max_f32 v10, v10, v11")
        e(f"v_mul_f32 v10, s{S_C}, v10")
        e(f"v_max_f32 v10, v10, v{V_MC}")
        e(f"v_sub_f32 v11, v{V_MC}, v10")
        e(f"v_exp_f32 v11, v11")
        e(f"v_mov_b32 v{V_MC}, v10")
        for i in range(NG):
            e(f"v_fma_f32 v{V_P+i}, v{V_P+i}, s{S_C}, -v10")
        for i in range(NG):
            e(f"v_exp_f32 v{V_P+i}, v{V_P+i}")
        for r in range(8):
            e(f"v_mul_f32 v{V_ACC+r}, v{V_ACC+r}, v11")
        e(f"v_mul_f32 v{V_L}, v{V_L}, v11")
        for i in range(NG):
            s = V_S + 4 * i
            e(f"v_cvt_pk_bf16_f32 v12, v{V_P+i}, v{V_P+i}")
            e(f"v_add_f32 v{V_L}, v{V_L}, v{V_P+i}")
            for t in range(4):
                e(f"v_and_b32 v{s+t}, v12, v{V_M+t}")
        g.nop(2)
        for i in range(NG):
            e(f"s_waitcnt vmcnt({W + extra})")
            for h in range(2):
                e(f"v_mfma_f32_16x16x32_bf16 {vr(V_ACC+4*h,4)}, {vr(V_VR+8*i+4*h,4)}, {vr(V_S+4*i,4)}, {vr(V_ACC+4*h,4)}")
            ld_v(i, 0); ld_v(i, 1)
        e(f"s_mov_b32 s{S_CUR}, s{S_NXT}")
        e(f"s_mov_b32 s{S_NXT}, s{S_N2}")

    if LW < 8 and not hyb:
        e(f"s_cmp_ge_u32 s{S_W}, {LW}")
        e("s_cbranch_scc1 L_loopdone")
    if peel:
        tile(True)
        e(f"s_cmp_ge_u32 s{S_CUR}, {ntiles}")
        e("s_cbranch_scc1 L_loopdone")
    g.l.append(".p2align 6")
    g.label("L_loop")
    tile(False)
    e(f"s_cmp_lt_u32 s{S_CUR}, {ntiles}")
    e("s_cbranch_scc1 L_loop")
    g.label("L_loopdone")
    e("s_waitcnt vmcnt(0) lgkmcnt(0)")
    stamp(5)
    if bench:
        e("s_endpgm")

    e(f"v_lshrrev_b32 v10, 4, v{V_LANE}")
    e(f"v_and_b32 v11, 15, v{V_LANE}")
    e(f"v_mov_b32 v12, v{V_L}")
    g.nop(2)
    e(f"v_permlane32_swap_b32 v{V_L}, v12")
    g.nop(1)
    e(f"v_add_f32 v{V_L}, v{V_L}, v12")
    e(f"v_mov_b32 v12, v{V_L}")
    g.nop(2)
    e(f"v_permlane16_swap_b32 v{V_L}, v12")
    g.nop(1)
    e(f"v_add_f32 v{V_L}, v{V_L}, v12")
    e(f"v_lshrrev_b32 v12, 3, v11")
    e(f"s_lshl_b32 s{S_TMP}, s{S_W}, 4")
    e(f"v_lshlrev_b32 v13, 3, v12")
    e(f"v_add_u32 v13, s{S_TMP}, v13")
    e(f"ds_write_b64 v13, v[{V_MC}:{V_L}] offset:{L_ML}")
    e(f"v_lshlrev_b32 v13, 10, v12")
    e(f"v_lshl_add_u32 v13, v10, 7, v13")
    e(f"v_and_b32 v14, 7, v{V_LANE}")
    e(f"v_lshl_add_u32 v13, v14, 2, v13")
    e(f"s_lshl_b32 s{S_TMP}, s{S_W}, 11")
    e(f"v_add_u32 v13, s{S_TMP}, v13")
    g.nop(8)
    for h in range(2):
        for r in range(4):
            e(f"ds_write_b32 v13, v{V_ACC+4*h+r} offset:{L_O + h*512 + r*32}")
    e("s_waitcnt lgkmcnt(0)")
    e("s_barrier")
    e(f"v_lshrrev_b32 v10, 8, v{V_TID}")
    e(f"v_lshlrev_b32 v11, 3, v10")
    e(f"v_lshlrev_b32 v12, 2, v{V_TID}")
    for w in range(8):
        e(f"ds_read_b64 v[{40+2*w}:{41+2*w}], v11 offset:{L_ML + w*16}")
    for w in range(8):
        e(f"ds_read_b32 v{72+w}, v12 offset:{L_O + w*2048}")
    e("s_waitcnt lgkmcnt(0)")
    e("v_max3_f32 v13, v40, v42, v44")
    e("v_max3_f32 v13, v13, v46, v48")
    e("v_max3_f32 v13, v13, v50, v52")
    e("v_max_f32 v13, v13, v54")
    for w in range(8):
        e(f"v_sub_f32 v{40+2*w}, v{40+2*w}, v13")
    for w in range(8):
        e(f"v_exp_f32 v{40+2*w}, v{40+2*w}")
    g.nop(1)
    e("v_mul_f32 v14, v40, v41")
    e("v_mul_f32 v15, v40, v72")
    for w in range(1, 8):
        e(f"v_fmac_f32 v14, v{40+2*w}, v{41+2*w}")
        e(f"v_fmac_f32 v15, v{40+2*w}, v{72+w}")
    e(f"s_lshl_b32 s{S_TMP}, s{S_GRP}, 15")
    e(f"s_add_u32 s{S_TMP}, s{S_TMP}, {WS_P}")
    e(f"s_lshl_b32 s{S_TMP2}, s{S_S}, 13")
    e(f"s_add_u32 s{S_TMP2}, s{S_TMP2}, s{S_TMP}")
    e(f"v_mov_b32 v40, v15")
    e(f"v_mov_b32 v41, v{V_TAG}")
    e(f"v_lshlrev_b32 v12, 3, v{V_TID}")
    e(f"buffer_store_dwordx2 v[40:41], v12, s[{R_WS}:{R_WS+3}], s{S_TMP2} offen offset:64 sc1")
    e(f"v_mov_b32 v44, v13")
    e(f"v_mov_b32 v45, s{S_TA}")
    e(f"v_mov_b32 v46, v14")
    e(f"v_mov_b32 v47, s{S_TB}")
    e(f"v_lshlrev_b32 v11, 4, v10")
    e(f"v_and_b32 v13, 255, v{V_TID}")
    e(f"v_cmp_eq_u32 vcc, 0, v13")
    e(f"s_and_saveexec_b64 s[{S_EX}:{S_EX+1}], vcc")
    e("s_cbranch_execz L_noml")
    e(f"buffer_store_dwordx4 v[44:47], v11, s[{R_WS}:{R_WS+3}], s{S_TMP2} offen sc1")
    g.label("L_noml")
    e(f"s_mov_b64 exec, -1")
    stamp(6)
    e(f"s_cmp_ge_u32 s{S_W}, 4")
    e("s_cbranch_scc1 L_comb_done")
    e(f"v_lshlrev_b32 v12, 4, v{V_TID}")
    e(f"v_lshrrev_b32 v11, 7, v{V_TID}")
    e(f"v_lshlrev_b32 v11, 4, v11")
    e(f"s_mov_b32 s{S_CNT}, {SPIN}")
    e(f"s_mov_b32 s{S_VM}, 0")
    g.label("L_poll2")
    for s_ in range(4):
        e(f"s_bitcmp1_b32 s{S_VM}, {s_}")
        e(f"s_cbranch_scc1 L_p2s{s_}")
        e(f"s_add_u32 s{S_TMP2}, s{S_TMP}, {8192*s_}")
        e(f"buffer_load_dwordx4 v[{72+8*s_}:{75+8*s_}], v12, s[{R_WS}:{R_WS+3}], s{S_TMP2} offen offset:64 sc1")
        e(f"buffer_load_dwordx4 v[{76+8*s_}:{79+8*s_}], v11, s[{R_WS}:{R_WS+3}], s{S_TMP2} offen sc1")
        g.label(f"L_p2s{s_}")
    e("s_waitcnt vmcnt(0)")
    for s_ in range(4):
        tagcheck(72+8*s_, 4)
        e("s_cmp_eq_u64 vcc, 0")
        e(f"s_cselect_b32 s{S_TMP2}, {1<<s_}, 0")
        e(f"s_or_b32 s{S_VM}, s{S_VM}, s{S_TMP2}")
    e(f"s_sub_u32 s{S_CNT}, s{S_CNT}, 1")
    e("s_cbranch_scc1 L_poll2_done")
    e(f"s_cmp_lg_u32 s{S_VM}, 15")
    e("s_cbranch_scc1 L_poll2")
    g.label("L_poll2_done")
    stamp(7)
    e("v_max3_f32 v13, v76, v84, v92")
    e("v_max_f32 v13, v13, v100")
    for s_ in range(4):
        e(f"v_sub_f32 v{76+8*s_}, v{76+8*s_}, v13")
    for s_ in range(4):
        e(f"v_exp_f32 v{76+8*s_}, v{76+8*s_}")
    g.nop(1)
    e("v_mul_f32 v14, v76, v78")
    e("v_mul_f32 v15, v76, v72")
    e("v_mul_f32 v13, v76, v74")
    for s_ in range(1, 4):
        e(f"v_fmac_f32 v14, v{76+8*s_}, v{78+8*s_}")
        e(f"v_fmac_f32 v15, v{76+8*s_}, v{72+8*s_}")
        e(f"v_fmac_f32 v13, v{76+8*s_}, v{74+8*s_}")
    e("v_rcp_f32 v14, v14")
    g.nop(1)
    e("v_mul_f32 v15, v15, v14")
    e("v_mul_f32 v13, v13, v14")
    e("v_cvt_pk_bf16_f32 v15, v15, v13")
    e(f"v_lshlrev_b32 v13, 2, v{V_TID}")
    e(f"ds_write_b32 v13, v15 offset:{L_OB}")
    e("s_waitcnt lgkmcnt(0)")
    g.label("L_comb_done")
    e("s_barrier")
    if opt.get("rep", 0):
        e(f"s_mov_b32 s23, 0")
        stamp(11)
        g.label("L_rep")
    e(f"v_lshrrev_b32 v10, 4, v{V_LANE}")
    e(f"s_lshl_b32 s{S_TMP}, s{S_W}, 7")
    e(f"v_lshlrev_b32 v12, 5, v10")
    e(f"v_add_u32 v12, s{S_TMP}, v12")
    e(f"ds_read_b128 v[40:43], v12 offset:{L_OB}")
    e(f"ds_read_b128 v[44:47], v12 offset:{L_OB+16}")
    e("s_waitcnt lgkmcnt(0)")
    for i in range(16):
        sel = S_SELO if (i & 1) else S_SELE
        bb = 48 + 4 * (i & 1)
        e(f"v_perm_b32 v60, v{40+(i>>1)}, v{40+(i>>1)}, s{sel}")
        for t in range(4):
            e(f"v_and_b32 v{bb+t}, v60, v{V_M+t}")
        g.nop(2)
        csrc = "0" if i == 0 else vr(QA, 4)
        e(f"v_mfma_f32_16x16x32_bf16 {vr(QA,4)}, {vr(V_WO+4*i,4)}, {vr(bb,4)}, {csrc}")
    e(f"v_and_b32 v12, 7, v{V_LANE}")
    e(f"v_lshlrev_b32 v12, 2, v12")
    e(f"v_lshl_add_u32 v12, v10, 7, v12")
    e(f"s_lshl_b32 s{S_TMP}, s{S_W}, 9")
    e(f"v_add_u32 v12, s{S_TMP}, v12")
    g.nop(8)
    for r in range(4):
        e(f"ds_write_b32 v12, v{QA+r} offset:{L_QP + r*32}")
    e("s_waitcnt lgkmcnt(0)")
    if opt.get("rep", 0):
        e("s_cmp_lg_u32 s23, 0")
        e("s_cbranch_scc1 L_rep2")
        stamp(12)
        e("s_mov_b32 s23, 1")
        e("s_branch L_rep")
        g.label("L_rep2")
        stamp(13)
    e("s_barrier")
    e(f"s_cmp_ge_u32 s{S_W}, 2")
    e("s_cbranch_scc1 L_end")
    e(f"v_cmp_gt_u32 vcc, s{S_NC}, v{V_TID}")
    e(f"s_and_saveexec_b64 s[{S_EX}:{S_EX+1}], vcc")
    e("s_cbranch_execz L_end")
    e(f"v_lshlrev_b32 v12, 2, v{V_TID}")
    for w in range(8):
        e(f"ds_read_b32 v{40+w}, v12 offset:{L_QP + w*512}")
    e("s_waitcnt lgkmcnt(0)")
    for w in range(1, 8):
        e(f"v_add_f32 v40, v40, v{40+w}")
    e(f"v_mov_b32 v41, v{V_TAG}")
    e(f"s_lshl_b32 s{S_TMP}, s{S_FIN}, 13")
    e(f"s_add_u32 s{S_TMP}, s{S_TMP}, {WS_F}")
    e(f"s_lshl_b32 s{S_TMP2}, s{S_KVH}, 10")
    e(f"s_add_u32 s{S_TMP2}, s{S_TMP2}, s{S_TMP}")
    e(f"v_lshlrev_b32 v12, 3, v{V_TID}")
    e(f"buffer_store_dwordx2 v[40:41], v12, s[{R_WS}:{R_WS+3}], s{S_TMP2} offen sc1")
    stamp(8)
    e(f"s_cmp_lg_u32 s{S_KVH}, s{S_KVR}")
    e("s_cbranch_scc1 L_end")
    e(f"v_lshrrev_b32 v12, 1, v{V_TID}")
    e(f"v_lshlrev_b32 v12, 4, v12")
    e(f"s_add_u32 s{S_TMP2}, s{S_TMP}, 4096")
    e(f"s_mov_b32 s{S_CNT}, {SPIN}")
    g.label("L_poll3")
    for k in range(8):
        so = S_TMP if k < 4 else S_TMP2
        e(f"buffer_load_dwordx4 v[{72+4*k}:{75+4*k}], v12, s[{R_WS}:{R_WS+3}], s{so} offen offset:{(k&3)*1024} sc1")
    e("s_waitcnt vmcnt(0)")
    tagcheck(72, 16)
    pollend("L_poll3")
    e(f"v_and_b32 v13, 1, v{V_TID}")
    e(f"v_cmp_eq_u32 vcc, 1, v13")
    g.nop(2)
    for k in range(8):
        e(f"v_cndmask_b32 v{72+4*k}, v{72+4*k}, v{74+4*k}, vcc")
    for k in range(1, 8):
        e(f"v_add_f32 v72, v72, v{72+4*k}")
    e("v_cvt_pk_bf16_f32 v40, v72, v72")
    e(f"s_mul_i32 s{S_TMP}, s{S_B}, 1792")
    e(f"s_mul_i32 s{S_TMP2}, s{S_AB}, 896")
    e(f"s_add_u32 s{S_TMP}, s{S_TMP}, s{S_TMP2}")
    e(f"s_lshl_b32 s{S_TMP2}, s{S_S}, 8")
    e(f"s_add_u32 s{S_TMP}, s{S_TMP}, s{S_TMP2}")
    e(f"v_lshlrev_b32 v12, 1, v{V_TID}")
    e(f"buffer_store_short v40, v12, s[{R_OUT}:{R_OUT+3}], s{S_TMP} offen")
    stamp(9)
    e(f"s_or_b32 s{S_TMP}, s{S_S}, s{S_W}")
    e(f"s_cmp_lg_u32 s{S_TMP}, 0")
    e("s_cbranch_scc1 L_end")
    e(f"s_lshr_b32 s{S_TMP}, s2, 5")
    e(f"s_lshl_b32 s{S_TMP}, s{S_TMP}, 7")
    e(f"v_mov_b32 v12, s{S_TMP}")
    e(f"v_mov_b32 v40, s{S_E}")
    e(f"v_mov_b32 v41, s{S_E+1}")
    e("s_mov_b64 exec, 1")
    e(f"buffer_store_dwordx2 v[40:41], v12, s[{R_WS}:{R_WS+3}], 0 offen offset:{WS_E} sc1")
    g.label("L_end")
    e("s_endpgm")
    g.l.append('.section .rodata,"a"')
    g.l.append(".p2align 6")
    g.l.append(f".amdhsa_kernel {KN}")
    g.l.append("  .amdhsa_next_free_vgpr 256")
    g.l.append("  .amdhsa_next_free_sgpr 102")
    g.l.append("  .amdhsa_accum_offset 256")
    g.l.append("  .amdhsa_group_segment_fixed_size 0")
    g.l.append("  .amdhsa_kernarg_size 104")
    g.l.append("  .amdhsa_user_sgpr_count 2")
    g.l.append("  .amdhsa_user_sgpr_kernarg_segment_ptr 1")
    g.l.append("  .amdhsa_system_sgpr_workgroup_id_x 1")
    g.l.append(".end_amdhsa_kernel")
    return "\n".join(g.l) + "\n"


if __name__ == "__main__":
    out = sys.argv[1]
    opt = {}
    for a in sys.argv[2:]:
        k, v = a.split("=")
        opt[k] = int(v, 0)
    open(out, "w").write(gen(opt))
```

```python
import sys
from gen import G, vr, HEADER, KN

WS_E = 0x0
WS_Q = 0x4000
WS_F = 0x40000
WS_P = 0x100000
WS_T = 0x400000
WS_C = 0x800000
WS_SIZE = 0x1000000

L_QP = 0
L_Q = 4096
L_ML = 5120
L_TK = 5248
L_OB = 5376
L_O = 8192
LDS_MIN = 8192 + 16384

S_X, S_K, S_V, S_WQ, S_WO = 4, 6, 8, 10, 12
S_OUT, S_DBG, S_WS = 44, 46, 48
S_KVH, S_S, S_B, S_AB, S_W, S_GRP = 14, 15, 16, 17, 18, 19
R_K, R_V, R_W, R_X, R_WS, R_OUT = 52, 56, 60, 68, 72, 80
S_T0 = 84
S_CNT = 88
S_TMP, S_TMP2, S_TMP3 = 89, 90, 91
S_C = 92
S_SELE, S_SELO = 93, 94
S_EX = 96
S_KVR = 3
S_ST = 64
S_FIN = 50
S_TA, S_TB = 76, 77
S_E = 78
S_CUR, S_NXT = 98, 99
S_N2 = 51
S_SA = 100
S_PEND = 101
S_CB = 66
S_ROT = 42
S_NC = 20
S_RDY = 21
S_VM = 22
R_WO = 36
S_SB = 43

V_TID, V_LANE, V_KOFF, V_VOFF = 0, 1, 2, 3
V_M = 4
V_MC, V_L = 8, 9
V_Q = 16
V_ACC = 24
V_P = 32
V_TK, V_TKA, V_ONE, V_WOFF = 36, 37, 38, 39
V_S = 40
V_TAG = 61


def gen(opt):
    g = G(opt)
    e, c = g.e, g.c
    NG = 4
    NT = " nt" if opt.get("nt", 1) else ""
    NTW = " nt" if opt.get("ntw", 0) else ""
    stamps = opt.get("stamps", 0)
    pre = opt.get("pre", 8)
    spread = opt.get("spread", 1)
    SW = opt.get("sw", 110)
    cstride = opt.get("cstride", 4096)
    lds = max(opt.get("lds", 0), LDS_MIN)
    SPIN = opt.get("spin", 0x20000)
    cpf = opt.get("cpf", 0)
    tile_bytes = NG * 2048
    ntiles = 8192 // (4 * NG)
    V_KR = 72
    V_VR = V_KR + 8 * NG
    V_WO = V_VR + 8 * NG
    V_WQ = 200

    def stamp(idx):
        if not stamps:
            return
        e(f"s_memrealtime s[{S_ST}:{S_ST+1}]")
        e("s_waitcnt lgkmcnt(0)")
        e(f"v_mov_b32 v14, s{S_ST}")
        e(f"v_mov_b32 v15, s{S_ST+1}")
        e(f"v_mov_b32 v13, s95")
        e(f"buffer_store_dwordx2 v[14:15], v13, s[{R_WS}:{R_WS+3}], 0 offen offset:{idx*8}")

    def srd(R, base, off_s, nrec):
        if off_s is None:
            e(f"s_mov_b32 s{R}, s{base}")
            e(f"s_mov_b32 s{R+1}, s{base+1}")
        else:
            e(f"s_add_u32 s{R}, s{base}, {off_s}")
            e(f"s_addc_u32 s{R+1}, s{base+1}, 0")
        e(f"s_mov_b32 s{R+2}, {nrec}")
        e(f"s_mov_b32 s{R+3}, 0x00020000")

    def tagcheck(first_reg, n):
        e(f"v_cmp_ne_u32 vcc, s{S_TA}, v{first_reg+1}")
        for k in range(1, n):
            tg = S_TB if (k & 1) else S_TA
            e(f"v_cmp_ne_u32 s[{S_EX}:{S_EX+1}], s{tg}, v{first_reg+2*k+1}")
            e(f"s_or_b64 vcc, vcc, s[{S_EX}:{S_EX+1}]")

    def pollend(lab):
        e(f"s_sub_u32 s{S_CNT}, s{S_CNT}, 1")
        e(f"s_cbranch_scc1 {lab}_done")
        e("s_cmp_lg_u64 vcc, 0")
        e(f"s_cbranch_scc1 {lab}")
        g.label(f"{lab}_done")

    g.l.append(HEADER.rstrip("\n"))
    g.l.append(f"; @launch grid=(256,1,1) block=(512,1,1) lds={lds}")
    g.l.append('.amdgcn_target "amdgcn-amd-amdhsa--gfx950"')
    g.l.append(".text")
    g.l.append(f".globl {KN}")
    g.l.append(".p2align 8")
    g.l.append(f".type {KN},@function")
    g.l.append(f"{KN}:")
    if stamps:
        e("s_memrealtime s[30:31]")
    e("s_cmp_ge_u32 s2, 256")
    e("s_cbranch_scc1 L_end")
    e("s_load_dwordx8 s[20:27], s[0:1], 0")
    e("s_load_dwordx2 s[28:29], s[0:1], 32")
    e("s_load_dwordx8 s[32:39], s[0:1], 40")
    e("s_load_dwordx2 s[40:41], s[0:1], 72")
    e(f"s_load_dwordx4 s[{S_OUT}:{S_OUT+3}], s[0:1], 80")
    e(f"s_load_dwordx2 s[{S_WS}:{S_WS+1}], s[0:1], 96")
    e(f"v_lshrrev_b32 v10, 6, v0")
    e(f"v_and_b32 v{V_LANE}, 63, v0")
    e(f"v_readfirstlane_b32 s{S_W}, v10")
    e(f"s_lshr_b32 s{S_S}, s2, 3")
    e(f"s_and_b32 s{S_S}, s{S_S}, 3")
    e(f"s_and_b32 s{S_KVH}, s2, 7")
    if spread:
        e(f"s_and_b32 s{S_TMP}, s{S_S}, 1")
        e(f"s_lshr_b32 s{S_TMP2}, s{S_S}, 1")
        e(f"s_lshl_b32 s{S_TMP2}, s{S_TMP2}, 2")
        e(f"s_add_u32 s{S_TMP}, s{S_TMP}, s{S_TMP2}")
        e(f"s_sub_u32 s{S_KVH}, s{S_KVH}, s{S_TMP}")
        e(f"s_and_b32 s{S_KVH}, s{S_KVH}, 7")
    e(f"s_lshr_b32 s{S_B}, s2, 5")
    e(f"s_and_b32 s{S_B}, s{S_B}, 3")
    e(f"s_lshr_b32 s{S_AB}, s2, 7")
    e(f"s_lshr_b32 s{S_TMP}, s2, 5")
    e(f"s_lshl_b32 s{S_GRP}, s{S_TMP}, 3")
    e(f"s_or_b32 s{S_GRP}, s{S_GRP}, s{S_KVH}")
    e(f"s_lshl_b32 s{S_FIN}, s{S_TMP}, 2")
    e(f"s_or_b32 s{S_FIN}, s{S_FIN}, s{S_S}")
    e(f"s_and_b32 s{S_KVR}, s{S_FIN}, 7")
    e(f"s_lshl_b32 s{S_TMP3}, s{S_TMP}, 7")
    e(f"s_mov_b32 s{S_C}, 0x3db8aa3b")
    e(f"s_mov_b32 s{S_SELE}, 0x01000100")
    e(f"s_mov_b32 s{S_SELO}, 0x03020302")
    e(f"v_lshrrev_b32 v10, 4, v{V_LANE}")
    e(f"v_and_b32 v11, 15, v{V_LANE}")
    e(f"v_bfe_u32 v12, v{V_LANE}, 2, 2")
    e(f"v_lshlrev_b32 v12, 9, v12")
    e(f"v_lshl_add_u32 v12, v10, 6, v12")
    e(f"v_and_b32 v13, 3, v{V_LANE}")
    e(f"v_lshl_add_u32 v{V_KOFF}, v13, 4, v12")
    e(f"v_lshlrev_b32 v12, 9, v10")
    e(f"v_lshl_add_u32 v{V_VOFF}, v11, 4, v12")
    e(f"v_and_b32 v12, 1, v{V_LANE}")
    e(f"v_lshlrev_b32 v12, 4, v12")
    e(f"v_mov_b32 v13, 0xffff")
    e(f"v_lshlrev_b32 v13, v12, v13")
    e(f"v_bfe_u32 v12, v{V_LANE}, 1, 2")
    for t in range(4):
        e(f"v_cmp_eq_u32 vcc, {t}, v12")
        g.nop(2)
        e(f"v_cndmask_b32 v{V_M+t}, 0, v13, vcc")
    e("s_waitcnt lgkmcnt(0)")
    e(f"s_add_u32 s{S_ST}, s{S_WS}, s{S_TMP3}")
    e(f"s_addc_u32 s{S_ST+1}, s{S_WS+1}, 0")
    e(f"s_load_dwordx2 s[{S_E}:{S_E+1}], s[{S_ST}:{S_ST+1}], {WS_E}")
    e(f"s_cmp_eq_u32 s{S_AB}, 0")
    for i, dst in enumerate([S_X, S_K, S_V, S_WQ, S_WO]):
        e(f"s_cselect_b64 s[{dst}:{dst+1}], s[{20+2*i}:{21+2*i}], s[{32+2*i}:{33+2*i}]")
    srd(R_X, S_X, None, "3584")
    e(f"s_mul_i32 s{S_TMP}, s{S_W}, {56*8192}")
    e(f"s_lshl_b32 s{S_TMP2}, s{S_KVH}, 10")
    e(f"s_add_u32 s{S_TMP}, s{S_TMP}, s{S_TMP2}")
    e(f"s_lshl_b32 s{S_TMP2}, s{S_S}, 8")
    e(f"s_add_u32 s{S_TMP}, s{S_TMP}, s{S_TMP2}")
    e(f"s_sub_u32 s{S_TMP2}, {448*8192}, s{S_TMP}")
    srd(R_W, S_WQ, f"s{S_TMP}", f"s{S_TMP2}")
    e(f"s_mul_i32 s{S_TMP}, s{S_B}, 896")
    e(f"s_mul_i32 s{S_TMP2}, s{S_W}, 112")
    e(f"s_add_u32 s{S_TMP}, s{S_TMP}, s{S_TMP2}")
    e(f"v_mul_u32_u24 v12, 28, v10")
    e(f"buffer_load_dwordx4 v[40:43], v12, s[{R_X}:{R_X+3}], s{S_TMP} offen")
    e(f"buffer_load_dwordx4 v[44:47], v12, s[{R_X}:{R_X+3}], s{S_TMP} offen offset:16")
    e(f"v_mul_u32_u24 v12, {14*8192//16}, v10")
    e(f"v_add_lshl_u32 v12, v12, v11, 4")
    e(f"s_mov_b32 s{S_TMP}, 0")
    for i in range(14):
        if not opt.get("noq", 0): e(f"buffer_load_dwordx4 {vr(V_WQ+4*i,4)}, v12, s[{R_W}:{R_W+3}], s{S_TMP} offen{NTW}")
        if i < 13:
            e(f"s_add_u32 s{S_TMP}, s{S_TMP}, 8192")
    e(f"s_lshl_b32 s{S_TMP}, s{S_B}, 3")
    e(f"s_or_b32 s{S_TMP}, s{S_TMP}, s{S_KVH}")
    e(f"s_lshl_b32 s{S_TMP}, s{S_TMP}, 22")
    srd(R_K, S_K, f"s{S_TMP}", "0x400000")
    srd(R_V, S_V, f"s{S_TMP}", "0x400000")
    srd(R_WS, S_WS, None, hex(WS_SIZE))
    srd(R_OUT, S_OUT, None, "7168")
    e(f"s_mul_i32 s{S_TMP3}, s{S_GRP}, {cstride}")
    e(f"s_add_u32 s{S_TMP3}, s{S_TMP3}, {WS_C}")
    e(f"s_add_u32 s{S_CB}, s{S_WS}, s{S_TMP3}")
    e(f"s_addc_u32 s{S_CB+1}, s{S_WS+1}, 0")
    if stamps:
        e(f"s_lshl_b32 s95, s2, 11")
        e(f"s_lshl_b32 s{S_TMP}, s{S_W}, 8")
        e(f"s_add_u32 s95, s95, s{S_TMP}")
        e(f"s_add_u32 s95, s95, {WS_T}")
    e(f"v_mov_b32 v{V_TKA}, {L_TK}")
    e(f"v_mov_b32 v{V_ONE}, 1")
    if SW < 128:
        e(f"s_or_b32 s{S_TMP}, s{S_S}, s{S_W}")
        e(f"s_cmp_lg_u32 s{S_TMP}, 0")
        e("s_cbranch_scc1 L_noinit")
        e(f"v_mov_b32 v12, s{S_TMP3}")
        e(f"v_mov_b32 v13, {4*SW}")
        e(f"s_mov_b64 exec, 1")
        e(f"buffer_store_dword v13, v12, s[{R_WS}:{R_WS+3}], 0 offen sc1")
        e(f"s_mov_b64 exec, -1")
        g.label("L_noinit")
    e(f"s_mul_i32 s{S_SB}, s{S_S}, {SW}")
    e(f"s_add_u32 s{S_CUR}, s{S_SB}, s{S_W}")
    LW = opt.get("lw", 4)
    hyb = opt.get("hyb", 1)
    if hyb:
        e(f"s_add_u32 s{S_NXT}, s{S_CUR}, 8")
        e(f"s_cmp_ge_u32 s{S_W}, {LW}")
        e(f"s_cselect_b32 s{S_NXT}, {ntiles}, s{S_NXT}")
        TK0 = 8 + LW
    else:
        e(f"s_add_u32 s{S_NXT}, s{S_CUR}, {LW}")
        if LW < 8:
            e(f"s_cmp_ge_u32 s{S_W}, {LW}")
            e(f"s_cselect_b32 s{S_CUR}, {ntiles}, s{S_CUR}")
            e(f"s_cselect_b32 s{S_NXT}, {ntiles}, s{S_NXT}")
        TK0 = 2 * LW
    e(f"s_mov_b32 s{S_PEND}, 0")

    def set_offsets(sidx):
        e(f"s_lshl_b32 s{S_T0}, s{sidx}, 13")
        e(f"s_add_u32 s{S_T0+1}, s{S_T0}, 4096")

    set_offsets(S_CUR)

    def ld_k(i, h):
        e(f"buffer_load_dwordx4 {vr(V_KR+8*i+4*h,4)}, v{V_KOFF}, s[{R_K}:{R_K+3}], s{S_T0+(i>>1)} offen offset:{(i&1)*2048+h*256}{NT}")

    def ld_v(i, h):
        e(f"buffer_load_dwordx4 {vr(V_VR+8*i+4*h,4)}, v{V_VOFF}, s[{R_V}:{R_V+3}], s{S_T0+(i>>1)} offen offset:{(i&1)*2048+h*256}{NT}")

    def ld_wo(ii, _):
        e(f"s_mov_b32 s{S_TMP2}, {ii*896}")
        e(f"buffer_load_dwordx4 {vr(V_WO+4*ii,4)}, v{V_WOFF}, s[{R_WO}:{R_WO+3}], s{S_TMP2} offen{NTW}")

    peel = opt.get("peel", 1)
    kv = [(ld_k, i, h) for i in range(NG) for h in range(2)] + [(ld_v, i, h) for i in range(NG) for h in range(2)]
    wos = [(ld_wo, ii, 0) for ii in range(16)]
    seq = kv + wos if peel else wos + kv
    e(f"s_lshl_b32 s{S_TMP}, s{S_KVH}, 9")
    e(f"s_lshl_b32 s{S_TMP2}, s{S_W}, 6")
    e(f"s_add_u32 s{S_TMP}, s{S_TMP}, s{S_TMP2}")
    e(f"s_mul_i32 s{S_TMP}, s{S_TMP}, 896")
    e(f"s_lshl_b32 s{S_TMP2}, s{S_S}, 8")
    e(f"s_add_u32 s{S_TMP}, s{S_TMP}, s{S_TMP2}")
    e(f"s_sub_u32 s{S_TMP2}, {4096*896}, s{S_TMP}")
    srd(R_WO, S_WO, f"s{S_TMP}", f"s{S_TMP2}")
    e(f"v_mul_u32_u24 v12, {16*896//16}, v10")
    e(f"v_add_lshl_u32 v12, v12, v11, 4")
    e(f"s_cmp_eq_u32 s{S_S}, 3")
    e(f"s_cselect_b32 s{S_NC}, 64, 128")
    e(f"v_lshlrev_b32 v13, 3, v11")
    e(f"v_cmp_le_u32 vcc, s{S_NC}, v13")
    e(f"v_mov_b32 v13, 0x40000000")
    g.nop(1)
    e(f"v_cndmask_b32 v{V_WOFF}, v12, v13, vcc")
    stamp(0)
    if stamps:
        e(f"v_mov_b32 v14, s30")
        e(f"v_mov_b32 v15, s31")
        e(f"buffer_store_dwordx2 v[14:15], v13, s[{R_WS}:{R_WS+3}], 0 offen offset:80")
    bench = opt.get("bench", 0)
    if bench:
        for f, i, h in kv:
            f(i, h)
        for r in range(8):
            e(f"v_mov_b32 v{V_Q+r}, 0x3f9d3e80")
        e("s_branch L_bench")
    W0 = opt.get("w0", 8)
    STEP = opt.get("step", 4)
    b0 = opt.get("b0", 1)
    if b0:
        e("s_barrier")
    e(f"s_cmp_eq_u32 s{S_W}, 0")
    e("s_cbranch_scc1 L_nopre")
    for f, i, h in seq[:W0]:
        f(i, h)
    g.label("L_nopre")
    e("s_waitcnt lgkmcnt(0)")
    e(f"s_add_u32 s{S_E}, s{S_E}, 1")
    e(f"s_addc_u32 s{S_E+1}, s{S_E+1}, 0")
    e(f"s_mov_b32 s{S_TA}, s{S_E}")
    e(f"s_brev_b32 s{S_TB}, s{S_E}")
    e(f"s_xor_b32 s{S_TB}, s{S_TB}, s{S_E+1}")
    e(f"s_cmp_eq_u32 s{S_W}, 0")
    e("s_cbranch_scc1 L_w0w")
    e(f"s_waitcnt vmcnt({W0})")
    e("s_branch L_qc")
    g.label("L_w0w")
    e(f"s_waitcnt vmcnt(0)")
    g.label("L_qc")
    stamp(1)
    QA = 56
    for i in range(14):
        sel = S_SELO if (i & 1) else S_SELE
        bb = 48 + 4 * (i & 1)
        e(f"v_perm_b32 v60, v{40+(i>>1)}, v{40+(i>>1)}, s{sel}")
        for t in range(4):
            e(f"v_and_b32 v{bb+t}, v60, v{V_M+t}")
        g.nop(2)
        csrc = "0" if i == 0 else vr(QA, 4)
        e(f"v_mfma_f32_16x16x32_bf16 {vr(QA,4)}, {vr(V_WQ+4*i,4)}, {vr(bb,4)}, {csrc}")
    e(f"v_and_b32 v12, 7, v{V_LANE}")
    e(f"v_lshlrev_b32 v12, 2, v12")
    e(f"v_lshl_add_u32 v12, v10, 7, v12")
    e(f"s_lshl_b32 s{S_TMP}, s{S_W}, 9")
    e(f"v_add_u32 v12, s{S_TMP}, v12")
    e(f"v_mov_b32 v13, {TK0}")
    e(f"v_mov_b32 v14, 0")
    g.nop(6)
    for r in range(4):
        e(f"ds_write_b32 v12, v{QA+r} offset:{L_QP + r*32}")
    e(f"ds_write_b32 v{V_TKA}, v13")
    e(f"ds_write_b32 v{V_TKA}, v14 offset:4")
    e("s_waitcnt lgkmcnt(0)")
    e("s_barrier")
    e(f"s_cmp_lg_u32 s{S_W}, 0")
    e("s_cbranch_scc1 L_paced")
    e(f"v_lshlrev_b32 v12, 4, v{V_LANE}")
    e(f"v_and_b32 v12, 0x1ff, v12")
    for w in range(8):
        e(f"ds_read_b128 v[{72+4*w}:{75+4*w}], v12 offset:{L_QP + w*512}")
    e(f"s_lshl_b32 s{S_TMP}, s{S_GRP}, 11")
    e(f"s_add_u32 s{S_TMP}, s{S_TMP}, {WS_Q}")
    e(f"s_lshl_b32 s{S_TMP2}, s{S_S}, 9")
    e(f"s_add_u32 s{S_TMP2}, s{S_TMP2}, s{S_TMP}")
    e("s_waitcnt lgkmcnt(0)")
    for w in range(1, 8):
        for c_ in range(4):
            e(f"v_add_f32 v{72+c_}, v{72+c_}, v{72+4*w+c_}")
    e(f"v_cvt_pk_bf16_f32 v40, v72, v73")
    e(f"v_mov_b32 v41, s{S_TA}")
    e(f"v_cvt_pk_bf16_f32 v42, v74, v75")
    e(f"v_mov_b32 v43, s{S_TB}")
    e("s_mov_b32 exec_hi, 0")
    e(f"buffer_store_dwordx4 v[40:43], v12, s[{R_WS}:{R_WS+3}], s{S_TMP2} offen sc1")
    e("s_mov_b64 exec, -1")
    stamp(2)
    e(f"v_lshlrev_b32 v12, 4, v{V_LANE}")
    e(f"s_mov_b32 s{S_CNT}, {SPIN}")
    g.label("L_poll1")
    e(f"buffer_load_dwordx4 v[40:43], v12, s[{R_WS}:{R_WS+3}], s{S_TMP} offen sc1")
    e(f"buffer_load_dwordx4 v[44:47], v12, s[{R_WS}:{R_WS+3}], s{S_TMP} offen offset:1024 sc1")
    e("s_waitcnt vmcnt(0)")
    tagcheck(40, 4)
    pollend("L_poll1")
    e(f"v_mov_b32 v41, v42")
    e(f"v_mov_b32 v45, v46")
    e(f"v_lshlrev_b32 v12, 3, v{V_LANE}")
    e(f"ds_write_b64 v12, v[40:41] offset:{L_Q}")
    e(f"ds_write_b64 v12, v[44:45] offset:{L_Q+512}")
    e("s_waitcnt lgkmcnt(0)")
    e(f"ds_write_b32 v{V_TKA}, v{V_ONE} offset:4")
    stamp(3)
    for f, i, h in seq:
        f(i, h)
    e("s_branch L_go")
    g.label("L_paced")
    e(f"s_mov_b32 s{S_RDY}, 0")

    def chk(lab):
        e(f"s_cmp_lg_u32 s{S_RDY}, 0")
        e(f"s_cbranch_scc1 {lab}")
        e(f"ds_read_b32 v13, v{V_TKA} offset:4")
        e("s_waitcnt lgkmcnt(0)")
        e(f"v_readfirstlane_b32 s{S_RDY}, v13")
        g.nop(4)
        e(f"s_cmp_lg_u32 s{S_RDY}, 0")
        e(f"s_cbranch_scc1 {lab}")
    j = W0
    while j < len(seq):
        chk(f"L_pi{j}")
        e(f"s_waitcnt vmcnt({max(W0-STEP,0)})")
        g.label(f"L_pi{j}")
        for f, i, h in seq[j:j+STEP]:
            f(i, h)
        j += STEP
    e(f"s_mov_b32 s{S_CNT}, {SPIN*16}")
    g.label("L_wflag")
    chk("L_go")
    e(f"s_sub_u32 s{S_CNT}, s{S_CNT}, 1")
    e("s_cbranch_scc0 L_wflag")
    g.label("L_go")
    e(f"v_lshrrev_b32 v12, 3, v11")
    e(f"v_lshlrev_b32 v12, 9, v12")
    e(f"v_lshl_add_u32 v12, v10, 6, v12")
    e(f"v_and_b32 v13, 3, v{V_LANE}")
    e(f"v_lshl_add_u32 v12, v13, 4, v12")
    e(f"ds_read_b128 {vr(V_Q,4)}, v12 offset:{L_Q}")
    e(f"ds_read_b128 {vr(V_Q+4,4)}, v12 offset:{L_Q+256}")
    g.label("L_bench")
    e(f"v_mov_b32 v{V_MC}, 0xff800000")
    e(f"v_mov_b32 v{V_L}, 0")
    for r in range(8):
        e(f"v_mov_b32 v{V_ACC+r}, 0")
    e("s_waitcnt lgkmcnt(0)")
    stamp(4)

    W = 4 * NG - 2

    def tile(first):
        u = g.lab; g.lab += 1
        extra = 16 if (first and not opt.get("bench", 0)) else 0
        for i in range(NG):
            e(f"s_waitcnt vmcnt({W + extra})")
            if i == 0:
                if not first:
                    e(f"s_cmp_eq_u32 s{S_PEND}, 0")
                    e(f"s_cbranch_scc1 L_np{u}")
                    e("s_waitcnt lgkmcnt(0)")
                    e(f"s_mov_b32 s{S_NXT}, s{S_SA}")
                    e(f"s_mov_b32 s{S_PEND}, 0")
                    g.label(f"L_np{u}")
                set_offsets(S_NXT)
                e(f"s_cmp_ge_u32 s{S_NXT}, {ntiles}")
                e(f"s_cbranch_scc1 L_ntk{u}")
                e("s_mov_b64 exec, 1")
                e(f"ds_add_rtn_u32 v{V_TK}, v{V_TKA}, v{V_ONE}")
                e("s_mov_b64 exec, -1")
                g.label(f"L_ntk{u}")
            e(f"v_mfma_f32_16x16x32_bf16 {vr(V_S+4*i,4)}, {vr(V_KR+8*i,4)}, {vr(V_Q,4)}, 0")
            e(f"v_mfma_f32_16x16x32_bf16 {vr(V_S+4*i,4)}, {vr(V_KR+8*i+4,4)}, {vr(V_Q+4,4)}, {vr(V_S+4*i,4)}")
            ld_k(i, 0); ld_k(i, 1)
        e("s_waitcnt lgkmcnt(0)")
        e(f"v_readfirstlane_b32 s{S_N2}, v{V_TK}")
        g.nop(4)
        e(f"s_cmp_ge_u32 s{S_NXT}, {ntiles}")
        e(f"s_cbranch_scc1 L_inv{u}")
        e(f"s_cmp_ge_u32 s{S_N2}, {SW}")
        e(f"s_cbranch_scc1 L_pool{u}")
        e(f"s_add_u32 s{S_N2}, s{S_N2}, s{S_SB}")
        e(f"s_branch L_tkd{u}")
        g.label(f"L_pool{u}")
        if SW < 128:
            e(f"s_mov_b32 s{S_SA}, 1")
            e(f"s_atomic_add s{S_SA}, s[{S_CB}:{S_CB+1}], 0 glc")
            e(f"s_mov_b32 s{S_PEND}, 1")
            e(f"s_branch L_tkd{u}")
        g.label(f"L_inv{u}")
        e(f"s_mov_b32 s{S_N2}, {ntiles}")
        g.label(f"L_tkd{u}")
        for i in range(NG):
            s = V_S + 4 * i
            p = V_P + i
            e(f"v_mov_b32_dpp v{p}, v{s} quad_perm:[0,0,0,0] row_mask:0xf bank_mask:0xf")
            for k in range(1, 4):
                e(f"v_add_f32_dpp v{p}, v{s+k}, v{p} quad_perm:[{k},{k},{k},{k}] row_mask:0xf bank_mask:0xf")
        e(f"v_max3_f32 v10, v{V_P}, v{V_P+1}, v{V_P+2}")
        e(f"v_max_f32 v10, v10, v{V_P+3}")
        e(f"v_mov_b32 v11, v10")
        g.nop(2)
        e(f"v_permlane32_swap_b32 v10, v11")
        g.nop(1)
        e(f"v_max_f32 v10, v10, v11")
        e(f"v_mov_b32 v11, v10")
        g.nop(2)
        e(f"v_permlane16_swap_b32 v10, v11")
        g.nop(1)
        e(f"v_max_f32 v10, v10, v11")
        e(f"v_mul_f32 v10, s{S_C}, v10")
        e(f"v_max_f32 v10, v10, v{V_MC}")
        e(f"v_sub_f32 v11, v{V_MC}, v10")
        e(f"v_exp_f32 v11, v11")
        e(f"v_mov_b32 v{V_MC}, v10")
        for i in range(NG):
            e(f"v_fma_f32 v{V_P+i}, v{V_P+i}, s{S_C}, -v10")
        for i in range(NG):
            e(f"v_exp_f32 v{V_P+i}, v{V_P+i}")
        for r in range(8):
            e(f"v_mul_f32 v{V_ACC+r}, v{V_ACC+r}, v11")
        e(f"v_mul_f32 v{V_L}, v{V_L}, v11")
        for i in range(NG):
            s = V_S + 4 * i
            e(f"v_cvt_pk_bf16_f32 v12, v{V_P+i}, v{V_P+i}")
            e(f"v_add_f32 v{V_L}, v{V_L}, v{V_P+i}")
            for t in range(4):
                e(f"v_and_b32 v{s+t}, v12, v{V_M+t}")
        g.nop(2)
        for i in range(NG):
            e(f"s_waitcnt vmcnt({W + extra})")
            for h in range(2):
                e(f"v_mfma_f32_16x16x32_bf16 {vr(V_ACC+4*h,4)}, {vr(V_VR+8*i+4*h,4)}, {vr(V_S+4*i,4)}, {vr(V_ACC+4*h,4)}")
            ld_v(i, 0); ld_v(i, 1)
        e(f"s_mov_b32 s{S_CUR}, s{S_NXT}")
        e(f"s_mov_b32 s{S_NXT}, s{S_N2}")

    if LW < 8 and not hyb:
        e(f"s_cmp_ge_u32 s{S_W}, {LW}")
        e("s_cbranch_scc1 L_loopdone")
    if peel:
        tile(True)
        e(f"s_cmp_ge_u32 s{S_CUR}, {ntiles}")
        e("s_cbranch_scc1 L_loopdone")
    g.l.append(".p2align 6")
    g.label("L_loop")
    tile(False)
    e(f"s_cmp_lt_u32 s{S_CUR}, {ntiles}")
    e("s_cbranch_scc1 L_loop")
    g.label("L_loopdone")
    e("s_waitcnt vmcnt(0) lgkmcnt(0)")
    stamp(5)
    if bench:
        e("s_endpgm")

    e(f"v_lshrrev_b32 v10, 4, v{V_LANE}")
    e(f"v_and_b32 v11, 15, v{V_LANE}")
    e(f"v_mov_b32 v12, v{V_L}")
    g.nop(2)
    e(f"v_permlane32_swap_b32 v{V_L}, v12")
    g.nop(1)
    e(f"v_add_f32 v{V_L}, v{V_L}, v12")
    e(f"v_mov_b32 v12, v{V_L}")
    g.nop(2)
    e(f"v_permlane16_swap_b32 v{V_L}, v12")
    g.nop(1)
    e(f"v_add_f32 v{V_L}, v{V_L}, v12")
    e(f"v_lshrrev_b32 v12, 3, v11")
    e(f"s_lshl_b32 s{S_TMP}, s{S_W}, 4")
    e(f"v_lshlrev_b32 v13, 3, v12")
    e(f"v_add_u32 v13, s{S_TMP}, v13")
    e(f"ds_write_b64 v13, v[{V_MC}:{V_L}] offset:{L_ML}")
    e(f"v_lshlrev_b32 v13, 10, v12")
    e(f"v_lshl_add_u32 v13, v10, 7, v13")
    e(f"v_and_b32 v14, 7, v{V_LANE}")
    e(f"v_lshl_add_u32 v13, v14, 2, v13")
    e(f"s_lshl_b32 s{S_TMP}, s{S_W}, 11")
    e(f"v_add_u32 v13, s{S_TMP}, v13")
    g.nop(8)
    for h in range(2):
        for r in range(4):
            e(f"ds_write_b32 v13, v{V_ACC+4*h+r} offset:{L_O + h*512 + r*32}")
    e("s_waitcnt lgkmcnt(0)")
    if opt.get("fine", 0): stamp(11)
    e("s_barrier")
    if opt.get("fine", 0): stamp(12)
    e(f"s_cmp_ge_u32 s{S_W}, 4")
    e("s_cbranch_scc1 L_comb_done")
    e(f"v_lshlrev_b32 v12, 4, v{V_TID}")
    e(f"v_lshrrev_b32 v10, 7, v{V_TID}")
    e(f"v_lshlrev_b32 v11, 4, v10")
    e(f"s_lshl_b32 s{S_TMP}, s{S_GRP}, 15")
    e(f"s_add_u32 s{S_TMP}, s{S_TMP}, {WS_P}")

    def slot_addr(k):
        e(f"s_add_u32 s{S_TMP2}, s{S_S}, {k}")
        e(f"s_and_b32 s{S_TMP2}, s{S_TMP2}, 3")
        e(f"s_lshl_b32 s{S_TMP2}, s{S_TMP2}, 13")
        e(f"s_add_u32 s{S_TMP2}, s{S_TMP2}, s{S_TMP}")

    def p2_loads(k):
        slot_addr(k)
        e(f"buffer_load_dwordx4 v[{72+8*k}:{75+8*k}], v12, s[{R_WS}:{R_WS+3}], s{S_TMP2} offen offset:64 sc1")
        e(f"buffer_load_dwordx4 v[{76+8*k}:{79+8*k}], v11, s[{R_WS}:{R_WS+3}], s{S_TMP2} offen sc1")
    for k in range(1, 4):
        p2_loads(k)
    e(f"v_lshlrev_b32 v13, 3, v10")
    e(f"v_lshlrev_b32 v14, 3, v{V_TID}")
    for w in range(8):
        e(f"ds_read_b64 v[{40+2*w}:{41+2*w}], v13 offset:{L_ML + w*16}")
    for w in range(8):
        e(f"ds_read_b64 v[{104+2*w}:{105+2*w}], v14 offset:{L_O + w*2048}")
    e("s_waitcnt lgkmcnt(0)")
    e("v_max3_f32 v76, v40, v42, v44")
    e("v_max3_f32 v76, v76, v46, v48")
    e("v_max3_f32 v76, v76, v50, v52")
    e("v_max_f32 v76, v76, v54")
    for w in range(8):
        e(f"v_sub_f32 v{40+2*w}, v{40+2*w}, v76")
    for w in range(8):
        e(f"v_exp_f32 v{40+2*w}, v{40+2*w}")
    g.nop(1)
    e("v_mul_f32 v78, v40, v41")
    e("v_mul_f32 v72, v40, v104")
    e("v_mul_f32 v74, v40, v105")
    for w in range(1, 8):
        e(f"v_fmac_f32 v78, v{40+2*w}, v{41+2*w}")
        e(f"v_fmac_f32 v72, v{40+2*w}, v{104+2*w}")
        e(f"v_fmac_f32 v74, v{40+2*w}, v{105+2*w}")
    e(f"v_mov_b32 v73, s{S_TA}")
    e(f"v_mov_b32 v75, s{S_TB}")
    e(f"v_mov_b32 v77, s{S_TA}")
    e(f"v_mov_b32 v79, s{S_TB}")
    slot_addr(0)
    e(f"buffer_store_dwordx4 v[72:75], v12, s[{R_WS}:{R_WS+3}], s{S_TMP2} offen offset:64 sc1")
    e(f"v_and_b32 v13, 127, v{V_TID}")
    e(f"v_cmp_eq_u32 vcc, 0, v13")
    e(f"s_and_saveexec_b64 s[{S_EX}:{S_EX+1}], vcc")
    e("s_cbranch_execz L_noml")
    e(f"buffer_store_dwordx4 v[76:79], v11, s[{R_WS}:{R_WS+3}], s{S_TMP2} offen sc1")
    g.label("L_noml")
    e(f"s_mov_b64 exec, -1")
    stamp(6)
    e(f"s_mov_b32 s{S_CNT}, {SPIN}")
    e(f"s_mov_b32 s{S_VM}, 1")
    e("s_branch L_p2chk")
    g.label("L_poll2")
    for k in range(1, 4):
        e(f"s_bitcmp1_b32 s{S_VM}, {k}")
        e(f"s_cbranch_scc1 L_p2s{k}")
        p2_loads(k)
        g.label(f"L_p2s{k}")
    g.label("L_p2chk")
    e("s_waitcnt vmcnt(0)")
    for k in range(1, 4):
        tagcheck(72+8*k, 4)
        e("s_cmp_eq_u64 vcc, 0")
        e(f"s_cselect_b32 s{S_TMP2}, {1<<k}, 0")
        e(f"s_or_b32 s{S_VM}, s{S_VM}, s{S_TMP2}")
    e(f"s_sub_u32 s{S_CNT}, s{S_CNT}, 1")
    e("s_cbranch_scc1 L_poll2_done")
    e(f"s_cmp_lg_u32 s{S_VM}, 15")
    e("s_cbranch_scc1 L_poll2")
    g.label("L_poll2_done")
    stamp(7)
    e("v_max3_f32 v13, v76, v84, v92")
    e("v_max_f32 v13, v13, v100")
    for s_ in range(4):
        e(f"v_sub_f32 v{76+8*s_}, v{76+8*s_}, v13")
    for s_ in range(4):
        e(f"v_exp_f32 v{76+8*s_}, v{76+8*s_}")
    g.nop(1)
    e("v_mul_f32 v14, v76, v78")
    e("v_mul_f32 v15, v76, v72")
    e("v_mul_f32 v13, v76, v74")
    for s_ in range(1, 4):
        e(f"v_fmac_f32 v14, v{76+8*s_}, v{78+8*s_}")
        e(f"v_fmac_f32 v15, v{76+8*s_}, v{72+8*s_}")
        e(f"v_fmac_f32 v13, v{76+8*s_}, v{74+8*s_}")
    e("v_rcp_f32 v14, v14")
    g.nop(1)
    e("v_mul_f32 v15, v15, v14")
    e("v_mul_f32 v13, v13, v14")
    e("v_cvt_pk_bf16_f32 v15, v15, v13")
    e(f"v_lshlrev_b32 v13, 2, v{V_TID}")
    e(f"ds_write_b32 v13, v15 offset:{L_OB}")
    e("s_waitcnt lgkmcnt(0)")
    g.label("L_comb_done")
    e("s_barrier")
    if opt.get("rep", 0):
        e(f"s_mov_b32 s23, 0")
        stamp(11)
        g.label("L_rep")
    e(f"v_lshrrev_b32 v10, 4, v{V_LANE}")
    e(f"s_lshl_b32 s{S_TMP}, s{S_W}, 7")
    e(f"v_lshlrev_b32 v12, 5, v10")
    e(f"v_add_u32 v12, s{S_TMP}, v12")
    e(f"ds_read_b128 v[40:43], v12 offset:{L_OB}")
    e(f"ds_read_b128 v[44:47], v12 offset:{L_OB+16}")
    e("s_waitcnt lgkmcnt(0)")
    for i in range(16):
        sel = S_SELO if (i & 1) else S_SELE
        bb = 48 + 4 * (i & 1)
        e(f"v_perm_b32 v60, v{40+(i>>1)}, v{40+(i>>1)}, s{sel}")
        for t in range(4):
            e(f"v_and_b32 v{bb+t}, v60, v{V_M+t}")
        g.nop(2)
        csrc = "0" if i == 0 else vr(QA, 4)
        e(f"v_mfma_f32_16x16x32_bf16 {vr(QA,4)}, {vr(V_WO+4*i,4)}, {vr(bb,4)}, {csrc}")
    e(f"v_and_b32 v12, 7, v{V_LANE}")
    e(f"v_lshlrev_b32 v12, 2, v12")
    e(f"v_lshl_add_u32 v12, v10, 7, v12")
    e(f"s_lshl_b32 s{S_TMP}, s{S_W}, 9")
    e(f"v_add_u32 v12, s{S_TMP}, v12")
    g.nop(8)
    for r in range(4):
        e(f"ds_write_b32 v12, v{QA+r} offset:{L_QP + r*32}")
    e("s_waitcnt lgkmcnt(0)")
    if opt.get("rep", 0):
        e("s_cmp_lg_u32 s23, 0")
        e("s_cbranch_scc1 L_rep2")
        stamp(12)
        e("s_mov_b32 s23, 1")
        e("s_branch L_rep")
        g.label("L_rep2")
        stamp(13)
    e("s_barrier")
    e(f"s_cmp_lg_u32 s{S_W}, 0")
    e("s_cbranch_scc1 L_end")
    e(f"v_lshlrev_b32 v13, 1, v{V_LANE}")
    e(f"v_cmp_gt_u32 vcc, s{S_NC}, v13")
    e(f"s_and_b64 exec, exec, vcc")
    e(f"v_lshlrev_b32 v14, 3, v{V_LANE}")
    for w in range(8):
        e(f"ds_read_b64 v[{40+2*w}:{41+2*w}], v14 offset:{L_QP + w*512}")
    e(f"s_lshl_b32 s{S_TMP}, s{S_FIN}, 13")
    e(f"s_add_u32 s{S_TMP}, s{S_TMP}, {WS_F}")
    e(f"s_lshl_b32 s{S_TMP2}, s{S_KVH}, 10")
    e(f"s_add_u32 s{S_TMP2}, s{S_TMP2}, s{S_TMP}")
    e(f"v_lshlrev_b32 v12, 4, v{V_LANE}")
    e("s_waitcnt lgkmcnt(0)")
    e(f"v_mov_b32 v72, v40")
    e(f"v_mov_b32 v74, v41")
    for w in range(1, 8):
        e(f"v_add_f32 v72, v72, v{40+2*w}")
        e(f"v_add_f32 v74, v74, v{41+2*w}")
    e(f"v_mov_b32 v73, s{S_TA}")
    e(f"v_mov_b32 v75, s{S_TB}")
    e(f"s_cmp_eq_u32 s{S_KVH}, s{S_KVR}")
    e("s_cbranch_scc1 L_red")
    e(f"buffer_store_dwordx4 v[72:75], v12, s[{R_WS}:{R_WS+3}], s{S_TMP2} offen sc1")
    stamp(8)
    e("s_endpgm")
    g.label("L_red")
    stamp(8)
    e(f"s_mov_b32 s{S_CNT}, {SPIN}")
    e(f"s_mov_b32 s{S_VM}, 1")
    g.label("L_poll3")
    for k in range(1, 8):
        e(f"s_bitcmp1_b32 s{S_VM}, {k}")
        e(f"s_cbranch_scc1 L_p3s{k}")
        e(f"s_add_u32 s{S_TMP2}, s{S_KVH}, {k}")
        e(f"s_and_b32 s{S_TMP2}, s{S_TMP2}, 7")
        e(f"s_lshl_b32 s{S_TMP2}, s{S_TMP2}, 10")
        e(f"s_add_u32 s{S_TMP2}, s{S_TMP2}, s{S_TMP}")
        e(f"buffer_load_dwordx4 v[{72+4*k}:{75+4*k}], v12, s[{R_WS}:{R_WS+3}], s{S_TMP2} offen sc1")
        g.label(f"L_p3s{k}")
    e("s_waitcnt vmcnt(0)")
    for k in range(1, 8):
        tagcheck(72+4*k, 2)
        e("s_cmp_eq_u64 vcc, 0")
        e(f"s_cselect_b32 s{S_TMP2}, {1<<k}, 0")
        e(f"s_or_b32 s{S_VM}, s{S_VM}, s{S_TMP2}")
    e(f"s_sub_u32 s{S_CNT}, s{S_CNT}, 1")
    e("s_cbranch_scc1 L_poll3_done")
    e(f"s_cmp_lg_u32 s{S_VM}, 255")
    e("s_cbranch_scc1 L_poll3")
    g.label("L_poll3_done")
    for k in range(1, 8):
        e(f"v_add_f32 v72, v72, v{72+4*k}")
        e(f"v_add_f32 v74, v74, v{74+4*k}")
    e("v_cvt_pk_bf16_f32 v40, v72, v74")
    e(f"s_mul_i32 s{S_TMP}, s{S_B}, 1792")
    e(f"s_mul_i32 s{S_TMP2}, s{S_AB}, 896")
    e(f"s_add_u32 s{S_TMP}, s{S_TMP}, s{S_TMP2}")
    e(f"s_lshl_b32 s{S_TMP2}, s{S_S}, 8")
    e(f"s_add_u32 s{S_TMP}, s{S_TMP}, s{S_TMP2}")
    e(f"v_lshlrev_b32 v12, 2, v{V_LANE}")
    e(f"buffer_store_dword v40, v12, s[{R_OUT}:{R_OUT+3}], s{S_TMP} offen")
    stamp(9)
    e(f"s_cmp_lg_u32 s{S_S}, 0")
    e("s_cbranch_scc1 L_end")
    e(f"s_lshr_b32 s{S_TMP}, s2, 5")
    e(f"s_lshl_b32 s{S_TMP}, s{S_TMP}, 7")
    e(f"v_mov_b32 v12, s{S_TMP}")
    e(f"v_mov_b32 v40, s{S_E}")
    e(f"v_mov_b32 v41, s{S_E+1}")
    e("s_mov_b64 exec, 1")
    e(f"buffer_store_dwordx2 v[40:41], v12, s[{R_WS}:{R_WS+3}], 0 offen offset:{WS_E} sc1")
    g.label("L_end")
    e("s_endpgm")
    g.l.append('.section .rodata,"a"')
    g.l.append(".p2align 6")
    g.l.append(f".amdhsa_kernel {KN}")
    g.l.append("  .amdhsa_next_free_vgpr 256")
    g.l.append("  .amdhsa_next_free_sgpr 102")
    g.l.append("  .amdhsa_accum_offset 256")
    g.l.append("  .amdhsa_group_segment_fixed_size 0")
    g.l.append("  .amdhsa_kernarg_size 104")
    g.l.append("  .amdhsa_user_sgpr_count 2")
    g.l.append("  .amdhsa_user_sgpr_kernarg_segment_ptr 1")
    g.l.append("  .amdhsa_system_sgpr_workgroup_id_x 1")
    g.l.append(".end_amdhsa_kernel")
    return "\n".join(g.l) + "\n"


if __name__ == "__main__":
    out = sys.argv[1]
    opt = {}
    for a in sys.argv[2:]:
        k, v = a.split("=")
        opt[k] = int(v, 0)
    open(out, "w").write(gen(opt))
```

```python
import sys
from gen import G, vr, HEADER, KN

WS_E = 0x0
WS_Q = 0x4000
WS_F = 0x40000
WS_P = 0x100000
WS_T = 0x400000
WS_C = 0x800000
WS_SIZE = 0x1000000

L_QP = 0
L_Q = 4096
L_ML = 5120
L_TK = 5248
L_OB = 5376
L_O = 8192
LDS_MIN = 8192 + 16384

S_X, S_K, S_V, S_WQ, S_WO = 4, 6, 8, 10, 12
S_OUT, S_DBG, S_WS = 44, 46, 48
S_KVH, S_S, S_B, S_AB, S_W, S_GRP = 14, 15, 16, 17, 18, 19
R_K, R_V, R_W, R_X, R_WS, R_OUT = 52, 56, 60, 68, 72, 80
S_T0 = 84
S_CNT = 88
S_TMP, S_TMP2, S_TMP3 = 89, 90, 91
S_C = 92
S_SELE, S_SELO = 93, 94
S_EX = 96
S_KVR = 3
S_ST = 64
S_FIN = 50
S_TA, S_TB = 76, 77
S_E = 78
S_CUR, S_NXT = 98, 99
S_N2 = 51
S_SA = 100
S_PEND = 101
S_CB = 66
S_ROT = 42
S_NC = 20
S_RDY = 21
S_VM = 22
R_WO = 36
S_SB = 43

V_TID, V_LANE, V_KOFF, V_VOFF = 0, 1, 2, 3
V_M = 4
V_MC, V_L = 8, 9
V_Q = 16
V_ACC = 24
V_P = 32
V_TK, V_TKA, V_ONE, V_WOFF = 36, 37, 38, 39
V_S = 40
V_TAG = 61


def gen(opt):
    g = G(opt)
    e, c = g.e, g.c
    NG = 4
    NT = " nt" if opt.get("nt", 1) else ""
    NTW = " nt" if opt.get("ntw", 0) else ""
    stamps = opt.get("stamps", 0)
    pre = opt.get("pre", 8)
    spread = opt.get("spread", 1)
    SW = opt.get("sw", 110)
    cstride = opt.get("cstride", 4096)
    lds = max(opt.get("lds", 0), LDS_MIN)
    SPIN = opt.get("spin", 0x20000)
    cpf = opt.get("cpf", 0)
    tile_bytes = NG * 2048
    ntiles = 8192 // (4 * NG)
    V_KR = 72
    V_VR = V_KR + 8 * NG
    V_WO = V_VR + 8 * NG
    V_WQ = 200

    dbgst = opt.get("dbgst", 0)

    def stamp(idx):
        if dbgst and idx in (0, 1, 3, 4, 5, 7, 9):
            e(f"s_memrealtime s[{S_ST}:{S_ST+1}]")
            e("s_waitcnt lgkmcnt(0)")
            if idx == 0:
                e(f"s_not_b32 s{S_ST}, s30")
            e(f"v_mov_b32 v14, s{S_ST}")
            e(f"v_mov_b32 v13, {idx*4}")
            e(f"s_mov_b32 s24, s{S_DBG}")
            e(f"s_mov_b32 s25, s{S_DBG+1}")
            e(f"s_mov_b32 s26, 256")
            e(f"s_mov_b32 s27, 0x00020000")
            e(f"s_mov_b64 s[28:29], exec")
            e(f"s_mov_b64 exec, 1")
            e(f"buffer_atomic_umax v14, v13, s[24:27], 0 offen")
            e(f"s_mov_b64 exec, s[28:29]")
            return
        if not stamps:
            return
        e(f"s_memrealtime s[{S_ST}:{S_ST+1}]")
        e("s_waitcnt lgkmcnt(0)")
        e(f"v_mov_b32 v14, s{S_ST}")
        e(f"v_mov_b32 v15, s{S_ST+1}")
        e(f"v_mov_b32 v13, s95")
        e(f"buffer_store_dwordx2 v[14:15], v13, s[{R_WS}:{R_WS+3}], 0 offen offset:{idx*8}")

    def srd(R, base, off_s, nrec):
        if off_s is None:
            e(f"s_mov_b32 s{R}, s{base}")
            e(f"s_mov_b32 s{R+1}, s{base+1}")
        else:
            e(f"s_add_u32 s{R}, s{base}, {off_s}")
            e(f"s_addc_u32 s{R+1}, s{base+1}, 0")
        e(f"s_mov_b32 s{R+2}, {nrec}")
        e(f"s_mov_b32 s{R+3}, 0x00020000")

    def tagcheck(first_reg, n):
        e(f"v_cmp_ne_u32 vcc, s{S_TA}, v{first_reg+1}")
        for k in range(1, n):
            tg = S_TB if (k & 1) else S_TA
            e(f"v_cmp_ne_u32 s[{S_EX}:{S_EX+1}], s{tg}, v{first_reg+2*k+1}")
            e(f"s_or_b64 vcc, vcc, s[{S_EX}:{S_EX+1}]")

    def pollend(lab):
        e(f"s_sub_u32 s{S_CNT}, s{S_CNT}, 1")
        e(f"s_cbranch_scc1 {lab}_done")
        e("s_cmp_lg_u64 vcc, 0")
        e(f"s_cbranch_scc1 {lab}")
        g.label(f"{lab}_done")

    g.l.append(HEADER.rstrip("\n"))
    g.l.append(f"; @launch grid=(256,1,1) block=(512,1,1) lds={lds}")
    g.l.append('.amdgcn_target "amdgcn-amd-amdhsa--gfx950"')
    g.l.append(".text")
    g.l.append(f".globl {KN}")
    g.l.append(".p2align 8")
    g.l.append(f".type {KN},@function")
    g.l.append(f"{KN}:")
    if stamps or opt.get("dbgst", 0):
        e("s_memrealtime s[30:31]")
    e("s_cmp_ge_u32 s2, 256")
    e("s_cbranch_scc1 L_end")
    e("s_load_dwordx8 s[20:27], s[0:1], 0")
    e("s_load_dwordx2 s[28:29], s[0:1], 32")
    e("s_load_dwordx8 s[32:39], s[0:1], 40")
    e("s_load_dwordx2 s[40:41], s[0:1], 72")
    e(f"s_load_dwordx4 s[{S_OUT}:{S_OUT+3}], s[0:1], 80")
    e(f"s_load_dwordx2 s[{S_WS}:{S_WS+1}], s[0:1], 96")
    e(f"v_lshrrev_b32 v10, 6, v0")
    e(f"v_and_b32 v{V_LANE}, 63, v0")
    e(f"v_readfirstlane_b32 s{S_W}, v10")
    e(f"s_lshr_b32 s{S_S}, s2, 3")
    e(f"s_and_b32 s{S_S}, s{S_S}, 3")
    e(f"s_and_b32 s{S_KVH}, s2, 7")
    if spread:
        e(f"s_and_b32 s{S_TMP}, s{S_S}, 1")
        e(f"s_lshr_b32 s{S_TMP2}, s{S_S}, 1")
        e(f"s_lshl_b32 s{S_TMP2}, s{S_TMP2}, 2")
        e(f"s_add_u32 s{S_TMP}, s{S_TMP}, s{S_TMP2}")
        e(f"s_sub_u32 s{S_KVH}, s{S_KVH}, s{S_TMP}")
        e(f"s_and_b32 s{S_KVH}, s{S_KVH}, 7")
    e(f"s_lshr_b32 s{S_B}, s2, 5")
    e(f"s_and_b32 s{S_B}, s{S_B}, 3")
    e(f"s_lshr_b32 s{S_AB}, s2, 7")
    e(f"s_lshr_b32 s{S_TMP}, s2, 5")
    e(f"s_lshl_b32 s{S_GRP}, s{S_TMP}, 3")
    e(f"s_or_b32 s{S_GRP}, s{S_GRP}, s{S_KVH}")
    e(f"s_lshl_b32 s{S_FIN}, s{S_TMP}, 2")
    e(f"s_or_b32 s{S_FIN}, s{S_FIN}, s{S_S}")
    e(f"s_and_b32 s{S_KVR}, s{S_FIN}, 7")
    e(f"s_lshl_b32 s{S_TMP3}, s{S_TMP}, 7")
    e(f"s_mov_b32 s{S_C}, 0x3db8aa3b")
    e(f"s_mov_b32 s{S_SELE}, 0x01000100")
    e(f"s_mov_b32 s{S_SELO}, 0x03020302")
    e(f"v_lshrrev_b32 v10, 4, v{V_LANE}")
    e(f"v_and_b32 v11, 15, v{V_LANE}")
    e(f"v_bfe_u32 v12, v{V_LANE}, 2, 2")
    e(f"v_lshlrev_b32 v12, 9, v12")
    e(f"v_lshl_add_u32 v12, v10, 6, v12")
    e(f"v_and_b32 v13, 3, v{V_LANE}")
    e(f"v_lshl_add_u32 v{V_KOFF}, v13, 4, v12")
    e(f"v_lshlrev_b32 v12, 9, v10")
    e(f"v_lshl_add_u32 v{V_VOFF}, v11, 4, v12")
    e(f"v_and_b32 v12, 1, v{V_LANE}")
    e(f"v_lshlrev_b32 v12, 4, v12")
    e(f"v_mov_b32 v13, 0xffff")
    e(f"v_lshlrev_b32 v13, v12, v13")
    e(f"v_bfe_u32 v12, v{V_LANE}, 1, 2")
    for t in range(4):
        e(f"v_cmp_eq_u32 vcc, {t}, v12")
        g.nop(2)
        e(f"v_cndmask_b32 v{V_M+t}, 0, v13, vcc")
    e("s_waitcnt lgkmcnt(0)")
    e(f"s_add_u32 s{S_ST}, s{S_WS}, s{S_TMP3}")
    e(f"s_addc_u32 s{S_ST+1}, s{S_WS+1}, 0")
    e(f"s_load_dwordx2 s[{S_E}:{S_E+1}], s[{S_ST}:{S_ST+1}], {WS_E}")
    e(f"s_cmp_eq_u32 s{S_AB}, 0")
    for i, dst in enumerate([S_X, S_K, S_V, S_WQ, S_WO]):
        e(f"s_cselect_b64 s[{dst}:{dst+1}], s[{20+2*i}:{21+2*i}], s[{32+2*i}:{33+2*i}]")
    srd(R_X, S_X, None, "3584")
    e(f"s_mul_i32 s{S_TMP}, s{S_W}, {56*8192}")
    e(f"s_lshl_b32 s{S_TMP2}, s{S_KVH}, 10")
    e(f"s_add_u32 s{S_TMP}, s{S_TMP}, s{S_TMP2}")
    e(f"s_lshl_b32 s{S_TMP2}, s{S_S}, 8")
    e(f"s_add_u32 s{S_TMP}, s{S_TMP}, s{S_TMP2}")
    e(f"s_sub_u32 s{S_TMP2}, {448*8192}, s{S_TMP}")
    srd(R_W, S_WQ, f"s{S_TMP}", f"s{S_TMP2}")
    e(f"s_mul_i32 s{S_TMP}, s{S_B}, 896")
    e(f"s_mul_i32 s{S_TMP2}, s{S_W}, 112")
    e(f"s_add_u32 s{S_TMP}, s{S_TMP}, s{S_TMP2}")
    e(f"v_mul_u32_u24 v12, 28, v10")
    e(f"buffer_load_dwordx4 v[40:43], v12, s[{R_X}:{R_X+3}], s{S_TMP} offen")
    e(f"buffer_load_dwordx4 v[44:47], v12, s[{R_X}:{R_X+3}], s{S_TMP} offen offset:16")
    e(f"v_mul_u32_u24 v12, {14*8192//16}, v10")
    e(f"v_add_lshl_u32 v12, v12, v11, 4")
    e(f"s_mov_b32 s{S_TMP}, 0")
    for i in range(14):
        if not opt.get("noq", 0): e(f"buffer_load_dwordx4 {vr(V_WQ+4*i,4)}, v12, s[{R_W}:{R_W+3}], s{S_TMP} offen{NTW}")
        if i < 13:
            e(f"s_add_u32 s{S_TMP}, s{S_TMP}, 8192")
    e(f"s_lshl_b32 s{S_TMP}, s{S_B}, 3")
    e(f"s_or_b32 s{S_TMP}, s{S_TMP}, s{S_KVH}")
    e(f"s_lshl_b32 s{S_TMP}, s{S_TMP}, 22")
    srd(R_K, S_K, f"s{S_TMP}", "0x400000")
    srd(R_V, S_V, f"s{S_TMP}", "0x400000")
    srd(R_WS, S_WS, None, hex(WS_SIZE))
    srd(R_OUT, S_OUT, None, "7168")
    e(f"s_mul_i32 s{S_TMP3}, s{S_GRP}, {cstride}")
    e(f"s_add_u32 s{S_TMP3}, s{S_TMP3}, {WS_C}")
    e(f"s_add_u32 s{S_CB}, s{S_WS}, s{S_TMP3}")
    e(f"s_addc_u32 s{S_CB+1}, s{S_WS+1}, 0")
    if stamps:
        e(f"s_lshl_b32 s95, s2, 11")
        e(f"s_lshl_b32 s{S_TMP}, s{S_W}, 8")
        e(f"s_add_u32 s95, s95, s{S_TMP}")
        e(f"s_add_u32 s95, s95, {WS_T}")
    e(f"v_mov_b32 v{V_TKA}, {L_TK}")
    e(f"v_mov_b32 v{V_ONE}, 1")
    if SW < 128:
        e(f"s_or_b32 s{S_TMP}, s{S_S}, s{S_W}")
        e(f"s_cmp_lg_u32 s{S_TMP}, 0")
        e("s_cbranch_scc1 L_noinit")
        e(f"v_mov_b32 v12, s{S_TMP3}")
        e(f"v_mov_b32 v13, {4*SW}")
        e(f"s_mov_b64 exec, 1")
        e(f"buffer_store_dword v13, v12, s[{R_WS}:{R_WS+3}], 0 offen sc1")
        e(f"s_mov_b64 exec, -1")
        g.label("L_noinit")
    e(f"s_mul_i32 s{S_SB}, s{S_S}, {SW}")
    e(f"s_add_u32 s{S_CUR}, s{S_SB}, s{S_W}")
    LW = opt.get("lw", 4)
    hyb = opt.get("hyb", 1)
    if hyb:
        e(f"s_add_u32 s{S_NXT}, s{S_CUR}, 8")
        e(f"s_cmp_ge_u32 s{S_W}, {LW}")
        e(f"s_cselect_b32 s{S_NXT}, {ntiles}, s{S_NXT}")
        TK0 = 8 + LW
    else:
        e(f"s_add_u32 s{S_NXT}, s{S_CUR}, {LW}")
        if LW < 8:
            e(f"s_cmp_ge_u32 s{S_W}, {LW}")
            e(f"s_cselect_b32 s{S_CUR}, {ntiles}, s{S_CUR}")
            e(f"s_cselect_b32 s{S_NXT}, {ntiles}, s{S_NXT}")
        TK0 = 2 * LW
    e(f"s_mov_b32 s{S_PEND}, 0")

    def set_offsets(sidx):
        e(f"s_lshl_b32 s{S_T0}, s{sidx}, 13")
        e(f"s_add_u32 s{S_T0+1}, s{S_T0}, 4096")

    set_offsets(S_CUR)

    def ld_k(i, h):
        e(f"buffer_load_dwordx4 {vr(V_KR+8*i+4*h,4)}, v{V_KOFF}, s[{R_K}:{R_K+3}], s{S_T0+(i>>1)} offen offset:{(i&1)*2048+h*256}{NT}")

    def ld_v(i, h):
        e(f"buffer_load_dwordx4 {vr(V_VR+8*i+4*h,4)}, v{V_VOFF}, s[{R_V}:{R_V+3}], s{S_T0+(i>>1)} offen offset:{(i&1)*2048+h*256}{NT}")

    def ld_wo(ii, _):
        e(f"s_mov_b32 s{S_TMP2}, {ii*896}")
        e(f"buffer_load_dwordx4 {vr(V_WO+4*ii,4)}, v{V_WOFF}, s[{R_WO}:{R_WO+3}], s{S_TMP2} offen{NTW}")

    peel = opt.get("peel", 1)
    kv = [(ld_k, i, h) for i in range(NG) for h in range(2)] + [(ld_v, i, h) for i in range(NG) for h in range(2)]
    wos = [(ld_wo, ii, 0) for ii in range(16)]
    seq = kv + wos if peel else wos + kv
    e(f"s_lshl_b32 s{S_TMP}, s{S_KVH}, 9")
    e(f"s_lshl_b32 s{S_TMP2}, s{S_W}, 6")
    e(f"s_add_u32 s{S_TMP}, s{S_TMP}, s{S_TMP2}")
    e(f"s_mul_i32 s{S_TMP}, s{S_TMP}, 896")
    e(f"s_lshl_b32 s{S_TMP2}, s{S_S}, 8")
    e(f"s_add_u32 s{S_TMP}, s{S_TMP}, s{S_TMP2}")
    e(f"s_sub_u32 s{S_TMP2}, {4096*896}, s{S_TMP}")
    srd(R_WO, S_WO, f"s{S_TMP}", f"s{S_TMP2}")
    e(f"v_mul_u32_u24 v12, {16*896//16}, v10")
    e(f"v_add_lshl_u32 v12, v12, v11, 4")
    e(f"s_cmp_eq_u32 s{S_S}, 3")
    e(f"s_cselect_b32 s{S_NC}, 64, 128")
    e(f"v_lshlrev_b32 v13, 3, v11")
    e(f"v_cmp_le_u32 vcc, s{S_NC}, v13")
    e(f"v_mov_b32 v13, 0x40000000")
    g.nop(1)
    e(f"v_cndmask_b32 v{V_WOFF}, v12, v13, vcc")
    stamp(0)
    if stamps:
        e(f"v_mov_b32 v14, s30")
        e(f"v_mov_b32 v15, s31")
        e(f"buffer_store_dwordx2 v[14:15], v13, s[{R_WS}:{R_WS+3}], 0 offen offset:80")
    bench = opt.get("bench", 0)
    if bench:
        for f, i, h in kv:
            f(i, h)
        for r in range(8):
            e(f"v_mov_b32 v{V_Q+r}, 0x3f9d3e80")
        e("s_branch L_bench")
    W0 = opt.get("w0", 8)
    STEP = opt.get("step", 4)
    b0 = opt.get("b0", 1)
    if b0:
        e("s_barrier")
    e(f"s_cmp_eq_u32 s{S_W}, 0")
    e("s_cbranch_scc1 L_nopre")
    for f, i, h in seq[:W0]:
        f(i, h)
    g.label("L_nopre")
    e("s_waitcnt lgkmcnt(0)")
    e(f"s_add_u32 s{S_E}, s{S_E}, 1")
    e(f"s_addc_u32 s{S_E+1}, s{S_E+1}, 0")
    e(f"s_mov_b32 s{S_TA}, s{S_E}")
    e(f"s_brev_b32 s{S_TB}, s{S_E}")
    e(f"s_xor_b32 s{S_TB}, s{S_TB}, s{S_E+1}")
    e(f"s_cmp_eq_u32 s{S_W}, 0")
    e("s_cbranch_scc1 L_w0w")
    e(f"s_waitcnt vmcnt({W0})")
    e("s_branch L_qc")
    g.label("L_w0w")
    e(f"s_waitcnt vmcnt(0)")
    g.label("L_qc")
    stamp(1)
    QA = 56
    for i in range(14):
        sel = S_SELO if (i & 1) else S_SELE
        bb = 48 + 4 * (i & 1)
        e(f"v_perm_b32 v60, v{40+(i>>1)}, v{40+(i>>1)}, s{sel}")
        for t in range(4):
            e(f"v_and_b32 v{bb+t}, v60, v{V_M+t}")
        g.nop(2)
        csrc = "0" if i == 0 else vr(QA, 4)
        e(f"v_mfma_f32_16x16x32_bf16 {vr(QA,4)}, {vr(V_WQ+4*i,4)}, {vr(bb,4)}, {csrc}")
    e(f"v_and_b32 v12, 7, v{V_LANE}")
    e(f"v_lshlrev_b32 v12, 2, v12")
    e(f"v_lshl_add_u32 v12, v10, 7, v12")
    e(f"s_lshl_b32 s{S_TMP}, s{S_W}, 9")
    e(f"v_add_u32 v12, s{S_TMP}, v12")
    e(f"v_mov_b32 v13, {TK0}")
    e(f"v_mov_b32 v14, 0")
    g.nop(6)
    for r in range(4):
        e(f"ds_write_b32 v12, v{QA+r} offset:{L_QP + r*32}")
    e(f"ds_write_b32 v{V_TKA}, v13")
    e(f"ds_write_b32 v{V_TKA}, v14 offset:4")
    e("s_waitcnt lgkmcnt(0)")
    e("s_barrier")
    e(f"s_cmp_lg_u32 s{S_W}, 0")
    e("s_cbranch_scc1 L_paced")
    e(f"v_lshlrev_b32 v12, 4, v{V_LANE}")
    e(f"v_and_b32 v12, 0x1ff, v12")
    for w in range(8):
        e(f"ds_read_b128 v[{72+4*w}:{75+4*w}], v12 offset:{L_QP + w*512}")
    e(f"s_lshl_b32 s{S_TMP}, s{S_GRP}, 11")
    e(f"s_add_u32 s{S_TMP}, s{S_TMP}, {WS_Q}")
    e(f"s_lshl_b32 s{S_TMP2}, s{S_S}, 9")
    e(f"s_add_u32 s{S_TMP2}, s{S_TMP2}, s{S_TMP}")
    e("s_waitcnt lgkmcnt(0)")
    for w in range(1, 8):
        for c_ in range(4):
            e(f"v_add_f32 v{72+c_}, v{72+c_}, v{72+4*w+c_}")
    e(f"v_cvt_pk_bf16_f32 v40, v72, v73")
    e(f"v_mov_b32 v41, s{S_TA}")
    e(f"v_cvt_pk_bf16_f32 v42, v74, v75")
    e(f"v_mov_b32 v43, s{S_TB}")
    e("s_mov_b32 exec_hi, 0")
    e(f"buffer_store_dwordx4 v[40:43], v12, s[{R_WS}:{R_WS+3}], s{S_TMP2} offen sc1")
    e("s_mov_b64 exec, -1")
    stamp(2)
    e(f"v_lshlrev_b32 v12, 4, v{V_LANE}")
    e(f"s_mov_b32 s{S_CNT}, {SPIN}")
    g.label("L_poll1")
    e(f"buffer_load_dwordx4 v[40:43], v12, s[{R_WS}:{R_WS+3}], s{S_TMP} offen sc1")
    e(f"buffer_load_dwordx4 v[44:47], v12, s[{R_WS}:{R_WS+3}], s{S_TMP} offen offset:1024 sc1")
    e("s_waitcnt vmcnt(0)")
    tagcheck(40, 4)
    pollend("L_poll1")
    e(f"v_mov_b32 v41, v42")
    e(f"v_mov_b32 v45, v46")
    e(f"v_lshlrev_b32 v12, 3, v{V_LANE}")
    e(f"ds_write_b64 v12, v[40:41] offset:{L_Q}")
    e(f"ds_write_b64 v12, v[44:45] offset:{L_Q+512}")
    e("s_waitcnt lgkmcnt(0)")
    e(f"ds_write_b32 v{V_TKA}, v{V_ONE} offset:4")
    stamp(3)
    for f, i, h in seq:
        f(i, h)
    e("s_branch L_go")
    g.label("L_paced")
    e(f"s_mov_b32 s{S_RDY}, 0")

    def chk(lab):
        e(f"s_cmp_lg_u32 s{S_RDY}, 0")
        e(f"s_cbranch_scc1 {lab}")
        e(f"ds_read_b32 v13, v{V_TKA} offset:4")
        e("s_waitcnt lgkmcnt(0)")
        e(f"v_readfirstlane_b32 s{S_RDY}, v13")
        g.nop(4)
        e(f"s_cmp_lg_u32 s{S_RDY}, 0")
        e(f"s_cbranch_scc1 {lab}")
    j = W0
    while j < len(seq):
        chk(f"L_pi{j}")
        e(f"s_waitcnt vmcnt({max(W0-STEP,0)})")
        g.label(f"L_pi{j}")
        for f, i, h in seq[j:j+STEP]:
            f(i, h)
        j += STEP
    e(f"s_mov_b32 s{S_CNT}, {SPIN*16}")
    g.label("L_wflag")
    chk("L_go")
    e(f"s_sub_u32 s{S_CNT}, s{S_CNT}, 1")
    e("s_cbranch_scc0 L_wflag")
    g.label("L_go")
    e(f"v_lshrrev_b32 v12, 3, v11")
    e(f"v_lshlrev_b32 v12, 9, v12")
    e(f"v_lshl_add_u32 v12, v10, 6, v12")
    e(f"v_and_b32 v13, 3, v{V_LANE}")
    e(f"v_lshl_add_u32 v12, v13, 4, v12")
    e(f"ds_read_b128 {vr(V_Q,4)}, v12 offset:{L_Q}")
    e(f"ds_read_b128 {vr(V_Q+4,4)}, v12 offset:{L_Q+256}")
    g.label("L_bench")
    e(f"v_mov_b32 v{V_MC}, 0xff800000")
    e(f"v_mov_b32 v{V_L}, 0")
    for r in range(8):
        e(f"v_mov_b32 v{V_ACC+r}, 0")
    e("s_waitcnt lgkmcnt(0)")
    stamp(4)

    W = 4 * NG - 2

    def tile(first):
        u = g.lab; g.lab += 1
        extra = 16 if (first and not opt.get("bench", 0)) else 0
        for i in range(NG):
            e(f"s_waitcnt vmcnt({W + extra})")
            if i == 0:
                if not first:
                    e(f"s_cmp_eq_u32 s{S_PEND}, 0")
                    e(f"s_cbranch_scc1 L_np{u}")
                    e("s_waitcnt lgkmcnt(0)")
                    e(f"s_mov_b32 s{S_NXT}, s{S_SA}")
                    e(f"s_mov_b32 s{S_PEND}, 0")
                    g.label(f"L_np{u}")
                set_offsets(S_NXT)
                e(f"s_cmp_ge_u32 s{S_NXT}, {ntiles}")
                e(f"s_cbranch_scc1 L_ntk{u}")
                e("s_mov_b64 exec, 1")
                e(f"ds_add_rtn_u32 v{V_TK}, v{V_TKA}, v{V_ONE}")
                e("s_mov_b64 exec, -1")
                g.label(f"L_ntk{u}")
            e(f"v_mfma_f32_16x16x32_bf16 {vr(V_S+4*i,4)}, {vr(V_KR+8*i,4)}, {vr(V_Q,4)}, 0")
            e(f"v_mfma_f32_16x16x32_bf16 {vr(V_S+4*i,4)}, {vr(V_KR+8*i+4,4)}, {vr(V_Q+4,4)}, {vr(V_S+4*i,4)}")
            ld_k(i, 0); ld_k(i, 1)
        e("s_waitcnt lgkmcnt(0)")
        e(f"v_readfirstlane_b32 s{S_N2}, v{V_TK}")
        g.nop(4)
        e(f"s_cmp_ge_u32 s{S_NXT}, {ntiles}")
        e(f"s_cbranch_scc1 L_inv{u}")
        e(f"s_cmp_ge_u32 s{S_N2}, {SW}")
        e(f"s_cbranch_scc1 L_pool{u}")
        e(f"s_add_u32 s{S_N2}, s{S_N2}, s{S_SB}")
        e(f"s_branch L_tkd{u}")
        g.label(f"L_pool{u}")
        if SW < 128:
            e(f"s_mov_b32 s{S_SA}, 1")
            e(f"s_atomic_add s{S_SA}, s[{S_CB}:{S_CB+1}], 0 glc")
            e(f"s_mov_b32 s{S_PEND}, 1")
            e(f"s_branch L_tkd{u}")
        g.label(f"L_inv{u}")
        e(f"s_mov_b32 s{S_N2}, {ntiles}")
        g.label(f"L_tkd{u}")
        for i in range(NG):
            s = V_S + 4 * i
            p = V_P + i
            e(f"v_mov_b32_dpp v{p}, v{s} quad_perm:[0,0,0,0] row_mask:0xf bank_mask:0xf")
            for k in range(1, 4):
                e(f"v_add_f32_dpp v{p}, v{s+k}, v{p} quad_perm:[{k},{k},{k},{k}] row_mask:0xf bank_mask:0xf")
        e(f"v_max3_f32 v10, v{V_P}, v{V_P+1}, v{V_P+2}")
        e(f"v_max_f32 v10, v10, v{V_P+3}")
        e(f"v_mov_b32 v11, v10")
        g.nop(2)
        e(f"v_permlane32_swap_b32 v10, v11")
        g.nop(1)
        e(f"v_max_f32 v10, v10, v11")
        e(f"v_mov_b32 v11, v10")
        g.nop(2)
        e(f"v_permlane16_swap_b32 v10, v11")
        g.nop(1)
        e(f"v_max_f32 v10, v10, v11")
        e(f"v_mul_f32 v10, s{S_C}, v10")
        e(f"v_max_f32 v10, v10, v{V_MC}")
        e(f"v_sub_f32 v11, v{V_MC}, v10")
        e(f"v_exp_f32 v11, v11")
        e(f"v_mov_b32 v{V_MC}, v10")
        for i in range(NG):
            e(f"v_fma_f32 v{V_P+i}, v{V_P+i}, s{S_C}, -v10")
        for i in range(NG):
            e(f"v_exp_f32 v{V_P+i}, v{V_P+i}")
        for r in range(8):
            e(f"v_mul_f32 v{V_ACC+r}, v{V_ACC+r}, v11")
        e(f"v_mul_f32 v{V_L}, v{V_L}, v11")
        for i in range(NG):
            s = V_S + 4 * i
            e(f"v_cvt_pk_bf16_f32 v12, v{V_P+i}, v{V_P+i}")
            e(f"v_add_f32 v{V_L}, v{V_L}, v{V_P+i}")
            for t in range(4):
                e(f"v_and_b32 v{s+t}, v12, v{V_M+t}")
        g.nop(2)
        for i in range(NG):
            e(f"s_waitcnt vmcnt({W + extra})")
            for h in range(2):
                e(f"v_mfma_f32_16x16x32_bf16 {vr(V_ACC+4*h,4)}, {vr(V_VR+8*i+4*h,4)}, {vr(V_S+4*i,4)}, {vr(V_ACC+4*h,4)}")
            ld_v(i, 0); ld_v(i, 1)
        e(f"s_mov_b32 s{S_CUR}, s{S_NXT}")
        e(f"s_mov_b32 s{S_NXT}, s{S_N2}")

    if LW < 8 and not hyb:
        e(f"s_cmp_ge_u32 s{S_W}, {LW}")
        e("s_cbranch_scc1 L_loopdone")
    if peel:
        tile(True)
        e(f"s_cmp_ge_u32 s{S_CUR}, {ntiles}")
        e("s_cbranch_scc1 L_loopdone")
    g.l.append(".p2align 6")
    g.label("L_loop")
    tile(False)
    e(f"s_cmp_lt_u32 s{S_CUR}, {ntiles}")
    e("s_cbranch_scc1 L_loop")
    g.label("L_loopdone")
    e("s_waitcnt vmcnt(0) lgkmcnt(0)")
    stamp(5)
    if bench:
        e("s_endpgm")

    e(f"v_lshrrev_b32 v10, 4, v{V_LANE}")
    e(f"v_and_b32 v11, 15, v{V_LANE}")
    e(f"v_mov_b32 v12, v{V_L}")
    g.nop(2)
    e(f"v_permlane32_swap_b32 v{V_L}, v12")
    g.nop(1)
    e(f"v_add_f32 v{V_L}, v{V_L}, v12")
    e(f"v_mov_b32 v12, v{V_L}")
    g.nop(2)
    e(f"v_permlane16_swap_b32 v{V_L}, v12")
    g.nop(1)
    e(f"v_add_f32 v{V_L}, v{V_L}, v12")
    e(f"v_lshrrev_b32 v12, 3, v11")
    e(f"s_lshl_b32 s{S_TMP}, s{S_W}, 4")
    e(f"v_lshlrev_b32 v13, 3, v12")
    e(f"v_add_u32 v13, s{S_TMP}, v13")
    e(f"ds_write_b64 v13, v[{V_MC}:{V_L}] offset:{L_ML}")
    e(f"v_lshlrev_b32 v13, 10, v12")
    e(f"v_lshl_add_u32 v13, v10, 7, v13")
    e(f"v_and_b32 v14, 7, v{V_LANE}")
    e(f"v_lshl_add_u32 v13, v14, 2, v13")
    e(f"s_lshl_b32 s{S_TMP}, s{S_W}, 11")
    e(f"v_add_u32 v13, s{S_TMP}, v13")
    g.nop(8)
    for h in range(2):
        for r in range(4):
            e(f"ds_write_b32 v13, v{V_ACC+4*h+r} offset:{L_O + h*512 + r*32}")
    e("s_waitcnt lgkmcnt(0)")
    if opt.get("fine", 0): stamp(11)
    e("s_barrier")
    if opt.get("fine", 0): stamp(12)
    e(f"s_cmp_ge_u32 s{S_W}, 4")
    e("s_cbranch_scc1 L_comb_done")
    e(f"v_lshlrev_b32 v12, 4, v{V_TID}")
    e(f"v_lshrrev_b32 v10, 7, v{V_TID}")
    e(f"v_lshlrev_b32 v11, 4, v10")
    e(f"s_lshl_b32 s{S_TMP}, s{S_GRP}, 15")
    e(f"s_add_u32 s{S_TMP}, s{S_TMP}, {WS_P}")

    def slot_addr(k):
        e(f"s_add_u32 s{S_TMP2}, s{S_S}, {k}")
        e(f"s_and_b32 s{S_TMP2}, s{S_TMP2}, 3")
        e(f"s_lshl_b32 s{S_TMP2}, s{S_TMP2}, 13")
        e(f"s_add_u32 s{S_TMP2}, s{S_TMP2}, s{S_TMP}")

    def p2_loads(k):
        slot_addr(k)
        e(f"buffer_load_dwordx4 v[{72+8*k}:{75+8*k}], v12, s[{R_WS}:{R_WS+3}], s{S_TMP2} offen offset:64 sc1")
        e(f"buffer_load_dwordx4 v[{76+8*k}:{79+8*k}], v11, s[{R_WS}:{R_WS+3}], s{S_TMP2} offen sc1")
    for k in range(1, 4):
        p2_loads(k)
    e(f"v_lshlrev_b32 v13, 3, v10")
    e(f"v_lshlrev_b32 v14, 3, v{V_TID}")
    for w in range(8):
        e(f"ds_read_b64 v[{40+2*w}:{41+2*w}], v13 offset:{L_ML + w*16}")
    for w in range(8):
        e(f"ds_read_b64 v[{104+2*w}:{105+2*w}], v14 offset:{L_O + w*2048}")
    e("s_waitcnt lgkmcnt(0)")
    e("v_max3_f32 v76, v40, v42, v44")
    e("v_max3_f32 v76, v76, v46, v48")
    e("v_max3_f32 v76, v76, v50, v52")
    e("v_max_f32 v76, v76, v54")
    for w in range(8):
        e(f"v_sub_f32 v{40+2*w}, v{40+2*w}, v76")
    for w in range(8):
        e(f"v_exp_f32 v{40+2*w}, v{40+2*w}")
    g.nop(1)
    e("v_mul_f32 v78, v40, v41")
    e("v_mul_f32 v72, v40, v104")
    e("v_mul_f32 v74, v40, v105")
    for w in range(1, 8):
        e(f"v_fmac_f32 v78, v{40+2*w}, v{41+2*w}")
        e(f"v_fmac_f32 v72, v{40+2*w}, v{104+2*w}")
        e(f"v_fmac_f32 v74, v{40+2*w}, v{105+2*w}")
    e(f"v_mov_b32 v73, s{S_TA}")
    e(f"v_mov_b32 v75, s{S_TB}")
    e(f"v_mov_b32 v77, s{S_TA}")
    e(f"v_mov_b32 v79, s{S_TB}")
    slot_addr(0)
    e(f"buffer_store_dwordx4 v[72:75], v12, s[{R_WS}:{R_WS+3}], s{S_TMP2} offen offset:64 sc1")
    e(f"v_and_b32 v13, 127, v{V_TID}")
    e(f"v_cmp_eq_u32 vcc, 0, v13")
    e(f"s_and_saveexec_b64 s[{S_EX}:{S_EX+1}], vcc")
    e("s_cbranch_execz L_noml")
    e(f"buffer_store_dwordx4 v[76:79], v11, s[{R_WS}:{R_WS+3}], s{S_TMP2} offen sc1")
    g.label("L_noml")
    e(f"s_mov_b64 exec, -1")
    stamp(6)
    e(f"s_mov_b32 s{S_CNT}, {SPIN}")
    e(f"s_mov_b32 s{S_VM}, 1")
    e("s_branch L_p2chk")
    g.label("L_poll2")
    for k in range(1, 4):
        e(f"s_bitcmp1_b32 s{S_VM}, {k}")
        e(f"s_cbranch_scc1 L_p2s{k}")
        p2_loads(k)
        g.label(f"L_p2s{k}")
    g.label("L_p2chk")
    e("s_waitcnt vmcnt(0)")
    for k in range(1, 4):
        tagcheck(72+8*k, 4)
        e("s_cmp_eq_u64 vcc, 0")
        e(f"s_cselect_b32 s{S_TMP2}, {1<<k}, 0")
        e(f"s_or_b32 s{S_VM}, s{S_VM}, s{S_TMP2}")
    e(f"s_sub_u32 s{S_CNT}, s{S_CNT}, 1")
    e("s_cbranch_scc1 L_poll2_done")
    e(f"s_cmp_lg_u32 s{S_VM}, 15")
    e("s_cbranch_scc1 L_poll2")
    g.label("L_poll2_done")
    stamp(7)
    e("v_max3_f32 v13, v76, v84, v92")
    e("v_max_f32 v13, v13, v100")
    for s_ in range(4):
        e(f"v_sub_f32 v{76+8*s_}, v{76+8*s_}, v13")
    for s_ in range(4):
        e(f"v_exp_f32 v{76+8*s_}, v{76+8*s_}")
    g.nop(1)
    e("v_mul_f32 v14, v76, v78")
    e("v_mul_f32 v15, v76, v72")
    e("v_mul_f32 v13, v76, v74")
    for s_ in range(1, 4):
        e(f"v_fmac_f32 v14, v{76+8*s_}, v{78+8*s_}")
        e(f"v_fmac_f32 v15, v{76+8*s_}, v{72+8*s_}")
        e(f"v_fmac_f32 v13, v{76+8*s_}, v{74+8*s_}")
    e("v_rcp_f32 v14, v14")
    g.nop(1)
    e("v_mul_f32 v15, v15, v14")
    e("v_mul_f32 v13, v13, v14")
    e("v_cvt_pk_bf16_f32 v15, v15, v13")
    e(f"v_lshlrev_b32 v13, 2, v{V_TID}")
    e(f"ds_write_b32 v13, v15 offset:{L_OB}")
    e("s_waitcnt lgkmcnt(0)")
    g.label("L_comb_done")
    e("s_barrier")
    if opt.get("rep", 0):
        e(f"s_mov_b32 s23, 0")
        stamp(11)
        g.label("L_rep")
    e(f"v_lshrrev_b32 v10, 4, v{V_LANE}")
    e(f"s_lshl_b32 s{S_TMP}, s{S_W}, 7")
    e(f"v_lshlrev_b32 v12, 5, v10")
    e(f"v_add_u32 v12, s{S_TMP}, v12")
    e(f"ds_read_b128 v[40:43], v12 offset:{L_OB}")
    e(f"ds_read_b128 v[44:47], v12 offset:{L_OB+16}")
    e("s_waitcnt lgkmcnt(0)")
    for i in range(16):
        sel = S_SELO if (i & 1) else S_SELE
        bb = 48 + 4 * (i & 1)
        e(f"v_perm_b32 v60, v{40+(i>>1)}, v{40+(i>>1)}, s{sel}")
        for t in range(4):
            e(f"v_and_b32 v{bb+t}, v60, v{V_M+t}")
        g.nop(2)
        csrc = "0" if i == 0 else vr(QA, 4)
        e(f"v_mfma_f32_16x16x32_bf16 {vr(QA,4)}, {vr(V_WO+4*i,4)}, {vr(bb,4)}, {csrc}")
    e(f"v_and_b32 v12, 7, v{V_LANE}")
    e(f"v_lshlrev_b32 v12, 2, v12")
    e(f"v_lshl_add_u32 v12, v10, 7, v12")
    e(f"s_lshl_b32 s{S_TMP}, s{S_W}, 9")
    e(f"v_add_u32 v12, s{S_TMP}, v12")
    g.nop(8)
    for r in range(4):
        e(f"ds_write_b32 v12, v{QA+r} offset:{L_QP + r*32}")
    e("s_waitcnt lgkmcnt(0)")
    if opt.get("rep", 0):
        e("s_cmp_lg_u32 s23, 0")
        e("s_cbranch_scc1 L_rep2")
        stamp(12)
        e("s_mov_b32 s23, 1")
        e("s_branch L_rep")
        g.label("L_rep2")
        stamp(13)
    e("s_barrier")
    e(f"s_cmp_lg_u32 s{S_W}, 0")
    e("s_cbranch_scc1 L_end")
    e(f"v_lshlrev_b32 v13, 1, v{V_LANE}")
    e(f"v_cmp_gt_u32 vcc, s{S_NC}, v13")
    e(f"s_and_b64 exec, exec, vcc")
    e(f"v_lshlrev_b32 v14, 3, v{V_LANE}")
    for w in range(8):
        e(f"ds_read_b64 v[{40+2*w}:{41+2*w}], v14 offset:{L_QP + w*512}")
    e(f"s_lshl_b32 s{S_TMP}, s{S_FIN}, 13")
    e(f"s_add_u32 s{S_TMP}, s{S_TMP}, {WS_F}")
    e(f"s_lshl_b32 s{S_TMP2}, s{S_KVH}, 10")
    e(f"s_add_u32 s{S_TMP2}, s{S_TMP2}, s{S_TMP}")
    e(f"v_lshlrev_b32 v12, 4, v{V_LANE}")
    e("s_waitcnt lgkmcnt(0)")
    e(f"v_mov_b32 v72, v40")
    e(f"v_mov_b32 v74, v41")
    for w in range(1, 8):
        e(f"v_add_f32 v72, v72, v{40+2*w}")
        e(f"v_add_f32 v74, v74, v{41+2*w}")
    e(f"v_mov_b32 v73, s{S_TA}")
    e(f"v_mov_b32 v75, s{S_TB}")
    e(f"s_cmp_eq_u32 s{S_KVH}, s{S_KVR}")
    e("s_cbranch_scc1 L_red")
    e(f"buffer_store_dwordx4 v[72:75], v12, s[{R_WS}:{R_WS+3}], s{S_TMP2} offen sc1")
    stamp(8)
    e("s_endpgm")
    g.label("L_red")
    stamp(8)
    e(f"s_mov_b32 s{S_CNT}, {SPIN}")
    e(f"s_mov_b32 s{S_VM}, 1")
    g.label("L_poll3")
    for k in range(1, 8):
        e(f"s_bitcmp1_b32 s{S_VM}, {k}")
        e(f"s_cbranch_scc1 L_p3s{k}")
        e(f"s_add_u32 s{S_TMP2}, s{S_KVH}, {k}")
        e(f"s_and_b32 s{S_TMP2}, s{S_TMP2}, 7")
        e(f"s_lshl_b32 s{S_TMP2}, s{S_TMP2}, 10")
        e(f"s_add_u32 s{S_TMP2}, s{S_TMP2}, s{S_TMP}")
        e(f"buffer_load_dwordx4 v[{72+4*k}:{75+4*k}], v12, s[{R_WS}:{R_WS+3}], s{S_TMP2} offen sc1")
        g.label(f"L_p3s{k}")
    e("s_waitcnt vmcnt(0)")
    for k in range(1, 8):
        tagcheck(72+4*k, 2)
        e("s_cmp_eq_u64 vcc, 0")
        e(f"s_cselect_b32 s{S_TMP2}, {1<<k}, 0")
        e(f"s_or_b32 s{S_VM}, s{S_VM}, s{S_TMP2}")
    e(f"s_sub_u32 s{S_CNT}, s{S_CNT}, 1")
    e("s_cbranch_scc1 L_poll3_done")
    e(f"s_cmp_lg_u32 s{S_VM}, 255")
    e("s_cbranch_scc1 L_poll3")
    g.label("L_poll3_done")
    for k in range(1, 8):
        e(f"v_add_f32 v72, v72, v{72+4*k}")
        e(f"v_add_f32 v74, v74, v{74+4*k}")
    e("v_cvt_pk_bf16_f32 v40, v72, v74")
    e(f"s_mul_i32 s{S_TMP}, s{S_B}, 1792")
    e(f"s_mul_i32 s{S_TMP2}, s{S_AB}, 896")
    e(f"s_add_u32 s{S_TMP}, s{S_TMP}, s{S_TMP2}")
    e(f"s_lshl_b32 s{S_TMP2}, s{S_S}, 8")
    e(f"s_add_u32 s{S_TMP}, s{S_TMP}, s{S_TMP2}")
    e(f"v_lshlrev_b32 v12, 2, v{V_LANE}")
    e(f"buffer_store_dword v40, v12, s[{R_OUT}:{R_OUT+3}], s{S_TMP} offen")
    stamp(9)
    e(f"s_cmp_lg_u32 s{S_S}, 0")
    e("s_cbranch_scc1 L_end")
    e(f"s_lshr_b32 s{S_TMP}, s2, 5")
    e(f"s_lshl_b32 s{S_TMP}, s{S_TMP}, 7")
    e(f"v_mov_b32 v12, s{S_TMP}")
    e(f"v_mov_b32 v40, s{S_E}")
    e(f"v_mov_b32 v41, s{S_E+1}")
    e("s_mov_b64 exec, 1")
    e(f"buffer_store_dwordx2 v[40:41], v12, s[{R_WS}:{R_WS+3}], 0 offen offset:{WS_E} sc1")
    g.label("L_end")
    e("s_endpgm")
    g.l.append('.section .rodata,"a"')
    g.l.append(".p2align 6")
    g.l.append(f".amdhsa_kernel {KN}")
    g.l.append("  .amdhsa_next_free_vgpr 256")
    g.l.append("  .amdhsa_next_free_sgpr 102")
    g.l.append("  .amdhsa_accum_offset 256")
    g.l.append("  .amdhsa_group_segment_fixed_size 0")
    g.l.append("  .amdhsa_kernarg_size 104")
    g.l.append("  .amdhsa_user_sgpr_count 2")
    g.l.append("  .amdhsa_user_sgpr_kernarg_segment_ptr 1")
    g.l.append("  .amdhsa_system_sgpr_workgroup_id_x 1")
    g.l.append(".end_amdhsa_kernel")
    return "\n".join(g.l) + "\n"


if __name__ == "__main__":
    out = sys.argv[1]
    opt = {}
    for a in sys.argv[2:]:
        k, v = a.split("=")
        opt[k] = int(v, 0)
    open(out, "w").write(gen(opt))
```

```python
import sys
from gen import G, vr, HEADER, KN

WS_E = 0x0
WS_Q = 0x4000
WS_F = 0x40000
WS_P = 0x100000
WS_T = 0x400000
WS_C = 0x800000
WS_SIZE = 0x1000000

L_QP = 0
L_Q = 4096
L_ML = 5120
L_TK = 5248
L_OB = 5376
L_O = 8192
LDS_MIN = 8192 + 16384

S_X, S_K, S_V, S_WQ, S_WO = 4, 6, 8, 10, 12
S_OUT, S_DBG, S_WS = 44, 46, 48
S_KVH, S_S, S_B, S_AB, S_W, S_GRP = 14, 15, 16, 17, 18, 19
R_K, R_V, R_W, R_X, R_WS, R_OUT = 52, 56, 60, 68, 72, 80
S_T0 = 84
S_CNT = 88
S_TMP, S_TMP2, S_TMP3 = 89, 90, 91
S_C = 92
S_SELE, S_SELO = 93, 94
S_EX = 96
S_KVR = 3
S_ST = 64
S_FIN = 50
S_TA, S_TB = 76, 77
S_E = 78
S_CUR, S_NXT = 98, 99
S_N2 = 51
S_SA = 100
S_PEND = 101
S_CB = 66
S_ROT = 42
S_NC = 20
S_RDY = 21
S_VM = 22
S_MODE = 23
V_J = 61
R_WO = 36
S_SB = 43

V_TID, V_LANE, V_KOFF, V_VOFF = 0, 1, 2, 3
V_M = 4
V_MC, V_L = 8, 9
V_Q = 16
V_ACC = 24
V_P = 32
V_TK, V_TKA, V_ONE, V_WOFF = 36, 37, 38, 39
V_S = 40
V_TAG = 61


def gen(opt):
    g = G(opt)
    e, c = g.e, g.c
    NG = 4
    NT = " nt" if opt.get("nt", 1) else ""
    NTW = " nt" if opt.get("ntw", 0) else ""
    stamps = opt.get("stamps", 0)
    lite = opt.get("lite", 0)
    pre = opt.get("pre", 8)
    spread = opt.get("spread", 1)
    SW = opt.get("sw", 110)
    cstride = opt.get("cstride", 4096)
    lds = max(opt.get("lds", 0), LDS_MIN)
    SPIN = opt.get("spin", 0x20000)
    cpf = opt.get("cpf", 0)
    tile_bytes = NG * 2048
    ntiles = 8192 // (4 * NG)
    V_KR = 72
    V_VR = V_KR + 8 * NG
    V_WO = V_VR + 8 * NG
    V_WQ = 200

    dbgst = opt.get("dbgst", 0)

    def stamp(idx):
        if dbgst and idx in (0, 1, 3, 4, 5, 7, 9):
            e(f"s_memrealtime s[{S_ST}:{S_ST+1}]")
            e("s_waitcnt lgkmcnt(0)")
            if idx == 0:
                e(f"s_not_b32 s{S_ST}, s30")
            e(f"v_mov_b32 v14, s{S_ST}")
            e(f"v_mov_b32 v13, {idx*4}")
            e(f"s_mov_b32 s24, s{S_DBG}")
            e(f"s_mov_b32 s25, s{S_DBG+1}")
            e(f"s_mov_b32 s26, 256")
            e(f"s_mov_b32 s27, 0x00020000")
            e(f"s_mov_b64 s[28:29], exec")
            e(f"s_mov_b64 exec, 1")
            e(f"buffer_atomic_umax v14, v13, s[24:27], 0 offen")
            e(f"s_mov_b64 exec, s[28:29]")
            return
        if not stamps:
            return
        e(f"s_memrealtime s[{S_ST}:{S_ST+1}]")
        e("s_waitcnt lgkmcnt(0)")
        e(f"v_mov_b32 v14, s{S_ST}")
        e(f"v_mov_b32 v15, s{S_ST+1}")
        e(f"v_mov_b32 v13, s95")
        e(f"buffer_store_dwordx2 v[14:15], v13, s[{R_WS}:{R_WS+3}], 0 offen offset:{idx*8}")


    def lite_exit():
        if not lite: return
        e("s_memrealtime s[26:27]")
        e("s_waitcnt lgkmcnt(0)")
        e("s_mov_b64 exec, 1")
        e(f"s_lshl_b32 s28, s2, 11")
        e(f"s_add_u32 s28, s28, {WS_T}")
        e("v_mov_b32 v13, s28")
        e("v_mov_b32 v14, s30"); e("v_mov_b32 v15, s31")
        e(f"buffer_store_dwordx2 v[14:15], v13, s[{R_WS}:{R_WS+3}], 0 offen offset:0")
        e(f"buffer_store_dwordx2 v[14:15], v13, s[{R_WS}:{R_WS+3}], 0 offen offset:80")
        e("v_mov_b32 v16, s24"); e("v_mov_b32 v17, s25")
        e(f"buffer_store_dwordx2 v[16:17], v13, s[{R_WS}:{R_WS+3}], 0 offen offset:40")
        e("v_mov_b32 v18, s26"); e("v_mov_b32 v19, s27")
        e(f"buffer_store_dwordx2 v[18:19], v13, s[{R_WS}:{R_WS+3}], 0 offen offset:72")

    def srd(R, base, off_s, nrec):
        if off_s is None:
            e(f"s_mov_b32 s{R}, s{base}")
            e(f"s_mov_b32 s{R+1}, s{base+1}")
        else:
            e(f"s_add_u32 s{R}, s{base}, {off_s}")
            e(f"s_addc_u32 s{R+1}, s{base+1}, 0")
        e(f"s_mov_b32 s{R+2}, {nrec}")
        e(f"s_mov_b32 s{R+3}, 0x00020000")

    def tagcheck(first_reg, n):
        e(f"v_cmp_ne_u32 vcc, s{S_TA}, v{first_reg+1}")
        for k in range(1, n):
            tg = S_TB if (k & 1) else S_TA
            e(f"v_cmp_ne_u32 s[{S_EX}:{S_EX+1}], s{tg}, v{first_reg+2*k+1}")
            e(f"s_or_b64 vcc, vcc, s[{S_EX}:{S_EX+1}]")

    def pollend(lab):
        e(f"s_sub_u32 s{S_CNT}, s{S_CNT}, 1")
        e(f"s_cbranch_scc1 {lab}_done")
        e("s_cmp_lg_u64 vcc, 0")
        e(f"s_cbranch_scc1 {lab}")
        g.label(f"{lab}_done")

    g.l.append(HEADER.rstrip("\n"))
    g.l.append(f"; @launch grid=(256,1,1) block=(512,1,1) lds={lds}")
    g.l.append('.amdgcn_target "amdgcn-amd-amdhsa--gfx950"')
    g.l.append(".text")
    g.l.append(f".globl {KN}")
    g.l.append(".p2align 8")
    g.l.append(f".type {KN},@function")
    g.l.append(f"{KN}:")
    if stamps or opt.get("dbgst", 0) or lite:
        e("s_memrealtime s[30:31]")
    e("s_cmp_ge_u32 s2, 256")
    e("s_cbranch_scc1 L_end")
    e("s_load_dwordx8 s[20:27], s[0:1], 0")
    e("s_load_dwordx2 s[28:29], s[0:1], 32")
    e("s_load_dwordx8 s[32:39], s[0:1], 40")
    e("s_load_dwordx2 s[40:41], s[0:1], 72")
    e(f"s_load_dwordx4 s[{S_OUT}:{S_OUT+3}], s[0:1], 80")
    e(f"s_load_dwordx2 s[{S_WS}:{S_WS+1}], s[0:1], 96")
    e(f"v_lshrrev_b32 v10, 6, v0")
    e(f"v_and_b32 v{V_LANE}, 63, v0")
    e(f"v_readfirstlane_b32 s{S_W}, v10")
    e(f"s_lshr_b32 s{S_S}, s2, 3")
    e(f"s_and_b32 s{S_S}, s{S_S}, 3")
    e(f"s_and_b32 s{S_KVH}, s2, 7")
    if spread:
        e(f"s_and_b32 s{S_TMP}, s{S_S}, 1")
        e(f"s_lshr_b32 s{S_TMP2}, s{S_S}, 1")
        e(f"s_lshl_b32 s{S_TMP2}, s{S_TMP2}, 2")
        e(f"s_add_u32 s{S_TMP}, s{S_TMP}, s{S_TMP2}")
        e(f"s_sub_u32 s{S_KVH}, s{S_KVH}, s{S_TMP}")
        e(f"s_and_b32 s{S_KVH}, s{S_KVH}, 7")
    e(f"s_lshr_b32 s{S_B}, s2, 5")
    e(f"s_and_b32 s{S_B}, s{S_B}, 3")
    e(f"s_lshr_b32 s{S_AB}, s2, 7")
    e(f"s_lshr_b32 s{S_TMP}, s2, 5")
    e(f"s_lshl_b32 s{S_GRP}, s{S_TMP}, 3")
    e(f"s_or_b32 s{S_GRP}, s{S_GRP}, s{S_KVH}")
    e(f"s_lshl_b32 s{S_FIN}, s{S_TMP}, 2")
    e(f"s_or_b32 s{S_FIN}, s{S_FIN}, s{S_S}")
    e(f"s_and_b32 s{S_KVR}, s{S_FIN}, 7")
    e(f"s_lshl_b32 s{S_TMP3}, s{S_TMP}, 7")
    e(f"s_mov_b32 s{S_C}, 0x3db8aa3b")
    e(f"s_mov_b32 s{S_SELE}, 0x01000100")
    e(f"s_mov_b32 s{S_SELO}, 0x03020302")
    e(f"v_lshrrev_b32 v10, 4, v{V_LANE}")
    e(f"v_and_b32 v11, 15, v{V_LANE}")
    e(f"v_bfe_u32 v12, v{V_LANE}, 2, 2")
    e(f"v_lshlrev_b32 v12, 9, v12")
    e(f"v_lshl_add_u32 v12, v10, 6, v12")
    e(f"v_and_b32 v13, 3, v{V_LANE}")
    e(f"v_lshl_add_u32 v{V_KOFF}, v13, 4, v12")
    e(f"v_lshlrev_b32 v12, 9, v10")
    e(f"v_lshl_add_u32 v{V_VOFF}, v11, 4, v12")
    e(f"v_and_b32 v12, 1, v{V_LANE}")
    e(f"v_lshlrev_b32 v12, 4, v12")
    e(f"v_mov_b32 v13, 0xffff")
    e(f"v_lshlrev_b32 v13, v12, v13")
    e(f"v_bfe_u32 v12, v{V_LANE}, 1, 2")
    for t in range(4):
        e(f"v_cmp_eq_u32 vcc, {t}, v12")
        g.nop(2)
        e(f"v_cndmask_b32 v{V_M+t}, 0, v13, vcc")
    e("s_waitcnt lgkmcnt(0)")
    e(f"s_add_u32 s{S_ST}, s{S_WS}, s{S_TMP3}")
    e(f"s_addc_u32 s{S_ST+1}, s{S_WS+1}, 0")
    e(f"s_load_dwordx2 s[{S_E}:{S_E+1}], s[{S_ST}:{S_ST+1}], {WS_E}")
    e(f"s_cmp_eq_u32 s{S_AB}, 0")
    for i, dst in enumerate([S_X, S_K, S_V, S_WQ, S_WO]):
        e(f"s_cselect_b64 s[{dst}:{dst+1}], s[{20+2*i}:{21+2*i}], s[{32+2*i}:{33+2*i}]")
    srd(R_X, S_X, None, "3584")
    e(f"s_mul_i32 s{S_TMP}, s{S_W}, {56*8192}")
    e(f"s_lshl_b32 s{S_TMP2}, s{S_KVH}, 10")
    e(f"s_add_u32 s{S_TMP}, s{S_TMP}, s{S_TMP2}")
    e(f"s_lshl_b32 s{S_TMP2}, s{S_S}, 8")
    e(f"s_add_u32 s{S_TMP}, s{S_TMP}, s{S_TMP2}")
    e(f"s_sub_u32 s{S_TMP2}, {448*8192}, s{S_TMP}")
    srd(R_W, S_WQ, f"s{S_TMP}", f"s{S_TMP2}")
    e(f"s_mul_i32 s{S_TMP}, s{S_B}, 896")
    e(f"s_mul_i32 s{S_TMP2}, s{S_W}, 112")
    e(f"s_add_u32 s{S_TMP}, s{S_TMP}, s{S_TMP2}")
    e(f"v_mul_u32_u24 v12, 28, v10")
    e(f"buffer_load_dwordx4 v[40:43], v12, s[{R_X}:{R_X+3}], s{S_TMP} offen")
    e(f"buffer_load_dwordx4 v[44:47], v12, s[{R_X}:{R_X+3}], s{S_TMP} offen offset:16")
    e(f"v_mul_u32_u24 v12, {14*8192//16}, v10")
    e(f"v_add_lshl_u32 v12, v12, v11, 4")
    e(f"s_mov_b32 s{S_TMP}, 0")
    for i in range(14):
        if not opt.get("noq", 0): e(f"buffer_load_dwordx4 {vr(V_WQ+4*i,4)}, v12, s[{R_W}:{R_W+3}], s{S_TMP} offen{NTW}")
        if i < 13:
            e(f"s_add_u32 s{S_TMP}, s{S_TMP}, 8192")
    e(f"s_lshl_b32 s{S_TMP}, s{S_B}, 3")
    e(f"s_or_b32 s{S_TMP}, s{S_TMP}, s{S_KVH}")
    e(f"s_lshl_b32 s{S_TMP}, s{S_TMP}, 22")
    srd(R_K, S_K, f"s{S_TMP}", "0x400000")
    srd(R_V, S_V, f"s{S_TMP}", "0x400000")
    srd(R_WS, S_WS, None, hex(WS_SIZE))
    srd(R_OUT, S_OUT, None, "7168")
    e(f"s_mul_i32 s{S_TMP3}, s{S_GRP}, {cstride}")
    e(f"s_add_u32 s{S_TMP3}, s{S_TMP3}, {WS_C}")
    e(f"s_add_u32 s{S_CB}, s{S_WS}, s{S_TMP3}")
    e(f"s_addc_u32 s{S_CB+1}, s{S_WS+1}, 0")
    if stamps:
        e(f"s_lshl_b32 s95, s2, 11")
        e(f"s_lshl_b32 s{S_TMP}, s{S_W}, 8")
        e(f"s_add_u32 s95, s95, s{S_TMP}")
        e(f"s_add_u32 s95, s95, {WS_T}")
    e(f"v_mov_b32 v{V_TKA}, {L_TK}")
    e(f"v_mov_b32 v{V_ONE}, 1")
    if SW < 128:
        e(f"s_or_b32 s{S_TMP}, s{S_S}, s{S_W}")
        e(f"s_cmp_lg_u32 s{S_TMP}, 0")
        e("s_cbranch_scc1 L_noinit")
        e(f"v_mov_b32 v12, s{S_TMP3}")
        e(f"v_mov_b32 v13, {4*SW}")
        e(f"s_mov_b64 exec, 1")
        e(f"buffer_store_dword v13, v12, s[{R_WS}:{R_WS+3}], 0 offen sc1")
        e(f"s_mov_b64 exec, -1")
        g.label("L_noinit")
    e(f"s_mul_i32 s{S_SB}, s{S_S}, {SW}")
    e(f"s_add_u32 s{S_CUR}, s{S_SB}, s{S_W}")
    LW = opt.get("lw", 4)
    hyb = opt.get("hyb", 1)
    if hyb:
        e(f"s_add_u32 s{S_NXT}, s{S_CUR}, 8")
        e(f"s_cmp_ge_u32 s{S_W}, {LW}")
        e(f"s_cselect_b32 s{S_NXT}, {ntiles}, s{S_NXT}")
        TK0 = 8 + LW
    else:
        e(f"s_add_u32 s{S_NXT}, s{S_CUR}, {LW}")
        if LW < 8:
            e(f"s_cmp_ge_u32 s{S_W}, {LW}")
            e(f"s_cselect_b32 s{S_CUR}, {ntiles}, s{S_CUR}")
            e(f"s_cselect_b32 s{S_NXT}, {ntiles}, s{S_NXT}")
        TK0 = 2 * LW
    e(f"s_mov_b32 s{S_PEND}, 0")

    def set_offsets(sidx):
        e(f"s_lshl_b32 s{S_T0}, s{sidx}, 13")
        e(f"s_add_u32 s{S_T0+1}, s{S_T0}, 4096")

    set_offsets(S_CUR)

    def ld_k(i, h):
        e(f"buffer_load_dwordx4 {vr(V_KR+8*i+4*h,4)}, v{V_KOFF}, s[{R_K}:{R_K+3}], s{S_T0+(i>>1)} offen offset:{(i&1)*2048+h*256}{NT}")

    def ld_v(i, h):
        e(f"buffer_load_dwordx4 {vr(V_VR+8*i+4*h,4)}, v{V_VOFF}, s[{R_V}:{R_V+3}], s{S_T0+(i>>1)} offen offset:{(i&1)*2048+h*256}{NT}")

    def ld_wo(ii, _):
        e(f"s_mov_b32 s{S_TMP2}, {ii*896}")
        e(f"buffer_load_dwordx4 {vr(V_WO+4*ii,4)}, v{V_WOFF}, s[{R_WO}:{R_WO+3}], s{S_TMP2} offen{NTW}")

    peel = opt.get("peel", 1)
    kv = [(ld_k, i, h) for i in range(NG) for h in range(2)] + [(ld_v, i, h) for i in range(NG) for h in range(2)]
    wos = [(ld_wo, ii, 0) for ii in range(16)]
    seq = kv + wos if peel else wos + kv
    e(f"s_lshl_b32 s{S_TMP}, s{S_KVH}, 9")
    e(f"s_lshl_b32 s{S_TMP2}, s{S_W}, 6")
    e(f"s_add_u32 s{S_TMP}, s{S_TMP}, s{S_TMP2}")
    e(f"s_mul_i32 s{S_TMP}, s{S_TMP}, 896")
    e(f"s_lshl_b32 s{S_TMP2}, s{S_S}, 8")
    e(f"s_add_u32 s{S_TMP}, s{S_TMP}, s{S_TMP2}")
    e(f"s_sub_u32 s{S_TMP2}, {4096*896}, s{S_TMP}")
    srd(R_WO, S_WO, f"s{S_TMP}", f"s{S_TMP2}")
    e(f"v_mul_u32_u24 v12, {16*896//16}, v10")
    e(f"v_add_lshl_u32 v12, v12, v11, 4")
    e(f"s_cmp_eq_u32 s{S_S}, 3")
    e(f"s_cselect_b32 s{S_NC}, 64, 128")
    e(f"v_lshlrev_b32 v13, 3, v11")
    e(f"v_cmp_le_u32 vcc, s{S_NC}, v13")
    e(f"v_mov_b32 v13, 0x40000000")
    g.nop(1)
    e(f"v_cndmask_b32 v{V_WOFF}, v12, v13, vcc")
    stamp(0)
    if stamps:
        e(f"v_mov_b32 v14, s30")
        e(f"v_mov_b32 v15, s31")
        e(f"buffer_store_dwordx2 v[14:15], v13, s[{R_WS}:{R_WS+3}], 0 offen offset:80")
    bench = opt.get("bench", 0)
    if bench:
        for f, i, h in kv:
            f(i, h)
        for r in range(8):
            e(f"v_mov_b32 v{V_Q+r}, 0x3f9d3e80")
        e("s_branch L_bench")
    W0 = opt.get("w0", 8)
    STEP = opt.get("step", 4)
    b0 = opt.get("b0", 1)
    if b0:
        e("s_barrier")
    e(f"s_cmp_eq_u32 s{S_W}, 0")
    e("s_cbranch_scc1 L_nopre")
    for f, i, h in seq[:W0]:
        f(i, h)
    g.label("L_nopre")
    e("s_waitcnt lgkmcnt(0)")
    e(f"s_add_u32 s{S_E}, s{S_E}, 1")
    e(f"s_addc_u32 s{S_E+1}, s{S_E+1}, 0")
    e(f"s_mov_b32 s{S_TA}, s{S_E}")
    e(f"s_brev_b32 s{S_TB}, s{S_E}")
    e(f"s_xor_b32 s{S_TB}, s{S_TB}, s{S_E+1}")
    e(f"s_cmp_eq_u32 s{S_W}, 0")
    e("s_cbranch_scc1 L_w0w")
    e(f"s_waitcnt vmcnt({W0})")
    e("s_branch L_qc")
    g.label("L_w0w")
    e(f"s_waitcnt vmcnt(0)")
    g.label("L_qc")
    stamp(1)
    QA = 56
    for i in range(14):
        sel = S_SELO if (i & 1) else S_SELE
        bb = 48 + 4 * (i & 1)
        e(f"v_perm_b32 v60, v{40+(i>>1)}, v{40+(i>>1)}, s{sel}")
        for t in range(4):
            e(f"v_and_b32 v{bb+t}, v60, v{V_M+t}")
        g.nop(2)
        csrc = "0" if i == 0 else vr(QA, 4)
        e(f"v_mfma_f32_16x16x32_bf16 {vr(QA,4)}, {vr(V_WQ+4*i,4)}, {vr(bb,4)}, {csrc}")
    e(f"v_and_b32 v12, 7, v{V_LANE}")
    e(f"v_lshlrev_b32 v12, 2, v12")
    e(f"v_lshl_add_u32 v12, v10, 7, v12")
    e(f"s_lshl_b32 s{S_TMP}, s{S_W}, 9")
    e(f"v_add_u32 v12, s{S_TMP}, v12")
    e(f"v_mov_b32 v13, {TK0}")
    e(f"v_mov_b32 v14, 0")
    g.nop(6)
    for r in range(4):
        e(f"ds_write_b32 v12, v{QA+r} offset:{L_QP + r*32}")
    e(f"ds_write_b32 v{V_TKA}, v13")
    e(f"ds_write_b32 v{V_TKA}, v14 offset:4")
    e("s_waitcnt lgkmcnt(0)")
    e("s_barrier")
    e(f"s_cmp_lg_u32 s{S_W}, 0")
    e("s_cbranch_scc1 L_paced")
    e(f"v_lshlrev_b32 v12, 4, v{V_LANE}")
    e(f"v_and_b32 v12, 0x1ff, v12")
    for w in range(8):
        e(f"ds_read_b128 v[{72+4*w}:{75+4*w}], v12 offset:{L_QP + w*512}")
    e(f"s_lshl_b32 s{S_TMP}, s{S_GRP}, 11")
    e(f"s_add_u32 s{S_TMP}, s{S_TMP}, {WS_Q}")
    e(f"s_lshl_b32 s{S_TMP2}, s{S_S}, 9")
    e(f"s_add_u32 s{S_TMP2}, s{S_TMP2}, s{S_TMP}")
    e("s_waitcnt lgkmcnt(0)")
    for w in range(1, 8):
        for c_ in range(4):
            e(f"v_add_f32 v{72+c_}, v{72+c_}, v{72+4*w+c_}")
    e(f"v_cvt_pk_bf16_f32 v40, v72, v73")
    e(f"v_mov_b32 v41, s{S_TA}")
    e(f"v_cvt_pk_bf16_f32 v42, v74, v75")
    e(f"v_mov_b32 v43, s{S_TB}")
    e("s_mov_b32 exec_hi, 0")
    e(f"buffer_store_dwordx4 v[40:43], v12, s[{R_WS}:{R_WS+3}], s{S_TMP2} offen sc1")
    e("s_mov_b64 exec, -1")
    stamp(2)
    e(f"v_lshlrev_b32 v12, 4, v{V_LANE}")
    e(f"s_mov_b32 s{S_CNT}, {SPIN}")
    g.label("L_poll1")
    e(f"buffer_load_dwordx4 v[40:43], v12, s[{R_WS}:{R_WS+3}], s{S_TMP} offen sc1")
    e(f"buffer_load_dwordx4 v[44:47], v12, s[{R_WS}:{R_WS+3}], s{S_TMP} offen offset:1024 sc1")
    e("s_waitcnt vmcnt(0)")
    tagcheck(40, 4)
    pollend("L_poll1")
    e(f"v_mov_b32 v41, v42")
    e(f"v_mov_b32 v45, v46")
    e(f"v_lshlrev_b32 v12, 3, v{V_LANE}")
    e(f"ds_write_b64 v12, v[40:41] offset:{L_Q}")
    e(f"ds_write_b64 v12, v[44:45] offset:{L_Q+512}")
    e("s_waitcnt lgkmcnt(0)")
    e(f"ds_write_b32 v{V_TKA}, v{V_ONE} offset:4")
    stamp(3)
    for f, i, h in seq:
        f(i, h)
    e("s_branch L_go")
    g.label("L_paced")
    e(f"s_mov_b32 s{S_RDY}, 0")

    def chk(lab):
        e(f"s_cmp_lg_u32 s{S_RDY}, 0")
        e(f"s_cbranch_scc1 {lab}")
        e(f"ds_read_b32 v13, v{V_TKA} offset:4")
        e("s_waitcnt lgkmcnt(0)")
        e(f"v_readfirstlane_b32 s{S_RDY}, v13")
        g.nop(4)
        e(f"s_cmp_lg_u32 s{S_RDY}, 0")
        e(f"s_cbranch_scc1 {lab}")
    j = W0
    while j < len(seq):
        chk(f"L_pi{j}")
        e(f"s_waitcnt vmcnt({max(W0-STEP,0)})")
        g.label(f"L_pi{j}")
        for f, i, h in seq[j:j+STEP]:
            f(i, h)
        j += STEP
    e(f"s_mov_b32 s{S_CNT}, {SPIN*16}")
    g.label("L_wflag")
    chk("L_go")
    e(f"s_sub_u32 s{S_CNT}, s{S_CNT}, 1")
    e("s_cbranch_scc0 L_wflag")
    g.label("L_go")
    e(f"v_lshrrev_b32 v12, 3, v11")
    e(f"v_lshlrev_b32 v12, 9, v12")
    e(f"v_lshl_add_u32 v12, v10, 6, v12")
    e(f"v_and_b32 v13, 3, v{V_LANE}")
    e(f"v_lshl_add_u32 v12, v13, 4, v12")
    e(f"ds_read_b128 {vr(V_Q,4)}, v12 offset:{L_Q}")
    e(f"ds_read_b128 {vr(V_Q+4,4)}, v12 offset:{L_Q+256}")
    g.label("L_bench")
    e(f"v_mov_b32 v{V_MC}, 0xff800000")
    e(f"v_mov_b32 v{V_L}, 0")
    for r in range(8):
        e(f"v_mov_b32 v{V_ACC+r}, 0")
    e("s_waitcnt lgkmcnt(0)")
    stamp(4)

    W = 4 * NG - 2

    def tile(first):
        u = g.lab; g.lab += 1
        extra = 16 if (first and not opt.get("bench", 0)) else 0
        for i in range(NG):
            e(f"s_waitcnt vmcnt({W + extra})")
            if i == 0:
                if not first:
                    e(f"s_cmp_eq_u32 s{S_PEND}, 0")
                    e(f"s_cbranch_scc1 L_np{u}")
                    e("s_waitcnt lgkmcnt(0)")
                    e(f"s_mov_b32 s{S_NXT}, s{S_SA}")
                    e(f"s_mov_b32 s{S_PEND}, 0")
                    g.label(f"L_np{u}")
                set_offsets(S_NXT)
                e(f"s_cmp_ge_u32 s{S_NXT}, {ntiles}")
                e(f"s_cbranch_scc1 L_ntk{u}")
                e("s_mov_b64 exec, 1")
                e(f"ds_add_rtn_u32 v{V_TK}, v{V_TKA}, v{V_ONE}")
                e("s_mov_b64 exec, -1")
                g.label(f"L_ntk{u}")
            e(f"v_mfma_f32_16x16x32_bf16 {vr(V_S+4*i,4)}, {vr(V_KR+8*i,4)}, {vr(V_Q,4)}, 0")
            e(f"v_mfma_f32_16x16x32_bf16 {vr(V_S+4*i,4)}, {vr(V_KR+8*i+4,4)}, {vr(V_Q+4,4)}, {vr(V_S+4*i,4)}")
            ld_k(i, 0); ld_k(i, 1)
        e("s_waitcnt lgkmcnt(0)")
        e(f"v_readfirstlane_b32 s{S_N2}, v{V_TK}")
        g.nop(4)
        e(f"s_cmp_ge_u32 s{S_NXT}, {ntiles}")
        e(f"s_cbranch_scc1 L_inv{u}")
        e(f"s_cmp_ge_u32 s{S_N2}, {SW}")
        e(f"s_cbranch_scc1 L_pool{u}")
        e(f"s_add_u32 s{S_N2}, s{S_N2}, s{S_SB}")
        e(f"s_branch L_tkd{u}")
        g.label(f"L_pool{u}")
        if SW < 128:
            e(f"s_mov_b32 s{S_SA}, 1")
            e(f"s_atomic_add s{S_SA}, s[{S_CB}:{S_CB+1}], 0 glc")
            e(f"s_mov_b32 s{S_PEND}, 1")
            e(f"s_branch L_tkd{u}")
        g.label(f"L_inv{u}")
        e(f"s_mov_b32 s{S_N2}, {ntiles}")
        g.label(f"L_tkd{u}")
        for i in range(NG):
            s = V_S + 4 * i
            p = V_P + i
            e(f"v_mov_b32_dpp v{p}, v{s} quad_perm:[0,0,0,0] row_mask:0xf bank_mask:0xf")
            for k in range(1, 4):
                e(f"v_add_f32_dpp v{p}, v{s+k}, v{p} quad_perm:[{k},{k},{k},{k}] row_mask:0xf bank_mask:0xf")
        e(f"v_max3_f32 v10, v{V_P}, v{V_P+1}, v{V_P+2}")
        e(f"v_max_f32 v10, v10, v{V_P+3}")
        e(f"v_mov_b32 v11, v10")
        g.nop(2)
        e(f"v_permlane32_swap_b32 v10, v11")
        g.nop(1)
        e(f"v_max_f32 v10, v10, v11")
        e(f"v_mov_b32 v11, v10")
        g.nop(2)
        e(f"v_permlane16_swap_b32 v10, v11")
        g.nop(1)
        e(f"v_max_f32 v10, v10, v11")
        e(f"v_mul_f32 v10, s{S_C}, v10")
        e(f"v_max_f32 v10, v10, v{V_MC}")
        e(f"v_sub_f32 v11, v{V_MC}, v10")
        e(f"v_exp_f32 v11, v11")
        e(f"v_mov_b32 v{V_MC}, v10")
        for i in range(NG):
            e(f"v_fma_f32 v{V_P+i}, v{V_P+i}, s{S_C}, -v10")
        for i in range(NG):
            e(f"v_exp_f32 v{V_P+i}, v{V_P+i}")
        for r in range(8):
            e(f"v_mul_f32 v{V_ACC+r}, v{V_ACC+r}, v11")
        e(f"v_mul_f32 v{V_L}, v{V_L}, v11")
        for i in range(NG):
            s = V_S + 4 * i
            e(f"v_cvt_pk_bf16_f32 v12, v{V_P+i}, v{V_P+i}")
            e(f"v_add_f32 v{V_L}, v{V_L}, v{V_P+i}")
            for t in range(4):
                e(f"v_and_b32 v{s+t}, v12, v{V_M+t}")
        g.nop(2)
        for i in range(NG):
            e(f"s_waitcnt vmcnt({W + extra})")
            for h in range(2):
                e(f"v_mfma_f32_16x16x32_bf16 {vr(V_ACC+4*h,4)}, {vr(V_VR+8*i+4*h,4)}, {vr(V_S+4*i,4)}, {vr(V_ACC+4*h,4)}")
            ld_v(i, 0); ld_v(i, 1)
        e(f"s_mov_b32 s{S_CUR}, s{S_NXT}")
        e(f"s_mov_b32 s{S_NXT}, s{S_N2}")

    if LW < 8 and not hyb:
        e(f"s_cmp_ge_u32 s{S_W}, {LW}")
        e("s_cbranch_scc1 L_loopdone")
    if peel:
        tile(True)
        e(f"s_cmp_ge_u32 s{S_CUR}, {ntiles}")
        e("s_cbranch_scc1 L_loopdone")
    g.l.append(".p2align 6")
    g.label("L_loop")
    tile(False)
    e(f"s_cmp_lt_u32 s{S_CUR}, {ntiles}")
    e("s_cbranch_scc1 L_loop")
    g.label("L_loopdone")
    if lite:
        e("s_memrealtime s[24:25]")
    e("s_waitcnt vmcnt(0) lgkmcnt(0)")
    stamp(5)
    if bench:
        e("s_endpgm")
    dry = opt.get("dry", 1)
    e(f"v_and_b32 v{V_J}, 255, v{V_TID}")
    e(f"s_cmp_ge_u32 s{S_W}, 4")
    e(f"s_cselect_b32 s{S_MODE}, 1, 0")
    if dry:
        e(f"s_cmp_lg_u32 s{S_W}, {opt.get(chr(100)+chr(119), 7)}")
        e("s_cbranch_scc1 L_partA")
        e(f"s_mov_b32 s{S_MODE}, 2")
        e("s_branch L_partB")
        g.label("L_dryret")
        e("s_mov_b64 exec, -1")
        e(f"s_mov_b32 s{S_MODE}, 1")
        g.label("L_partA")

    def skip_if_dry(lab):
        if dry:
            e(f"s_cmp_eq_u32 s{S_MODE}, 2")
            e(f"s_cbranch_scc1 {lab}")

    e(f"v_lshrrev_b32 v10, 4, v{V_LANE}")
    e(f"v_and_b32 v11, 15, v{V_LANE}")
    e(f"v_mov_b32 v12, v{V_L}")
    g.nop(2)
    e(f"v_permlane32_swap_b32 v{V_L}, v12")
    g.nop(1)
    e(f"v_add_f32 v{V_L}, v{V_L}, v12")
    e(f"v_mov_b32 v12, v{V_L}")
    g.nop(2)
    e(f"v_permlane16_swap_b32 v{V_L}, v12")
    g.nop(1)
    e(f"v_add_f32 v{V_L}, v{V_L}, v12")
    e(f"v_lshrrev_b32 v12, 3, v11")
    e(f"s_lshl_b32 s{S_TMP}, s{S_W}, 4")
    e(f"v_lshlrev_b32 v13, 3, v12")
    e(f"v_add_u32 v13, s{S_TMP}, v13")
    e(f"ds_write_b64 v13, v[{V_MC}:{V_L}] offset:{L_ML}")
    e(f"v_lshlrev_b32 v13, 10, v12")
    e(f"v_lshl_add_u32 v13, v10, 7, v13")
    e(f"v_and_b32 v14, 7, v{V_LANE}")
    e(f"v_lshl_add_u32 v13, v14, 2, v13")
    e(f"s_lshl_b32 s{S_TMP}, s{S_W}, 11")
    e(f"v_add_u32 v13, s{S_TMP}, v13")
    g.nop(8)
    for h in range(2):
        for r in range(4):
            e(f"ds_write_b32 v13, v{V_ACC+4*h+r} offset:{L_O + h*512 + r*32}")
    e("s_waitcnt lgkmcnt(0)")
    if opt.get("fine", 0): stamp(11)
    e("s_barrier")
    if opt.get("fine", 0): stamp(12)
    e(f"s_cmp_eq_u32 s{S_MODE}, 1")
    e("s_cbranch_scc1 L_comb_done")
    g.label("L_partB")
    e(f"v_lshlrev_b32 v12, 4, v{V_J}")
    e(f"v_lshrrev_b32 v10, 7, v{V_J}")
    e(f"v_lshlrev_b32 v11, 4, v10")
    e(f"s_lshl_b32 s{S_TMP}, s{S_GRP}, 15")
    e(f"s_add_u32 s{S_TMP}, s{S_TMP}, {WS_P}")

    def slot_addr(k):
        e(f"s_add_u32 s{S_TMP2}, s{S_S}, {k}")
        e(f"s_and_b32 s{S_TMP2}, s{S_TMP2}, 3")
        e(f"s_lshl_b32 s{S_TMP2}, s{S_TMP2}, 13")
        e(f"s_add_u32 s{S_TMP2}, s{S_TMP2}, s{S_TMP}")

    def p2_loads(k):
        slot_addr(k)
        e(f"buffer_load_dwordx4 v[{72+8*k}:{75+8*k}], v12, s[{R_WS}:{R_WS+3}], s{S_TMP2} offen offset:64 sc1")
        e(f"buffer_load_dwordx4 v[{76+8*k}:{79+8*k}], v11, s[{R_WS}:{R_WS+3}], s{S_TMP2} offen sc1")
    skip_if_dry("L_d1")
    for k in range(1, 4):
        p2_loads(k)
    g.label("L_d1")
    e(f"v_lshlrev_b32 v13, 3, v10")
    e(f"v_lshlrev_b32 v14, 3, v{V_J}")
    for w in range(8):
        e(f"ds_read_b64 v[{40+2*w}:{41+2*w}], v13 offset:{L_ML + w*16}")
    for w in range(8):
        e(f"ds_read_b64 v[{104+2*w}:{105+2*w}], v14 offset:{L_O + w*2048}")
    e("s_waitcnt lgkmcnt(0)")
    e("v_max3_f32 v76, v40, v42, v44")
    e("v_max3_f32 v76, v76, v46, v48")
    e("v_max3_f32 v76, v76, v50, v52")
    e("v_max_f32 v76, v76, v54")
    for w in range(8):
        e(f"v_sub_f32 v{40+2*w}, v{40+2*w}, v76")
    for w in range(8):
        e(f"v_exp_f32 v{40+2*w}, v{40+2*w}")
    g.nop(1)
    e("v_mul_f32 v78, v40, v41")
    e("v_mul_f32 v72, v40, v104")
    e("v_mul_f32 v74, v40, v105")
    for w in range(1, 8):
        e(f"v_fmac_f32 v78, v{40+2*w}, v{41+2*w}")
        e(f"v_fmac_f32 v72, v{40+2*w}, v{104+2*w}")
        e(f"v_fmac_f32 v74, v{40+2*w}, v{105+2*w}")
    e(f"v_mov_b32 v73, s{S_TA}")
    e(f"v_mov_b32 v75, s{S_TB}")
    e(f"v_mov_b32 v77, s{S_TA}")
    e(f"v_mov_b32 v79, s{S_TB}")
    slot_addr(0)
    skip_if_dry("L_d2")
    e(f"buffer_store_dwordx4 v[72:75], v12, s[{R_WS}:{R_WS+3}], s{S_TMP2} offen offset:64 sc1")
    e(f"v_and_b32 v13, 127, v{V_J}")
    e(f"v_cmp_eq_u32 vcc, 0, v13")
    e(f"s_and_saveexec_b64 s[{S_EX}:{S_EX+1}], vcc")
    e("s_cbranch_execz L_noml")
    e(f"buffer_store_dwordx4 v[76:79], v11, s[{R_WS}:{R_WS+3}], s{S_TMP2} offen sc1")
    g.label("L_noml")
    e(f"s_mov_b64 exec, -1")
    g.label("L_d2")
    stamp(6)
    e(f"s_mov_b32 s{S_CNT}, {SPIN}")
    e(f"s_cmp_eq_u32 s{S_MODE}, 2")
    e(f"s_cselect_b32 s{S_VM}, 15, 1")
    e("s_branch L_p2chk")
    g.label("L_poll2")
    for k in range(1, 4):
        e(f"s_bitcmp1_b32 s{S_VM}, {k}")
        e(f"s_cbranch_scc1 L_p2s{k}")
        p2_loads(k)
        g.label(f"L_p2s{k}")
    g.label("L_p2chk")
    e("s_waitcnt vmcnt(0)")
    for k in range(1, 4):
        tagcheck(72+8*k, 4)
        e("s_cmp_eq_u64 vcc, 0")
        e(f"s_cselect_b32 s{S_TMP2}, {1<<k}, 0")
        e(f"s_or_b32 s{S_VM}, s{S_VM}, s{S_TMP2}")
    e(f"s_sub_u32 s{S_CNT}, s{S_CNT}, 1")
    e("s_cbranch_scc1 L_poll2_done")
    e(f"s_cmp_lg_u32 s{S_VM}, 15")
    e("s_cbranch_scc1 L_poll2")
    g.label("L_poll2_done")
    stamp(7)
    e("v_max3_f32 v13, v76, v84, v92")
    e("v_max_f32 v13, v13, v100")
    for s_ in range(4):
        e(f"v_sub_f32 v{76+8*s_}, v{76+8*s_}, v13")
    for s_ in range(4):
        e(f"v_exp_f32 v{76+8*s_}, v{76+8*s_}")
    g.nop(1)
    e("v_mul_f32 v14, v76, v78")
    e("v_mul_f32 v15, v76, v72")
    e("v_mul_f32 v13, v76, v74")
    for s_ in range(1, 4):
        e(f"v_fmac_f32 v14, v{76+8*s_}, v{78+8*s_}")
        e(f"v_fmac_f32 v15, v{76+8*s_}, v{72+8*s_}")
        e(f"v_fmac_f32 v13, v{76+8*s_}, v{74+8*s_}")
    e("v_rcp_f32 v14, v14")
    g.nop(1)
    e("v_mul_f32 v15, v15, v14")
    e("v_mul_f32 v13, v13, v14")
    e("v_cvt_pk_bf16_f32 v15, v15, v13")
    e(f"v_lshlrev_b32 v13, 2, v{V_J}")
    e(f"ds_write_b32 v13, v15 offset:{L_OB}")
    e("s_waitcnt lgkmcnt(0)")
    g.label("L_comb_done")
    skip_if_dry("L_d3")
    e("s_barrier")
    g.label("L_d3")
    if opt.get("rep", 0):
        e(f"s_mov_b32 s23, 0")
        stamp(11)
        g.label("L_rep")
    e(f"v_lshrrev_b32 v10, 4, v{V_LANE}")
    e(f"s_lshl_b32 s{S_TMP}, s{S_W}, 7")
    e(f"v_lshlrev_b32 v12, 5, v10")
    e(f"v_add_u32 v12, s{S_TMP}, v12")
    e(f"ds_read_b128 v[40:43], v12 offset:{L_OB}")
    e(f"ds_read_b128 v[44:47], v12 offset:{L_OB+16}")
    e("s_waitcnt lgkmcnt(0)")
    for i in range(16):
        sel = S_SELO if (i & 1) else S_SELE
        bb = 48 + 4 * (i & 1)
        e(f"v_perm_b32 v60, v{40+(i>>1)}, v{40+(i>>1)}, s{sel}")
        for t in range(4):
            e(f"v_and_b32 v{bb+t}, v60, v{V_M+t}")
        g.nop(2)
        csrc = "0" if i == 0 else vr(QA, 4)
        e(f"v_mfma_f32_16x16x32_bf16 {vr(QA,4)}, {vr(V_WO+4*i,4)}, {vr(bb,4)}, {csrc}")
    e(f"v_and_b32 v12, 7, v{V_LANE}")
    e(f"v_lshlrev_b32 v12, 2, v12")
    e(f"v_lshl_add_u32 v12, v10, 7, v12")
    e(f"s_lshl_b32 s{S_TMP}, s{S_W}, 9")
    e(f"v_add_u32 v12, s{S_TMP}, v12")
    g.nop(8)
    for r in range(4):
        e(f"ds_write_b32 v12, v{QA+r} offset:{L_QP + r*32}")
    e("s_waitcnt lgkmcnt(0)")
    if opt.get("rep", 0):
        e("s_cmp_lg_u32 s23, 0")
        e("s_cbranch_scc1 L_rep2")
        stamp(12)
        e("s_mov_b32 s23, 1")
        e("s_branch L_rep")
        g.label("L_rep2")
        stamp(13)
    skip_if_dry("L_d4")
    e("s_barrier")
    e(f"s_cmp_lg_u32 s{S_W}, 0")
    e("s_cbranch_scc1 L_end")
    g.label("L_d4")
    e(f"v_lshlrev_b32 v13, 1, v{V_LANE}")
    e(f"v_cmp_gt_u32 vcc, s{S_NC}, v13")
    e(f"s_and_b64 exec, exec, vcc")
    e(f"v_lshlrev_b32 v14, 3, v{V_LANE}")
    for w in range(8):
        e(f"ds_read_b64 v[{40+2*w}:{41+2*w}], v14 offset:{L_QP + w*512}")
    e(f"s_lshl_b32 s{S_TMP}, s{S_FIN}, 13")
    e(f"s_add_u32 s{S_TMP}, s{S_TMP}, {WS_F}")
    e(f"s_lshl_b32 s{S_TMP2}, s{S_KVH}, 10")
    e(f"s_add_u32 s{S_TMP2}, s{S_TMP2}, s{S_TMP}")
    e(f"v_lshlrev_b32 v12, 4, v{V_LANE}")
    e("s_waitcnt lgkmcnt(0)")
    e(f"v_mov_b32 v72, v40")
    e(f"v_mov_b32 v74, v41")
    for w in range(1, 8):
        e(f"v_add_f32 v72, v72, v{40+2*w}")
        e(f"v_add_f32 v74, v74, v{41+2*w}")
    e(f"v_mov_b32 v73, s{S_TA}")
    e(f"v_mov_b32 v75, s{S_TB}")
    skip_if_dry("L_red")
    e(f"s_cmp_eq_u32 s{S_KVH}, s{S_KVR}")
    e("s_cbranch_scc1 L_red")
    e(f"buffer_store_dwordx4 v[72:75], v12, s[{R_WS}:{R_WS+3}], s{S_TMP2} offen sc1")
    stamp(8)
    lite_exit()
    e("s_endpgm")
    g.label("L_red")
    stamp(8)
    e(f"s_mov_b32 s{S_CNT}, {SPIN}")
    e(f"s_cmp_eq_u32 s{S_MODE}, 2")
    e(f"s_cselect_b32 s{S_VM}, 255, 1")
    g.label("L_poll3")
    for k in range(1, 8):
        e(f"s_bitcmp1_b32 s{S_VM}, {k}")
        e(f"s_cbranch_scc1 L_p3s{k}")
        e(f"s_add_u32 s{S_TMP2}, s{S_KVH}, {k}")
        e(f"s_and_b32 s{S_TMP2}, s{S_TMP2}, 7")
        e(f"s_lshl_b32 s{S_TMP2}, s{S_TMP2}, 10")
        e(f"s_add_u32 s{S_TMP2}, s{S_TMP2}, s{S_TMP}")
        e(f"buffer_load_dwordx4 v[{72+4*k}:{75+4*k}], v12, s[{R_WS}:{R_WS+3}], s{S_TMP2} offen sc1")
        g.label(f"L_p3s{k}")
    e("s_waitcnt vmcnt(0)")
    for k in range(1, 8):
        tagcheck(72+4*k, 2)
        e("s_cmp_eq_u64 vcc, 0")
        e(f"s_cselect_b32 s{S_TMP2}, {1<<k}, 0")
        e(f"s_or_b32 s{S_VM}, s{S_VM}, s{S_TMP2}")
    e(f"s_sub_u32 s{S_CNT}, s{S_CNT}, 1")
    e("s_cbranch_scc1 L_poll3_done")
    e(f"s_cmp_lg_u32 s{S_VM}, 255")
    e("s_cbranch_scc1 L_poll3")
    g.label("L_poll3_done")
    for k in range(1, 8):
        e(f"v_add_f32 v72, v72, v{72+4*k}")
        e(f"v_add_f32 v74, v74, v{74+4*k}")
    e("v_cvt_pk_bf16_f32 v40, v72, v74")
    e(f"s_mul_i32 s{S_TMP}, s{S_B}, 1792")
    e(f"s_mul_i32 s{S_TMP2}, s{S_AB}, 896")
    e(f"s_add_u32 s{S_TMP}, s{S_TMP}, s{S_TMP2}")
    e(f"s_lshl_b32 s{S_TMP2}, s{S_S}, 8")
    e(f"s_add_u32 s{S_TMP}, s{S_TMP}, s{S_TMP2}")
    e(f"v_lshlrev_b32 v12, 2, v{V_LANE}")
    skip_if_dry("L_dryret")
    e(f"buffer_store_dword v40, v12, s[{R_OUT}:{R_OUT+3}], s{S_TMP} offen")
    stamp(9)
    lite_exit()
    e(f"s_cmp_lg_u32 s{S_S}, 0")
    e("s_cbranch_scc1 L_end")
    e(f"s_lshr_b32 s{S_TMP}, s2, 5")
    e(f"s_lshl_b32 s{S_TMP}, s{S_TMP}, 7")
    e(f"v_mov_b32 v12, s{S_TMP}")
    e(f"v_mov_b32 v40, s{S_E}")
    e(f"v_mov_b32 v41, s{S_E+1}")
    e("s_mov_b64 exec, 1")
    e(f"buffer_store_dwordx2 v[40:41], v12, s[{R_WS}:{R_WS+3}], 0 offen offset:{WS_E} sc1")
    g.label("L_end")
    e("s_endpgm")
    g.l.append('.section .rodata,"a"')
    g.l.append(".p2align 6")
    g.l.append(f".amdhsa_kernel {KN}")
    g.l.append("  .amdhsa_next_free_vgpr 256")
    g.l.append("  .amdhsa_next_free_sgpr 102")
    g.l.append("  .amdhsa_accum_offset 256")
    g.l.append("  .amdhsa_group_segment_fixed_size 0")
    g.l.append("  .amdhsa_kernarg_size 104")
    g.l.append("  .amdhsa_user_sgpr_count 2")
    g.l.append("  .amdhsa_user_sgpr_kernarg_segment_ptr 1")
    g.l.append("  .amdhsa_system_sgpr_workgroup_id_x 1")
    g.l.append(".end_amdhsa_kernel")
    return "\n".join(g.l) + "\n"


if __name__ == "__main__":
    out = sys.argv[1]
    opt = {}
    for a in sys.argv[2:]:
        k, v = a.split("=")
        opt[k] = int(v, 0)
    open(out, "w").write(gen(opt))
```

```python
import sys
from gen import G, vr, HEADER, KN

WS_E = 0x0
WS_Q = 0x4000
WS_F = 0x40000
WS_P = 0x100000
WS_T = 0x400000
WS_C = 0x800000
WS_SIZE = 0x1000000

L_QP = 0
L_Q = 4096
L_ML = 5120
L_TK = 5248
L_OB = 5376
L_O = 8192
LDS_MIN = 8192 + 16384

S_X, S_K, S_V, S_WQ, S_WO = 4, 6, 8, 10, 12
S_OUT, S_DBG, S_WS = 44, 46, 48
S_KVH, S_S, S_B, S_AB, S_W, S_GRP = 14, 15, 16, 17, 18, 19
R_K, R_V, R_W, R_X, R_WS, R_OUT = 52, 56, 60, 68, 72, 80
S_T0 = 84
S_CNT = 88
S_TMP, S_TMP2, S_TMP3 = 89, 90, 91
S_C = 92
S_SELE, S_SELO = 93, 94
S_EX = 96
S_KVR = 3
S_ST = 64
S_FIN = 50
S_TA, S_TB = 76, 77
S_E = 78
S_CUR, S_NXT = 98, 99
S_N2 = 51
S_SA = 100
S_PEND = 101
S_CB = 66
S_ROT = 42
S_NC = 20
S_RDY = 21
S_VM = 22
S_MODE = 23
V_J = 61
R_WO = 36
S_SB = 43

V_TID, V_LANE, V_KOFF, V_VOFF = 0, 1, 2, 3
V_M = 4
V_MC, V_L = 8, 9
V_Q = 16
V_ACC = 24
V_P = 32
V_TK, V_TKA, V_ONE, V_WOFF = 36, 37, 38, 39
V_S = 40
V_TAG = 61


def gen(opt):
    g = G(opt)
    e, c = g.e, g.c
    NG = 4
    NT = " nt" if opt.get("nt", 1) else ""
    NTW = " nt" if opt.get("ntw", 0) else ""
    stamps = opt.get("stamps", 0)
    lite = opt.get("lite", 0)
    pre = opt.get("pre", 8)
    spread = opt.get("spread", 1)
    SW = opt.get("sw", 112)
    cstride = opt.get("cstride", 2048)
    lds = max(opt.get("lds", 0), LDS_MIN)
    SPIN = opt.get("spin", 0x20000)
    cpf = opt.get("cpf", 0)
    tile_bytes = NG * 2048
    ntiles = 8192 // (4 * NG)
    V_KR = 72
    V_VR = V_KR + 8 * NG
    V_WO = V_VR + 8 * NG
    V_WQ = 200

    dbgst = opt.get("dbgst", 0)

    def stamp(idx):
        if dbgst and idx in (0, 1, 3, 4, 5, 7, 9):
            e(f"s_memrealtime s[{S_ST}:{S_ST+1}]")
            e("s_waitcnt lgkmcnt(0)")
            if idx == 0:
                e(f"s_not_b32 s{S_ST}, s30")
            e(f"v_mov_b32 v14, s{S_ST}")
            e(f"v_mov_b32 v13, {idx*4}")
            e(f"s_mov_b32 s24, s{S_DBG}")
            e(f"s_mov_b32 s25, s{S_DBG+1}")
            e(f"s_mov_b32 s26, 256")
            e(f"s_mov_b32 s27, 0x00020000")
            e(f"s_mov_b64 s[28:29], exec")
            e(f"s_mov_b64 exec, 1")
            e(f"buffer_atomic_umax v14, v13, s[24:27], 0 offen")
            e(f"s_mov_b64 exec, s[28:29]")
            return
        if not stamps:
            return
        e(f"s_memrealtime s[{S_ST}:{S_ST+1}]")
        e("s_waitcnt lgkmcnt(0)")
        e(f"v_mov_b32 v14, s{S_ST}")
        e(f"v_mov_b32 v15, s{S_ST+1}")
        e(f"v_mov_b32 v13, s95")
        e(f"buffer_store_dwordx2 v[14:15], v13, s[{R_WS}:{R_WS+3}], 0 offen offset:{idx*8}")


    def lite_exit():
        if not lite: return
        e("s_memrealtime s[26:27]")
        e("s_waitcnt lgkmcnt(0)")
        e("s_mov_b64 exec, 1")
        e(f"s_lshl_b32 s28, s2, 11")
        e(f"s_add_u32 s28, s28, {WS_T}")
        e("v_mov_b32 v13, s28")
        e("v_mov_b32 v14, s30"); e("v_mov_b32 v15, s31")
        e(f"buffer_store_dwordx2 v[14:15], v13, s[{R_WS}:{R_WS+3}], 0 offen offset:0")
        e(f"buffer_store_dwordx2 v[14:15], v13, s[{R_WS}:{R_WS+3}], 0 offen offset:80")
        e("v_mov_b32 v16, s24"); e("v_mov_b32 v17, s25")
        e(f"buffer_store_dwordx2 v[16:17], v13, s[{R_WS}:{R_WS+3}], 0 offen offset:40")
        e("v_mov_b32 v18, s26"); e("v_mov_b32 v19, s27")
        e(f"buffer_store_dwordx2 v[18:19], v13, s[{R_WS}:{R_WS+3}], 0 offen offset:72")

    def srd(R, base, off_s, nrec):
        if off_s is None:
            e(f"s_mov_b32 s{R}, s{base}")
            e(f"s_mov_b32 s{R+1}, s{base+1}")
        else:
            e(f"s_add_u32 s{R}, s{base}, {off_s}")
            e(f"s_addc_u32 s{R+1}, s{base+1}, 0")
        e(f"s_mov_b32 s{R+2}, {nrec}")
        e(f"s_mov_b32 s{R+3}, 0x00020000")

    def tagcheck(first_reg, n):
        e(f"v_cmp_ne_u32 vcc, s{S_TA}, v{first_reg+1}")
        for k in range(1, n):
            tg = S_TB if (k & 1) else S_TA
            e(f"v_cmp_ne_u32 s[{S_EX}:{S_EX+1}], s{tg}, v{first_reg+2*k+1}")
            e(f"s_or_b64 vcc, vcc, s[{S_EX}:{S_EX+1}]")

    def pollend(lab):
        e(f"s_sub_u32 s{S_CNT}, s{S_CNT}, 1")
        e(f"s_cbranch_scc1 {lab}_done")
        e("s_cmp_lg_u64 vcc, 0")
        e(f"s_cbranch_scc1 {lab}")
        g.label(f"{lab}_done")

    g.l.append(HEADER.rstrip("\n"))
    g.l.append(f"; @launch grid=(256,1,1) block=(512,1,1) lds={lds}")
    g.l.append('.amdgcn_target "amdgcn-amd-amdhsa--gfx950"')
    g.l.append(".text")
    g.l.append(f".globl {KN}")
    g.l.append(".p2align 8")
    g.l.append(f".type {KN},@function")
    g.l.append(f"{KN}:")
    if stamps or opt.get("dbgst", 0) or lite:
        e("s_memrealtime s[30:31]")
    e("s_cmp_ge_u32 s2, 256")
    e("s_cbranch_scc1 L_end")
    e("s_load_dwordx8 s[20:27], s[0:1], 0")
    e("s_load_dwordx2 s[28:29], s[0:1], 32")
    e("s_load_dwordx8 s[32:39], s[0:1], 40")
    e("s_load_dwordx2 s[40:41], s[0:1], 72")
    e(f"s_load_dwordx4 s[{S_OUT}:{S_OUT+3}], s[0:1], 80")
    e(f"s_load_dwordx2 s[{S_WS}:{S_WS+1}], s[0:1], 96")
    e(f"v_lshrrev_b32 v10, 6, v0")
    e(f"v_and_b32 v{V_LANE}, 63, v0")
    e(f"v_readfirstlane_b32 s{S_W}, v10")
    e(f"s_lshr_b32 s{S_S}, s2, 3")
    e(f"s_and_b32 s{S_S}, s{S_S}, 3")
    e(f"s_and_b32 s{S_KVH}, s2, 7")
    if spread:
        e(f"s_and_b32 s{S_TMP}, s{S_S}, 1")
        e(f"s_lshr_b32 s{S_TMP2}, s{S_S}, 1")
        e(f"s_lshl_b32 s{S_TMP2}, s{S_TMP2}, 2")
        e(f"s_add_u32 s{S_TMP}, s{S_TMP}, s{S_TMP2}")
        e(f"s_sub_u32 s{S_KVH}, s{S_KVH}, s{S_TMP}")
        e(f"s_and_b32 s{S_KVH}, s{S_KVH}, 7")
    e(f"s_lshr_b32 s{S_B}, s2, 5")
    e(f"s_and_b32 s{S_B}, s{S_B}, 3")
    e(f"s_lshr_b32 s{S_AB}, s2, 7")
    e(f"s_lshr_b32 s{S_TMP}, s2, 5")
    e(f"s_lshl_b32 s{S_GRP}, s{S_TMP}, 3")
    e(f"s_or_b32 s{S_GRP}, s{S_GRP}, s{S_KVH}")
    e(f"s_lshl_b32 s{S_FIN}, s{S_TMP}, 2")
    e(f"s_or_b32 s{S_FIN}, s{S_FIN}, s{S_S}")
    e(f"s_and_b32 s{S_KVR}, s{S_FIN}, 7")
    e(f"s_lshl_b32 s{S_TMP3}, s{S_TMP}, 7")
    e(f"s_mov_b32 s{S_C}, 0x3db8aa3b")
    e(f"s_mov_b32 s{S_SELE}, 0x01000100")
    e(f"s_mov_b32 s{S_SELO}, 0x03020302")
    e(f"v_lshrrev_b32 v10, 4, v{V_LANE}")
    e(f"v_and_b32 v11, 15, v{V_LANE}")
    e(f"v_bfe_u32 v12, v{V_LANE}, 2, 2")
    e(f"v_lshlrev_b32 v12, 9, v12")
    e(f"v_lshl_add_u32 v12, v10, 6, v12")
    e(f"v_and_b32 v13, 3, v{V_LANE}")
    e(f"v_lshl_add_u32 v{V_KOFF}, v13, 4, v12")
    e(f"v_lshlrev_b32 v12, 9, v10")
    e(f"v_lshl_add_u32 v{V_VOFF}, v11, 4, v12")
    e(f"v_and_b32 v12, 1, v{V_LANE}")
    e(f"v_lshlrev_b32 v12, 4, v12")
    e(f"v_mov_b32 v13, 0xffff")
    e(f"v_lshlrev_b32 v13, v12, v13")
    e(f"v_bfe_u32 v12, v{V_LANE}, 1, 2")
    for t in range(4):
        e(f"v_cmp_eq_u32 vcc, {t}, v12")
        g.nop(2)
        e(f"v_cndmask_b32 v{V_M+t}, 0, v13, vcc")
    e("s_waitcnt lgkmcnt(0)")
    srd(R_WS, S_WS, None, hex(WS_SIZE))
    e(f"v_mov_b32 v62, s{S_TMP3}")
    e(f"buffer_load_dwordx2 v[62:63], v62, s[{R_WS}:{R_WS+3}], 0 offen offset:{WS_E} sc1")
    e(f"s_cmp_eq_u32 s{S_AB}, 0")
    for i, dst in enumerate([S_X, S_K, S_V, S_WQ, S_WO]):
        e(f"s_cselect_b64 s[{dst}:{dst+1}], s[{20+2*i}:{21+2*i}], s[{32+2*i}:{33+2*i}]")
    srd(R_X, S_X, None, "3584")
    e(f"s_mul_i32 s{S_TMP}, s{S_W}, {56*8192}")
    e(f"s_lshl_b32 s{S_TMP2}, s{S_KVH}, 10")
    e(f"s_add_u32 s{S_TMP}, s{S_TMP}, s{S_TMP2}")
    e(f"s_lshl_b32 s{S_TMP2}, s{S_S}, 8")
    e(f"s_add_u32 s{S_TMP}, s{S_TMP}, s{S_TMP2}")
    e(f"s_sub_u32 s{S_TMP2}, {448*8192}, s{S_TMP}")
    srd(R_W, S_WQ, f"s{S_TMP}", f"s{S_TMP2}")
    e(f"s_mul_i32 s{S_TMP}, s{S_B}, 896")
    e(f"s_mul_i32 s{S_TMP2}, s{S_W}, 112")
    e(f"s_add_u32 s{S_TMP}, s{S_TMP}, s{S_TMP2}")
    e(f"v_mul_u32_u24 v12, 28, v10")
    e(f"buffer_load_dwordx4 v[40:43], v12, s[{R_X}:{R_X+3}], s{S_TMP} offen")
    e(f"buffer_load_dwordx4 v[44:47], v12, s[{R_X}:{R_X+3}], s{S_TMP} offen offset:16")
    e(f"v_mul_u32_u24 v12, {14*8192//16}, v10")
    e(f"v_add_lshl_u32 v12, v12, v11, 4")
    e(f"s_mov_b32 s{S_TMP}, 0")
    for i in range(14):
        if not opt.get("noq", 0): e(f"buffer_load_dwordx4 {vr(V_WQ+4*i,4)}, v12, s[{R_W}:{R_W+3}], s{S_TMP} offen{NTW}")
        if i < 13:
            e(f"s_add_u32 s{S_TMP}, s{S_TMP}, 8192")
    e(f"s_lshl_b32 s{S_TMP}, s{S_B}, 3")
    e(f"s_or_b32 s{S_TMP}, s{S_TMP}, s{S_KVH}")
    e(f"s_lshl_b32 s{S_TMP}, s{S_TMP}, 22")
    srd(R_K, S_K, f"s{S_TMP}", "0x400000")
    srd(R_V, S_V, f"s{S_TMP}", "0x400000")
    srd(R_OUT, S_OUT, None, "7168")
    e(f"s_mul_i32 s{S_TMP3}, s{S_GRP}, {cstride}")
    e(f"s_add_u32 s{S_TMP3}, s{S_TMP3}, {WS_C}")
    e(f"s_add_u32 s{S_CB}, s{S_WS}, s{S_TMP3}")
    e(f"s_addc_u32 s{S_CB+1}, s{S_WS+1}, 0")
    if stamps:
        e(f"s_lshl_b32 s95, s2, 11")
        e(f"s_lshl_b32 s{S_TMP}, s{S_W}, 8")
        e(f"s_add_u32 s95, s95, s{S_TMP}")
        e(f"s_add_u32 s95, s95, {WS_T}")
    e(f"v_mov_b32 v{V_TKA}, {L_TK}")
    e(f"v_mov_b32 v{V_ONE}, 1")
    if SW < 128:
        e(f"s_or_b32 s{S_TMP}, s{S_S}, s{S_W}")
        e(f"s_cmp_lg_u32 s{S_TMP}, 0")
        e("s_cbranch_scc1 L_noinit")
        e(f"v_mov_b32 v12, s{S_TMP3}")
        e(f"v_mov_b32 v13, {4*SW}")
        e(f"s_mov_b64 exec, 1")
        e(f"buffer_store_dword v13, v12, s[{R_WS}:{R_WS+3}], 0 offen sc1")
        e(f"s_mov_b64 exec, -1")
        g.label("L_noinit")
    e(f"s_mul_i32 s{S_SB}, s{S_S}, {SW}")
    e(f"s_add_u32 s{S_CUR}, s{S_SB}, s{S_W}")
    LW = opt.get("lw", 3)
    hyb = opt.get("hyb", 1)
    if hyb:
        e(f"s_add_u32 s{S_NXT}, s{S_CUR}, 8")
        e(f"s_cmp_ge_u32 s{S_W}, {LW}")
        e(f"s_cselect_b32 s{S_NXT}, {ntiles}, s{S_NXT}")
        TK0 = 8 + LW
    else:
        e(f"s_add_u32 s{S_NXT}, s{S_CUR}, {LW}")
        if LW < 8:
            e(f"s_cmp_ge_u32 s{S_W}, {LW}")
            e(f"s_cselect_b32 s{S_CUR}, {ntiles}, s{S_CUR}")
            e(f"s_cselect_b32 s{S_NXT}, {ntiles}, s{S_NXT}")
        TK0 = 2 * LW
    e(f"s_mov_b32 s{S_PEND}, 0")

    def set_offsets(sidx):
        e(f"s_lshl_b32 s{S_T0}, s{sidx}, 13")
        e(f"s_add_u32 s{S_T0+1}, s{S_T0}, 4096")

    set_offsets(S_CUR)

    def ld_k(i, h):
        e(f"buffer_load_dwordx4 {vr(V_KR+8*i+4*h,4)}, v{V_KOFF}, s[{R_K}:{R_K+3}], s{S_T0+(i>>1)} offen offset:{(i&1)*2048+h*256}{NT}")

    def ld_v(i, h):
        e(f"buffer_load_dwordx4 {vr(V_VR+8*i+4*h,4)}, v{V_VOFF}, s[{R_V}:{R_V+3}], s{S_T0+(i>>1)} offen offset:{(i&1)*2048+h*256}{NT}")

    def ld_wo(ii, _):
        e(f"s_mov_b32 s{S_TMP2}, {ii*896}")
        e(f"buffer_load_dwordx4 {vr(V_WO+4*ii,4)}, v{V_WOFF}, s[{R_WO}:{R_WO+3}], s{S_TMP2} offen{NTW}")

    peel = opt.get("peel", 1)
    kv = [(ld_k, i, h) for i in range(NG) for h in range(2)] + [(ld_v, i, h) for i in range(NG) for h in range(2)]
    wos = [(ld_wo, ii, 0) for ii in range(16)]
    seq = kv + wos if peel else wos + kv
    e(f"s_lshl_b32 s{S_TMP}, s{S_KVH}, 9")
    e(f"s_lshl_b32 s{S_TMP2}, s{S_W}, 6")
    e(f"s_add_u32 s{S_TMP}, s{S_TMP}, s{S_TMP2}")
    e(f"s_mul_i32 s{S_TMP}, s{S_TMP}, 896")
    e(f"s_lshl_b32 s{S_TMP2}, s{S_S}, 8")
    e(f"s_add_u32 s{S_TMP}, s{S_TMP}, s{S_TMP2}")
    e(f"s_sub_u32 s{S_TMP2}, {4096*896}, s{S_TMP}")
    srd(R_WO, S_WO, f"s{S_TMP}", f"s{S_TMP2}")
    e(f"v_mul_u32_u24 v12, {16*896//16}, v10")
    e(f"v_add_lshl_u32 v12, v12, v11, 4")
    e(f"s_cmp_eq_u32 s{S_S}, 3")
    e(f"s_cselect_b32 s{S_NC}, 64, 128")
    e(f"v_lshlrev_b32 v13, 3, v11")
    e(f"v_cmp_le_u32 vcc, s{S_NC}, v13")
    e(f"v_mov_b32 v13, 0x40000000")
    g.nop(1)
    e(f"v_cndmask_b32 v{V_WOFF}, v12, v13, vcc")
    stamp(0)
    if stamps:
        e(f"v_mov_b32 v14, s30")
        e(f"v_mov_b32 v15, s31")
        e(f"buffer_store_dwordx2 v[14:15], v13, s[{R_WS}:{R_WS+3}], 0 offen offset:80")
    bench = opt.get("bench", 0)
    if bench:
        for f, i, h in kv:
            f(i, h)
        for r in range(8):
            e(f"v_mov_b32 v{V_Q+r}, 0x3f9d3e80")
        e("s_branch L_bench")
    W0 = opt.get("w0", 8)
    STEP = opt.get("step", 4)
    b0 = opt.get("b0", 0)
    if b0:
        e("s_barrier")
    e(f"s_cmp_eq_u32 s{S_W}, 0")
    e("s_cbranch_scc1 L_nopre")
    for f, i, h in seq[:W0]:
        f(i, h)
    g.label("L_nopre")
    e(f"s_cmp_eq_u32 s{S_W}, 0")
    e("s_cbranch_scc1 L_w0w")
    e(f"s_waitcnt vmcnt({W0})")
    e("s_branch L_qc")
    g.label("L_w0w")
    e(f"s_waitcnt vmcnt(0)")
    g.label("L_qc")
    e(f"v_readfirstlane_b32 s{S_E}, v62")
    e(f"v_readfirstlane_b32 s{S_E+1}, v63")
    g.nop(4)
    e(f"s_add_u32 s{S_E}, s{S_E}, 1")
    e(f"s_addc_u32 s{S_E+1}, s{S_E+1}, 0")
    e(f"s_mov_b32 s{S_TA}, s{S_E}")
    e(f"s_brev_b32 s{S_TB}, s{S_E}")
    e(f"s_xor_b32 s{S_TB}, s{S_TB}, s{S_E+1}")
    stamp(1)
    QA = 56
    for i in range(14):
        sel = S_SELO if (i & 1) else S_SELE
        bb = 48 + 4 * (i & 1)
        e(f"v_perm_b32 v60, v{40+(i>>1)}, v{40+(i>>1)}, s{sel}")
        for t in range(4):
            e(f"v_and_b32 v{bb+t}, v60, v{V_M+t}")
        g.nop(2)
        csrc = "0" if i == 0 else vr(QA, 4)
        e(f"v_mfma_f32_16x16x32_bf16 {vr(QA,4)}, {vr(V_WQ+4*i,4)}, {vr(bb,4)}, {csrc}")
    e(f"v_and_b32 v12, 7, v{V_LANE}")
    e(f"v_lshlrev_b32 v12, 2, v12")
    e(f"v_lshl_add_u32 v12, v10, 7, v12")
    e(f"s_lshl_b32 s{S_TMP}, s{S_W}, 9")
    e(f"v_add_u32 v12, s{S_TMP}, v12")
    e(f"v_mov_b32 v13, {TK0}")
    e(f"v_mov_b32 v14, 0")
    g.nop(6)
    for r in range(4):
        e(f"ds_write_b32 v12, v{QA+r} offset:{L_QP + r*32}")
    e(f"ds_write_b32 v{V_TKA}, v13")
    e(f"ds_write_b32 v{V_TKA}, v14 offset:4")
    e("s_waitcnt lgkmcnt(0)")
    e("s_barrier")
    e(f"s_cmp_lg_u32 s{S_W}, 0")
    e("s_cbranch_scc1 L_paced")
    e(f"v_lshlrev_b32 v12, 4, v{V_LANE}")
    e(f"v_and_b32 v12, 0x1ff, v12")
    for w in range(8):
        e(f"ds_read_b128 v[{72+4*w}:{75+4*w}], v12 offset:{L_QP + w*512}")
    e(f"s_lshl_b32 s{S_TMP}, s{S_GRP}, 11")
    e(f"s_add_u32 s{S_TMP}, s{S_TMP}, {WS_Q}")
    e(f"s_lshl_b32 s{S_TMP2}, s{S_S}, 9")
    e(f"s_add_u32 s{S_TMP2}, s{S_TMP2}, s{S_TMP}")
    e("s_waitcnt lgkmcnt(0)")
    for w in range(1, 8):
        for c_ in range(4):
            e(f"v_add_f32 v{72+c_}, v{72+c_}, v{72+4*w+c_}")
    e(f"v_cvt_pk_bf16_f32 v40, v72, v73")
    e(f"v_mov_b32 v41, s{S_TA}")
    e(f"v_cvt_pk_bf16_f32 v42, v74, v75")
    e(f"v_mov_b32 v43, s{S_TB}")
    e("s_mov_b32 exec_hi, 0")
    e(f"buffer_store_dwordx4 v[40:43], v12, s[{R_WS}:{R_WS+3}], s{S_TMP2} offen sc1")
    e("s_mov_b64 exec, -1")
    stamp(2)
    e(f"v_lshlrev_b32 v12, 4, v{V_LANE}")
    e(f"s_mov_b32 s{S_CNT}, {SPIN}")
    g.label("L_poll1")
    e(f"buffer_load_dwordx4 v[40:43], v12, s[{R_WS}:{R_WS+3}], s{S_TMP} offen sc1")
    e(f"buffer_load_dwordx4 v[44:47], v12, s[{R_WS}:{R_WS+3}], s{S_TMP} offen offset:1024 sc1")
    e("s_waitcnt vmcnt(0)")
    tagcheck(40, 4)
    pollend("L_poll1")
    e(f"v_mov_b32 v41, v42")
    e(f"v_mov_b32 v45, v46")
    e(f"v_lshlrev_b32 v12, 3, v{V_LANE}")
    e(f"ds_write_b64 v12, v[40:41] offset:{L_Q}")
    e(f"ds_write_b64 v12, v[44:45] offset:{L_Q+512}")
    e("s_waitcnt lgkmcnt(0)")
    e(f"ds_write_b32 v{V_TKA}, v{V_ONE} offset:4")
    stamp(3)
    for f, i, h in seq:
        f(i, h)
    e("s_branch L_go")
    g.label("L_paced")
    e(f"s_mov_b32 s{S_RDY}, 0")

    def chk(lab):
        e(f"s_cmp_lg_u32 s{S_RDY}, 0")
        e(f"s_cbranch_scc1 {lab}")
        e(f"ds_read_b32 v13, v{V_TKA} offset:4")
        e("s_waitcnt lgkmcnt(0)")
        e(f"v_readfirstlane_b32 s{S_RDY}, v13")
        g.nop(4)
        e(f"s_cmp_lg_u32 s{S_RDY}, 0")
        e(f"s_cbranch_scc1 {lab}")
    j = W0
    while j < len(seq):
        chk(f"L_pi{j}")
        e(f"s_waitcnt vmcnt({max(W0-STEP,0)})")
        g.label(f"L_pi{j}")
        for f, i, h in seq[j:j+STEP]:
            f(i, h)
        j += STEP
    e(f"s_mov_b32 s{S_CNT}, {SPIN*16}")
    g.label("L_wflag")
    chk("L_go")
    e(f"s_sub_u32 s{S_CNT}, s{S_CNT}, 1")
    e("s_cbranch_scc0 L_wflag")
    g.label("L_go")
    e(f"v_lshrrev_b32 v12, 3, v11")
    e(f"v_lshlrev_b32 v12, 9, v12")
    e(f"v_lshl_add_u32 v12, v10, 6, v12")
    e(f"v_and_b32 v13, 3, v{V_LANE}")
    e(f"v_lshl_add_u32 v12, v13, 4, v12")
    e(f"ds_read_b128 {vr(V_Q,4)}, v12 offset:{L_Q}")
    e(f"ds_read_b128 {vr(V_Q+4,4)}, v12 offset:{L_Q+256}")
    g.label("L_bench")
    e(f"v_mov_b32 v{V_MC}, 0xff800000")
    e(f"v_mov_b32 v{V_L}, 0")
    for r in range(8):
        e(f"v_mov_b32 v{V_ACC+r}, 0")
    e("s_waitcnt lgkmcnt(0)")
    stamp(4)

    W = 4 * NG - 2

    def tile(first):
        u = g.lab; g.lab += 1
        extra = 16 if (first and not opt.get("bench", 0)) else 0
        for i in range(NG):
            e(f"s_waitcnt vmcnt({W + extra})")
            if i == 0:
                if not first:
                    e(f"s_cmp_eq_u32 s{S_PEND}, 0")
                    e(f"s_cbranch_scc1 L_np{u}")
                    e("s_waitcnt lgkmcnt(0)")
                    e(f"s_mov_b32 s{S_NXT}, s{S_SA}")
                    e(f"s_mov_b32 s{S_PEND}, 0")
                    g.label(f"L_np{u}")
                set_offsets(S_NXT)
                e(f"s_cmp_ge_u32 s{S_NXT}, {ntiles}")
                e(f"s_cbranch_scc1 L_ntk{u}")
                e("s_mov_b64 exec, 1")
                e(f"ds_add_rtn_u32 v{V_TK}, v{V_TKA}, v{V_ONE}")
                e("s_mov_b64 exec, -1")
                g.label(f"L_ntk{u}")
            e(f"v_mfma_f32_16x16x32_bf16 {vr(V_S+4*i,4)}, {vr(V_KR+8*i,4)}, {vr(V_Q,4)}, 0")
            e(f"v_mfma_f32_16x16x32_bf16 {vr(V_S+4*i,4)}, {vr(V_KR+8*i+4,4)}, {vr(V_Q+4,4)}, {vr(V_S+4*i,4)}")
            ld_k(i, 0); ld_k(i, 1)
        e("s_waitcnt lgkmcnt(0)")
        e(f"v_readfirstlane_b32 s{S_N2}, v{V_TK}")
        g.nop(4)
        e(f"s_cmp_ge_u32 s{S_NXT}, {ntiles}")
        e(f"s_cbranch_scc1 L_inv{u}")
        e(f"s_cmp_ge_u32 s{S_N2}, {SW}")
        e(f"s_cbranch_scc1 L_pool{u}")
        e(f"s_add_u32 s{S_N2}, s{S_N2}, s{S_SB}")
        e(f"s_branch L_tkd{u}")
        g.label(f"L_pool{u}")
        if SW < 128:
            e(f"s_mov_b32 s{S_SA}, 1")
            e(f"s_atomic_add s{S_SA}, s[{S_CB}:{S_CB+1}], 0 glc")
            e(f"s_mov_b32 s{S_PEND}, 1")
            e(f"s_branch L_tkd{u}")
        g.label(f"L_inv{u}")
        e(f"s_mov_b32 s{S_N2}, {ntiles}")
        g.label(f"L_tkd{u}")
        for i in range(NG):
            s = V_S + 4 * i
            p = V_P + i
            e(f"v_mov_b32_dpp v{p}, v{s} quad_perm:[0,0,0,0] row_mask:0xf bank_mask:0xf")
            for k in range(1, 4):
                e(f"v_add_f32_dpp v{p}, v{s+k}, v{p} quad_perm:[{k},{k},{k},{k}] row_mask:0xf bank_mask:0xf")
        e(f"v_max3_f32 v10, v{V_P}, v{V_P+1}, v{V_P+2}")
        e(f"v_max_f32 v10, v10, v{V_P+3}")
        e(f"v_mov_b32 v11, v10")
        g.nop(2)
        e(f"v_permlane32_swap_b32 v10, v11")
        g.nop(1)
        e(f"v_max_f32 v10, v10, v11")
        e(f"v_mov_b32 v11, v10")
        g.nop(2)
        e(f"v_permlane16_swap_b32 v10, v11")
        g.nop(1)
        e(f"v_max_f32 v10, v10, v11")
        e(f"v_mul_f32 v10, s{S_C}, v10")
        e(f"v_max_f32 v10, v10, v{V_MC}")
        e(f"v_sub_f32 v11, v{V_MC}, v10")
        e(f"v_exp_f32 v11, v11")
        e(f"v_mov_b32 v{V_MC}, v10")
        for i in range(NG):
            e(f"v_fma_f32 v{V_P+i}, v{V_P+i}, s{S_C}, -v10")
        for i in range(NG):
            e(f"v_exp_f32 v{V_P+i}, v{V_P+i}")
        for r in range(8):
            e(f"v_mul_f32 v{V_ACC+r}, v{V_ACC+r}, v11")
        e(f"v_mul_f32 v{V_L}, v{V_L}, v11")
        for i in range(NG):
            s = V_S + 4 * i
            e(f"v_cvt_pk_bf16_f32 v12, v{V_P+i}, v{V_P+i}")
            e(f"v_add_f32 v{V_L}, v{V_L}, v{V_P+i}")
            for t in range(4):
                e(f"v_and_b32 v{s+t}, v12, v{V_M+t}")
        g.nop(2)
        for i in range(NG):
            e(f"s_waitcnt vmcnt({W + extra})")
            for h in range(2):
                e(f"v_mfma_f32_16x16x32_bf16 {vr(V_ACC+4*h,4)}, {vr(V_VR+8*i+4*h,4)}, {vr(V_S+4*i,4)}, {vr(V_ACC+4*h,4)}")
            ld_v(i, 0); ld_v(i, 1)
        e(f"s_mov_b32 s{S_CUR}, s{S_NXT}")
        e(f"s_mov_b32 s{S_NXT}, s{S_N2}")

    if LW < 8 and not hyb:
        e(f"s_cmp_ge_u32 s{S_W}, {LW}")
        e("s_cbranch_scc1 L_loopdone")
    if peel:
        tile(True)
        e(f"s_cmp_ge_u32 s{S_CUR}, {ntiles}")
        e("s_cbranch_scc1 L_loopdone")
    g.l.append(".p2align 6")
    g.label("L_loop")
    tile(False)
    e(f"s_cmp_lt_u32 s{S_CUR}, {ntiles}")
    e("s_cbranch_scc1 L_loop")
    g.label("L_loopdone")
    if lite:
        e("s_memrealtime s[24:25]")
    e("s_waitcnt vmcnt(0) lgkmcnt(0)")
    stamp(5)
    if bench:
        e("s_endpgm")
    dry = opt.get("dry", 0)
    e(f"v_and_b32 v{V_J}, 255, v{V_TID}")
    e(f"s_cmp_ge_u32 s{S_W}, 4")
    e(f"s_cselect_b32 s{S_MODE}, 1, 0")
    if dry:
        e(f"s_cmp_lg_u32 s{S_W}, {opt.get(chr(100)+chr(119), 7)}")
        e("s_cbranch_scc1 L_partA")
        e(f"s_mov_b32 s{S_MODE}, 2")
        e("s_branch L_partB")
        g.label("L_dryret")
        e("s_mov_b64 exec, -1")
        e(f"s_mov_b32 s{S_MODE}, 1")
        g.label("L_partA")

    def skip_if_dry(lab):
        if dry:
            e(f"s_cmp_eq_u32 s{S_MODE}, 2")
            e(f"s_cbranch_scc1 {lab}")

    e(f"v_lshrrev_b32 v10, 4, v{V_LANE}")
    e(f"v_and_b32 v11, 15, v{V_LANE}")
    e(f"v_mov_b32 v12, v{V_L}")
    g.nop(2)
    e(f"v_permlane32_swap_b32 v{V_L}, v12")
    g.nop(1)
    e(f"v_add_f32 v{V_L}, v{V_L}, v12")
    e(f"v_mov_b32 v12, v{V_L}")
    g.nop(2)
    e(f"v_permlane16_swap_b32 v{V_L}, v12")
    g.nop(1)
    e(f"v_add_f32 v{V_L}, v{V_L}, v12")
    e(f"v_lshrrev_b32 v12, 3, v11")
    e(f"s_lshl_b32 s{S_TMP}, s{S_W}, 4")
    e(f"v_lshlrev_b32 v13, 3, v12")
    e(f"v_add_u32 v13, s{S_TMP}, v13")
    e(f"ds_write_b64 v13, v[{V_MC}:{V_L}] offset:{L_ML}")
    e(f"v_lshlrev_b32 v13, 10, v12")
    e(f"v_lshl_add_u32 v13, v10, 7, v13")
    e(f"v_and_b32 v14, 7, v{V_LANE}")
    e(f"v_lshl_add_u32 v13, v14, 2, v13")
    e(f"s_lshl_b32 s{S_TMP}, s{S_W}, 11")
    e(f"v_add_u32 v13, s{S_TMP}, v13")
    g.nop(8)
    for h in range(2):
        for r in range(4):
            e(f"ds_write_b32 v13, v{V_ACC+4*h+r} offset:{L_O + h*512 + r*32}")
    e("s_waitcnt lgkmcnt(0)")
    if opt.get("fine", 0): stamp(11)
    e("s_barrier")
    if opt.get("fine", 0): stamp(12)
    e(f"s_cmp_eq_u32 s{S_MODE}, 1")
    e("s_cbranch_scc1 L_comb_done")
    g.label("L_partB")
    e(f"v_lshlrev_b32 v12, 4, v{V_J}")
    e(f"v_lshrrev_b32 v10, 7, v{V_J}")
    e(f"v_lshlrev_b32 v11, 4, v10")
    e(f"s_lshl_b32 s{S_TMP}, s{S_GRP}, 15")
    e(f"s_add_u32 s{S_TMP}, s{S_TMP}, {WS_P}")

    def slot_addr(k):
        e(f"s_add_u32 s{S_TMP2}, s{S_S}, {k}")
        e(f"s_and_b32 s{S_TMP2}, s{S_TMP2}, 3")
        e(f"s_lshl_b32 s{S_TMP2}, s{S_TMP2}, 13")
        e(f"s_add_u32 s{S_TMP2}, s{S_TMP2}, s{S_TMP}")

    def p2_loads(k):
        slot_addr(k)
        e(f"buffer_load_dwordx4 v[{72+8*k}:{75+8*k}], v12, s[{R_WS}:{R_WS+3}], s{S_TMP2} offen offset:64 sc1")
        e(f"buffer_load_dwordx4 v[{76+8*k}:{79+8*k}], v11, s[{R_WS}:{R_WS+3}], s{S_TMP2} offen sc1")
    skip_if_dry("L_d1")
    for k in range(1, 4):
        p2_loads(k)
    g.label("L_d1")
    e(f"v_lshlrev_b32 v13, 3, v10")
    e(f"v_lshlrev_b32 v14, 3, v{V_J}")
    for w in range(8):
        e(f"ds_read_b64 v[{40+2*w}:{41+2*w}], v13 offset:{L_ML + w*16}")
    for w in range(8):
        e(f"ds_read_b64 v[{104+2*w}:{105+2*w}], v14 offset:{L_O + w*2048}")
    e("s_waitcnt lgkmcnt(0)")
    e("v_max3_f32 v76, v40, v42, v44")
    e("v_max3_f32 v76, v76, v46, v48")
    e("v_max3_f32 v76, v76, v50, v52")
    e("v_max_f32 v76, v76, v54")
    for w in range(8):
        e(f"v_sub_f32 v{40+2*w}, v{40+2*w}, v76")
    for w in range(8):
        e(f"v_exp_f32 v{40+2*w}, v{40+2*w}")
    g.nop(1)
    e("v_mul_f32 v78, v40, v41")
    e("v_mul_f32 v72, v40, v104")
    e("v_mul_f32 v74, v40, v105")
    for w in range(1, 8):
        e(f"v_fmac_f32 v78, v{40+2*w}, v{41+2*w}")
        e(f"v_fmac_f32 v72, v{40+2*w}, v{104+2*w}")
        e(f"v_fmac_f32 v74, v{40+2*w}, v{105+2*w}")
    e(f"v_mov_b32 v73, s{S_TA}")
    e(f"v_mov_b32 v75, s{S_TB}")
    e(f"v_mov_b32 v77, s{S_TA}")
    e(f"v_mov_b32 v79, s{S_TB}")
    slot_addr(0)
    skip_if_dry("L_d2")
    e(f"buffer_store_dwordx4 v[72:75], v12, s[{R_WS}:{R_WS+3}], s{S_TMP2} offen offset:64 sc1")
    e(f"v_and_b32 v13, 127, v{V_J}")
    e(f"v_cmp_eq_u32 vcc, 0, v13")
    e(f"s_and_saveexec_b64 s[{S_EX}:{S_EX+1}], vcc")
    e("s_cbranch_execz L_noml")
    e(f"buffer_store_dwordx4 v[76:79], v11, s[{R_WS}:{R_WS+3}], s{S_TMP2} offen sc1")
    g.label("L_noml")
    e(f"s_mov_b64 exec, -1")
    g.label("L_d2")
    stamp(6)
    e(f"s_mov_b32 s{S_CNT}, {SPIN}")
    e(f"s_cmp_eq_u32 s{S_MODE}, 2")
    e(f"s_cselect_b32 s{S_VM}, 15, 1")
    e("s_branch L_p2chk")
    g.label("L_poll2")
    for k in range(1, 4):
        e(f"s_bitcmp1_b32 s{S_VM}, {k}")
        e(f"s_cbranch_scc1 L_p2s{k}")
        p2_loads(k)
        g.label(f"L_p2s{k}")
    g.label("L_p2chk")
    e("s_waitcnt vmcnt(0)")
    for k in range(1, 4):
        tagcheck(72+8*k, 4)
        e("s_cmp_eq_u64 vcc, 0")
        e(f"s_cselect_b32 s{S_TMP2}, {1<<k}, 0")
        e(f"s_or_b32 s{S_VM}, s{S_VM}, s{S_TMP2}")
    e(f"s_sub_u32 s{S_CNT}, s{S_CNT}, 1")
    e("s_cbranch_scc1 L_poll2_done")
    e(f"s_cmp_lg_u32 s{S_VM}, 15")
    e("s_cbranch_scc1 L_poll2")
    g.label("L_poll2_done")
    stamp(7)
    e("v_max3_f32 v13, v76, v84, v92")
    e("v_max_f32 v13, v13, v100")
    for s_ in range(4):
        e(f"v_sub_f32 v{76+8*s_}, v{76+8*s_}, v13")
    for s_ in range(4):
        e(f"v_exp_f32 v{76+8*s_}, v{76+8*s_}")
    g.nop(1)
    e("v_mul_f32 v14, v76, v78")
    e("v_mul_f32 v15, v76, v72")
    e("v_mul_f32 v13, v76, v74")
    for s_ in range(1, 4):
        e(f"v_fmac_f32 v14, v{76+8*s_}, v{78+8*s_}")
        e(f"v_fmac_f32 v15, v{76+8*s_}, v{72+8*s_}")
        e(f"v_fmac_f32 v13, v{76+8*s_}, v{74+8*s_}")
    e("v_rcp_f32 v14, v14")
    g.nop(1)
    e("v_mul_f32 v15, v15, v14")
    e("v_mul_f32 v13, v13, v14")
    e("v_cvt_pk_bf16_f32 v15, v15, v13")
    e(f"v_lshlrev_b32 v13, 2, v{V_J}")
    e(f"ds_write_b32 v13, v15 offset:{L_OB}")
    e("s_waitcnt lgkmcnt(0)")
    g.label("L_comb_done")
    skip_if_dry("L_d3")
    e("s_barrier")
    g.label("L_d3")
    if opt.get("rep", 0):
        e(f"s_mov_b32 s23, 0")
        stamp(11)
        g.label("L_rep")
    e(f"v_lshrrev_b32 v10, 4, v{V_LANE}")
    e(f"s_lshl_b32 s{S_TMP}, s{S_W}, 7")
    e(f"v_lshlrev_b32 v12, 5, v10")
    e(f"v_add_u32 v12, s{S_TMP}, v12")
    e(f"ds_read_b128 v[40:43], v12 offset:{L_OB}")
    e(f"ds_read_b128 v[44:47], v12 offset:{L_OB+16}")
    e("s_waitcnt lgkmcnt(0)")
    for i in range(16):
        sel = S_SELO if (i & 1) else S_SELE
        bb = 48 + 4 * (i & 1)
        e(f"v_perm_b32 v60, v{40+(i>>1)}, v{40+(i>>1)}, s{sel}")
        for t in range(4):
            e(f"v_and_b32 v{bb+t}, v60, v{V_M+t}")
        g.nop(2)
        csrc = "0" if i == 0 else vr(QA, 4)
        e(f"v_mfma_f32_16x16x32_bf16 {vr(QA,4)}, {vr(V_WO+4*i,4)}, {vr(bb,4)}, {csrc}")
    e(f"v_and_b32 v12, 7, v{V_LANE}")
    e(f"v_lshlrev_b32 v12, 2, v12")
    e(f"v_lshl_add_u32 v12, v10, 7, v12")
    e(f"s_lshl_b32 s{S_TMP}, s{S_W}, 9")
    e(f"v_add_u32 v12, s{S_TMP}, v12")
    g.nop(8)
    for r in range(4):
        e(f"ds_write_b32 v12, v{QA+r} offset:{L_QP + r*32}")
    e("s_waitcnt lgkmcnt(0)")
    if opt.get("rep", 0):
        e("s_cmp_lg_u32 s23, 0")
        e("s_cbranch_scc1 L_rep2")
        stamp(12)
        e("s_mov_b32 s23, 1")
        e("s_branch L_rep")
        g.label("L_rep2")
        stamp(13)
    skip_if_dry("L_d4")
    e("s_barrier")
    e(f"s_cmp_lg_u32 s{S_W}, 0")
    e("s_cbranch_scc1 L_end")
    g.label("L_d4")
    e(f"v_lshlrev_b32 v13, 1, v{V_LANE}")
    e(f"v_cmp_gt_u32 vcc, s{S_NC}, v13")
    e(f"s_and_b64 exec, exec, vcc")
    e(f"v_lshlrev_b32 v14, 3, v{V_LANE}")
    for w in range(8):
        e(f"ds_read_b64 v[{40+2*w}:{41+2*w}], v14 offset:{L_QP + w*512}")
    e(f"s_lshl_b32 s{S_TMP}, s{S_FIN}, 13")
    e(f"s_add_u32 s{S_TMP}, s{S_TMP}, {WS_F}")
    e(f"s_lshl_b32 s{S_TMP2}, s{S_KVH}, 10")
    e(f"s_add_u32 s{S_TMP2}, s{S_TMP2}, s{S_TMP}")
    e(f"v_lshlrev_b32 v12, 4, v{V_LANE}")
    e("s_waitcnt lgkmcnt(0)")
    e(f"v_mov_b32 v72, v40")
    e(f"v_mov_b32 v74, v41")
    for w in range(1, 8):
        e(f"v_add_f32 v72, v72, v{40+2*w}")
        e(f"v_add_f32 v74, v74, v{41+2*w}")
    e(f"v_mov_b32 v73, s{S_TA}")
    e(f"v_mov_b32 v75, s{S_TB}")
    skip_if_dry("L_red")
    e(f"s_cmp_eq_u32 s{S_KVH}, s{S_KVR}")
    e("s_cbranch_scc1 L_red")
    e(f"buffer_store_dwordx4 v[72:75], v12, s[{R_WS}:{R_WS+3}], s{S_TMP2} offen sc1")
    stamp(8)
    lite_exit()
    e("s_endpgm")
    g.label("L_red")
    stamp(8)
    e(f"s_mov_b32 s{S_CNT}, {SPIN}")
    e(f"s_cmp_eq_u32 s{S_MODE}, 2")
    e(f"s_cselect_b32 s{S_VM}, 255, 1")
    g.label("L_poll3")
    for k in range(1, 8):
        e(f"s_bitcmp1_b32 s{S_VM}, {k}")
        e(f"s_cbranch_scc1 L_p3s{k}")
        e(f"s_add_u32 s{S_TMP2}, s{S_KVH}, {k}")
        e(f"s_and_b32 s{S_TMP2}, s{S_TMP2}, 7")
        e(f"s_lshl_b32 s{S_TMP2}, s{S_TMP2}, 10")
        e(f"s_add_u32 s{S_TMP2}, s{S_TMP2}, s{S_TMP}")
        e(f"buffer_load_dwordx4 v[{72+4*k}:{75+4*k}], v12, s[{R_WS}:{R_WS+3}], s{S_TMP2} offen sc1")
        g.label(f"L_p3s{k}")
    e("s_waitcnt vmcnt(0)")
    for k in range(1, 8):
        tagcheck(72+4*k, 2)
        e("s_cmp_eq_u64 vcc, 0")
        e(f"s_cselect_b32 s{S_TMP2}, {1<<k}, 0")
        e(f"s_or_b32 s{S_VM}, s{S_VM}, s{S_TMP2}")
    e(f"s_sub_u32 s{S_CNT}, s{S_CNT}, 1")
    e("s_cbranch_scc1 L_poll3_done")
    e(f"s_cmp_lg_u32 s{S_VM}, 255")
    e("s_cbranch_scc1 L_poll3")
    g.label("L_poll3_done")
    for k in range(1, 8):
        e(f"v_add_f32 v72, v72, v{72+4*k}")
        e(f"v_add_f32 v74, v74, v{74+4*k}")
    e("v_cvt_pk_bf16_f32 v40, v72, v74")
    e(f"s_mul_i32 s{S_TMP}, s{S_B}, 1792")
    e(f"s_mul_i32 s{S_TMP2}, s{S_AB}, 896")
    e(f"s_add_u32 s{S_TMP}, s{S_TMP}, s{S_TMP2}")
    e(f"s_lshl_b32 s{S_TMP2}, s{S_S}, 8")
    e(f"s_add_u32 s{S_TMP}, s{S_TMP}, s{S_TMP2}")
    e(f"v_lshlrev_b32 v12, 2, v{V_LANE}")
    skip_if_dry("L_dryret")
    e(f"buffer_store_dword v40, v12, s[{R_OUT}:{R_OUT+3}], s{S_TMP} offen")
    stamp(9)
    lite_exit()
    e(f"s_cmp_lg_u32 s{S_S}, 0")
    e("s_cbranch_scc1 L_end")
    e(f"s_lshr_b32 s{S_TMP}, s2, 5")
    e(f"s_lshl_b32 s{S_TMP}, s{S_TMP}, 7")
    e(f"v_mov_b32 v12, s{S_TMP}")
    e(f"v_mov_b32 v40, s{S_E}")
    e(f"v_mov_b32 v41, s{S_E+1}")
    e("s_mov_b64 exec, 1")
    e(f"buffer_store_dwordx2 v[40:41], v12, s[{R_WS}:{R_WS+3}], 0 offen offset:{WS_E} sc1")
    g.label("L_end")
    e("s_endpgm")
    g.l.append('.section .rodata,"a"')
    g.l.append(".p2align 6")
    g.l.append(f".amdhsa_kernel {KN}")
    g.l.append("  .amdhsa_next_free_vgpr 256")
    g.l.append("  .amdhsa_next_free_sgpr 102")
    g.l.append("  .amdhsa_accum_offset 256")
    g.l.append("  .amdhsa_group_segment_fixed_size 0")
    g.l.append("  .amdhsa_kernarg_size 104")
    g.l.append("  .amdhsa_user_sgpr_count 2")
    g.l.append("  .amdhsa_user_sgpr_kernarg_segment_ptr 1")
    g.l.append("  .amdhsa_system_sgpr_workgroup_id_x 1")
    g.l.append(".end_amdhsa_kernel")
    return "\n".join(g.l) + "\n"


if __name__ == "__main__":
    out = sys.argv[1]
    opt = {}
    for a in sys.argv[2:]:
        k, v = a.split("=")
        opt[k] = int(v, 0)
    open(out, "w").write(gen(opt))
```

```python
import sys
from gen import G, vr, HEADER, KN

WS_E = 0x0
WS_Q = 0x4000
WS_F = 0x40000
WS_P = 0x100000
WS_T = 0x400000
WS_C = 0x800000
WS_SIZE = 0x1000000

L_QP = 0
L_Q = 4096
L_ML = 5120
L_TK = 5248
L_OB = 5376
L_O = 8192
LDS_MIN = 8192 + 16384

S_X, S_K, S_V, S_WQ, S_WO = 4, 6, 8, 10, 12
S_OUT, S_DBG, S_WS = 44, 46, 48
S_KVH, S_S, S_B, S_AB, S_W, S_GRP = 14, 15, 16, 17, 18, 19
R_K, R_V, R_W, R_X, R_WS, R_OUT = 52, 56, 60, 68, 72, 80
S_T0 = 84
S_CNT = 88
S_TMP, S_TMP2, S_TMP3 = 89, 90, 91
S_C = 92
S_SELE, S_SELO = 93, 94
S_EX = 96
S_KVR = 3
S_ST = 64
S_FIN = 50
S_TA, S_TB = 76, 77
S_E = 78
S_CUR, S_NXT = 98, 99
S_N2 = 51
S_SA = 100
S_PEND = 101
S_CB = 66
S_ROT = 42
S_NC = 20
S_RDY = 21
S_VM = 22
S_MODE = 23
V_J = 61
R_WO = 36
S_SB = 43

V_TID, V_LANE, V_KOFF, V_VOFF = 0, 1, 2, 3
V_M = 4
V_MC, V_L = 8, 9
V_Q = 16
V_ACC = 24
V_P = 32
V_TK, V_TKA, V_ONE, V_WOFF = 36, 37, 38, 39
V_S = 40
V_TAG = 61


def gen(opt):
    g = G(opt)
    e, c = g.e, g.c
    NG = 4
    NT = " nt" if opt.get("nt", 1) else ""
    NTW = " nt" if opt.get("ntw", 0) else ""
    stamps = opt.get("stamps", 0)
    lite = opt.get("lite", 0)
    pre = opt.get("pre", 8)
    spread = opt.get("spread", 1)
    SW = opt.get("sw", 112)
    cstride = opt.get("cstride", 2048)
    lds = max(opt.get("lds", 0), LDS_MIN)
    SPIN = opt.get("spin", 0x20000)
    cpf = opt.get("cpf", 0)
    tile_bytes = NG * 2048
    ntiles = 8192 // (4 * NG)
    V_KR = 72
    V_VR = V_KR + 8 * NG
    V_WO = V_VR + 8 * NG
    V_WQ = 200

    dbgst = opt.get("dbgst", 0)

    def stamp(idx):
        if dbgst and idx in (0, 1, 3, 4, 5, 7, 9):
            e(f"s_memrealtime s[{S_ST}:{S_ST+1}]")
            e("s_waitcnt lgkmcnt(0)")
            if idx == 0:
                e(f"s_not_b32 s{S_ST}, s30")
            e(f"v_mov_b32 v14, s{S_ST}")
            e(f"v_mov_b32 v13, {idx*4}")
            e(f"s_mov_b32 s24, s{S_DBG}")
            e(f"s_mov_b32 s25, s{S_DBG+1}")
            e(f"s_mov_b32 s26, 256")
            e(f"s_mov_b32 s27, 0x00020000")
            e(f"s_mov_b64 s[28:29], exec")
            e(f"s_mov_b64 exec, 1")
            e(f"buffer_atomic_umax v14, v13, s[24:27], 0 offen")
            e(f"s_mov_b64 exec, s[28:29]")
            return
        if not stamps:
            return
        e(f"s_memrealtime s[{S_ST}:{S_ST+1}]")
        e("s_waitcnt lgkmcnt(0)")
        e(f"v_mov_b32 v14, s{S_ST}")
        e(f"v_mov_b32 v15, s{S_ST+1}")
        e(f"v_mov_b32 v13, s95")
        e(f"buffer_store_dwordx2 v[14:15], v13, s[{R_WS}:{R_WS+3}], 0 offen offset:{idx*8}")


    def lite_exit():
        if not lite: return
        e("s_memrealtime s[26:27]")
        e("s_waitcnt lgkmcnt(0)")
        e("s_mov_b64 exec, 1")
        e(f"s_lshl_b32 s28, s2, 11")
        e(f"s_add_u32 s28, s28, {WS_T}")
        e("v_mov_b32 v13, s28")
        e("v_mov_b32 v14, s30"); e("v_mov_b32 v15, s31")
        e(f"buffer_store_dwordx2 v[14:15], v13, s[{R_WS}:{R_WS+3}], 0 offen offset:0")
        e(f"buffer_store_dwordx2 v[14:15], v13, s[{R_WS}:{R_WS+3}], 0 offen offset:80")
        e("v_mov_b32 v16, s24"); e("v_mov_b32 v17, s25")
        e(f"buffer_store_dwordx2 v[16:17], v13, s[{R_WS}:{R_WS+3}], 0 offen offset:40")
        e("v_mov_b32 v18, s26"); e("v_mov_b32 v19, s27")
        e(f"buffer_store_dwordx2 v[18:19], v13, s[{R_WS}:{R_WS+3}], 0 offen offset:72")

    def srd(R, base, off_s, nrec):
        if off_s is None:
            e(f"s_mov_b32 s{R}, s{base}")
            e(f"s_mov_b32 s{R+1}, s{base+1}")
        else:
            e(f"s_add_u32 s{R}, s{base}, {off_s}")
            e(f"s_addc_u32 s{R+1}, s{base+1}, 0")
        e(f"s_mov_b32 s{R+2}, {nrec}")
        e(f"s_mov_b32 s{R+3}, 0x00020000")

    def tagcheck(first_reg, n):
        e(f"v_cmp_ne_u32 vcc, s{S_TA}, v{first_reg+1}")
        for k in range(1, n):
            tg = S_TB if (k & 1) else S_TA
            e(f"v_cmp_ne_u32 s[{S_EX}:{S_EX+1}], s{tg}, v{first_reg+2*k+1}")
            e(f"s_or_b64 vcc, vcc, s[{S_EX}:{S_EX+1}]")

    def pollend(lab):
        e(f"s_sub_u32 s{S_CNT}, s{S_CNT}, 1")
        e(f"s_cbranch_scc1 {lab}_done")
        e("s_cmp_lg_u64 vcc, 0")
        e(f"s_cbranch_scc1 {lab}")
        g.label(f"{lab}_done")

    g.l.append(HEADER.rstrip("\n"))
    g.l.append("""; ---------------------------------------------------------------------------------------------
;    {data, tagA, data, tagB} in d_ws (tags = epoch+1; the epoch word is bumped at the end of a launch).
; ---------------------------------------------------------------------------------------------""")
    g.l.append(f"; @launch grid=(256,1,1) block=(512,1,1) lds={lds}")
    g.l.append('.amdgcn_target "amdgcn-amd-amdhsa--gfx950"')
    g.l.append(".text")
    g.l.append(f".globl {KN}")
    g.l.append(".p2align 8")
    g.l.append(f".type {KN},@function")
    g.l.append(f"{KN}:")
    if stamps or opt.get("dbgst", 0) or lite:
        e("s_memrealtime s[30:31]")
    e("s_cmp_ge_u32 s2, 256")
    e("s_cbranch_scc1 L_end")
    e("s_load_dwordx8 s[20:27], s[0:1], 0")
    e("s_load_dwordx2 s[28:29], s[0:1], 32")
    e("s_load_dwordx8 s[32:39], s[0:1], 40")
    e("s_load_dwordx2 s[40:41], s[0:1], 72")
    e(f"s_load_dwordx4 s[{S_OUT}:{S_OUT+3}], s[0:1], 80")
    e(f"s_load_dwordx2 s[{S_WS}:{S_WS+1}], s[0:1], 96")
    e(f"v_lshrrev_b32 v10, 6, v0")
    e(f"v_and_b32 v{V_LANE}, 63, v0")
    e(f"v_readfirstlane_b32 s{S_W}, v10")
    e(f"s_lshr_b32 s{S_S}, s2, 3")
    e(f"s_and_b32 s{S_S}, s{S_S}, 3")
    e(f"s_and_b32 s{S_KVH}, s2, 7")
    if spread:
        e(f"s_and_b32 s{S_TMP}, s{S_S}, 1")
        e(f"s_lshr_b32 s{S_TMP2}, s{S_S}, 1")
        e(f"s_lshl_b32 s{S_TMP2}, s{S_TMP2}, 2")
        e(f"s_add_u32 s{S_TMP}, s{S_TMP}, s{S_TMP2}")
        e(f"s_sub_u32 s{S_KVH}, s{S_KVH}, s{S_TMP}")
        e(f"s_and_b32 s{S_KVH}, s{S_KVH}, 7")
    e(f"s_lshr_b32 s{S_B}, s2, 5")
    e(f"s_and_b32 s{S_B}, s{S_B}, 3")
    e(f"s_lshr_b32 s{S_AB}, s2, 7")
    e(f"s_lshr_b32 s{S_TMP}, s2, 5")
    e(f"s_lshl_b32 s{S_GRP}, s{S_TMP}, 3")
    e(f"s_or_b32 s{S_GRP}, s{S_GRP}, s{S_KVH}")
    e(f"s_lshl_b32 s{S_FIN}, s{S_TMP}, 2")
    e(f"s_or_b32 s{S_FIN}, s{S_FIN}, s{S_S}")
    e(f"s_and_b32 s{S_KVR}, s{S_FIN}, 7")
    e(f"s_lshl_b32 s{S_TMP3}, s{S_TMP}, 7")
    e(f"s_mov_b32 s{S_C}, 0x3db8aa3b")
    e(f"s_mov_b32 s{S_SELE}, 0x01000100")
    e(f"s_mov_b32 s{S_SELO}, 0x03020302")
    e(f"v_lshrrev_b32 v10, 4, v{V_LANE}")
    e(f"v_and_b32 v11, 15, v{V_LANE}")
    e(f"v_bfe_u32 v12, v{V_LANE}, 2, 2")
    e(f"v_lshlrev_b32 v12, 9, v12")
    e(f"v_lshl_add_u32 v12, v10, 6, v12")
    e(f"v_and_b32 v13, 3, v{V_LANE}")
    e(f"v_lshl_add_u32 v{V_KOFF}, v13, 4, v12")
    e(f"v_lshlrev_b32 v12, 9, v10")
    e(f"v_lshl_add_u32 v{V_VOFF}, v11, 4, v12")
    e(f"v_and_b32 v12, 1, v{V_LANE}")
    e(f"v_lshlrev_b32 v12, 4, v12")
    e(f"v_mov_b32 v13, 0xffff")
    e(f"v_lshlrev_b32 v13, v12, v13")
    e(f"v_bfe_u32 v12, v{V_LANE}, 1, 2")
    for t in range(4):
        e(f"v_cmp_eq_u32 vcc, {t}, v12")
        g.nop(2)
        e(f"v_cndmask_b32 v{V_M+t}, 0, v13, vcc")
    e("s_waitcnt lgkmcnt(0)")
    srd(R_WS, S_WS, None, hex(WS_SIZE))
    e(f"v_mov_b32 v62, s{S_TMP3}")
    e(f"buffer_load_dwordx2 v[62:63], v62, s[{R_WS}:{R_WS+3}], 0 offen offset:{WS_E} sc1")
    e(f"s_cmp_eq_u32 s{S_AB}, 0")
    for i, dst in enumerate([S_X, S_K, S_V, S_WQ, S_WO]):
        e(f"s_cselect_b64 s[{dst}:{dst+1}], s[{20+2*i}:{21+2*i}], s[{32+2*i}:{33+2*i}]")
    srd(R_X, S_X, None, "3584")
    e(f"s_mul_i32 s{S_TMP}, s{S_W}, {56*8192}")
    e(f"s_lshl_b32 s{S_TMP2}, s{S_KVH}, 10")
    e(f"s_add_u32 s{S_TMP}, s{S_TMP}, s{S_TMP2}")
    e(f"s_lshl_b32 s{S_TMP2}, s{S_S}, 8")
    e(f"s_add_u32 s{S_TMP}, s{S_TMP}, s{S_TMP2}")
    e(f"s_sub_u32 s{S_TMP2}, {448*8192}, s{S_TMP}")
    srd(R_W, S_WQ, f"s{S_TMP}", f"s{S_TMP2}")
    e(f"s_mul_i32 s{S_TMP}, s{S_B}, 896")
    e(f"s_mul_i32 s{S_TMP2}, s{S_W}, 112")
    e(f"s_add_u32 s{S_TMP}, s{S_TMP}, s{S_TMP2}")
    e(f"v_mul_u32_u24 v12, 28, v10")
    e(f"buffer_load_dwordx4 v[40:43], v12, s[{R_X}:{R_X+3}], s{S_TMP} offen")
    e(f"buffer_load_dwordx4 v[44:47], v12, s[{R_X}:{R_X+3}], s{S_TMP} offen offset:16")
    e(f"v_mul_u32_u24 v12, {14*8192//16}, v10")
    e(f"v_add_lshl_u32 v12, v12, v11, 4")
    e(f"s_mov_b32 s{S_TMP}, 0")
    for i in range(14):
        if not opt.get("noq", 0): e(f"buffer_load_dwordx4 {vr(V_WQ+4*i,4)}, v12, s[{R_W}:{R_W+3}], s{S_TMP} offen{NTW}")
        if i < 13:
            e(f"s_add_u32 s{S_TMP}, s{S_TMP}, 8192")
    e(f"s_lshl_b32 s{S_TMP}, s{S_B}, 3")
    e(f"s_or_b32 s{S_TMP}, s{S_TMP}, s{S_KVH}")
    e(f"s_lshl_b32 s{S_TMP}, s{S_TMP}, 22")
    srd(R_K, S_K, f"s{S_TMP}", "0x400000")
    srd(R_V, S_V, f"s{S_TMP}", "0x400000")
    srd(R_OUT, S_OUT, None, "7168")
    e(f"s_mul_i32 s{S_TMP3}, s{S_GRP}, {cstride}")
    e(f"s_add_u32 s{S_TMP3}, s{S_TMP3}, {WS_C}")
    e(f"s_add_u32 s{S_CB}, s{S_WS}, s{S_TMP3}")
    e(f"s_addc_u32 s{S_CB+1}, s{S_WS+1}, 0")
    if stamps:
        e(f"s_lshl_b32 s95, s2, 11")
        e(f"s_lshl_b32 s{S_TMP}, s{S_W}, 8")
        e(f"s_add_u32 s95, s95, s{S_TMP}")
        e(f"s_add_u32 s95, s95, {WS_T}")
    e(f"v_mov_b32 v{V_TKA}, {L_TK}")
    e(f"v_mov_b32 v{V_ONE}, 1")
    if SW < 128:
        e(f"s_or_b32 s{S_TMP}, s{S_S}, s{S_W}")
        e(f"s_cmp_lg_u32 s{S_TMP}, 0")
        e("s_cbranch_scc1 L_noinit")
        e(f"v_mov_b32 v12, s{S_TMP3}")
        e(f"v_mov_b32 v13, {4*SW}")
        e(f"s_mov_b64 exec, 1")
        e(f"buffer_store_dword v13, v12, s[{R_WS}:{R_WS+3}], 0 offen sc1")
        e(f"s_mov_b64 exec, -1")
        g.label("L_noinit")
    e(f"s_mul_i32 s{S_SB}, s{S_S}, {SW}")
    e(f"s_add_u32 s{S_CUR}, s{S_SB}, s{S_W}")
    LW = opt.get("lw", 3)
    hyb = opt.get("hyb", 1)
    if hyb:
        e(f"s_add_u32 s{S_NXT}, s{S_CUR}, 8")
        e(f"s_cmp_ge_u32 s{S_W}, {LW}")
        e(f"s_cselect_b32 s{S_NXT}, {ntiles}, s{S_NXT}")
        TK0 = 8 + LW
    else:
        e(f"s_add_u32 s{S_NXT}, s{S_CUR}, {LW}")
        if LW < 8:
            e(f"s_cmp_ge_u32 s{S_W}, {LW}")
            e(f"s_cselect_b32 s{S_CUR}, {ntiles}, s{S_CUR}")
            e(f"s_cselect_b32 s{S_NXT}, {ntiles}, s{S_NXT}")
        TK0 = 2 * LW
    e(f"s_mov_b32 s{S_PEND}, 0")

    def set_offsets(sidx):
        e(f"s_lshl_b32 s{S_T0}, s{sidx}, 13")
        e(f"s_add_u32 s{S_T0+1}, s{S_T0}, 4096")

    set_offsets(S_CUR)

    def ld_k(i, h):
        e(f"buffer_load_dwordx4 {vr(V_KR+8*i+4*h,4)}, v{V_KOFF}, s[{R_K}:{R_K+3}], s{S_T0+(i>>1)} offen offset:{(i&1)*2048+h*256}{NT}")

    def ld_v(i, h):
        e(f"buffer_load_dwordx4 {vr(V_VR+8*i+4*h,4)}, v{V_VOFF}, s[{R_V}:{R_V+3}], s{S_T0+(i>>1)} offen offset:{(i&1)*2048+h*256}{NT}")

    def ld_wo(ii, _):
        e(f"s_mov_b32 s{S_TMP2}, {ii*896}")
        e(f"buffer_load_dwordx4 {vr(V_WO+4*ii,4)}, v{V_WOFF}, s[{R_WO}:{R_WO+3}], s{S_TMP2} offen{NTW}")

    peel = opt.get("peel", 1)
    kv = [(ld_k, i, h) for i in range(NG) for h in range(2)] + [(ld_v, i, h) for i in range(NG) for h in range(2)]
    wos = [(ld_wo, ii, 0) for ii in range(16)]
    wol = opt.get("wol", 0)
    seq = kv + wos if peel else wos + kv
    if wol: seq = kv
    e(f"s_lshl_b32 s{S_TMP}, s{S_KVH}, 9")
    e(f"s_lshl_b32 s{S_TMP2}, s{S_W}, 6")
    e(f"s_add_u32 s{S_TMP}, s{S_TMP}, s{S_TMP2}")
    e(f"s_mul_i32 s{S_TMP}, s{S_TMP}, 896")
    e(f"s_lshl_b32 s{S_TMP2}, s{S_S}, 8")
    e(f"s_add_u32 s{S_TMP}, s{S_TMP}, s{S_TMP2}")
    e(f"s_sub_u32 s{S_TMP2}, {4096*896}, s{S_TMP}")
    srd(R_WO, S_WO, f"s{S_TMP}", f"s{S_TMP2}")
    e(f"v_mul_u32_u24 v12, {16*896//16}, v10")
    e(f"v_add_lshl_u32 v12, v12, v11, 4")
    e(f"s_cmp_eq_u32 s{S_S}, 3")
    e(f"s_cselect_b32 s{S_NC}, 64, 128")
    e(f"v_lshlrev_b32 v13, 3, v11")
    e(f"v_cmp_le_u32 vcc, s{S_NC}, v13")
    e(f"v_mov_b32 v13, 0x40000000")
    g.nop(1)
    e(f"v_cndmask_b32 v{V_WOFF}, v12, v13, vcc")
    stamp(0)
    if stamps:
        e(f"v_mov_b32 v14, s30")
        e(f"v_mov_b32 v15, s31")
        e(f"buffer_store_dwordx2 v[14:15], v13, s[{R_WS}:{R_WS+3}], 0 offen offset:80")
    bench = opt.get("bench", 0)
    if bench:
        for f, i, h in kv:
            f(i, h)
        for r in range(8):
            e(f"v_mov_b32 v{V_Q+r}, 0x3f9d3e80")
        e("s_branch L_bench")
    W0 = opt.get("w0", 8)
    STEP = opt.get("step", 4)
    b0 = opt.get("b0", 0)
    if b0:
        e("s_barrier")
    e(f"s_cmp_eq_u32 s{S_W}, 0")
    e("s_cbranch_scc1 L_nopre")
    for f, i, h in seq[:W0]:
        f(i, h)
    g.label("L_nopre")
    e(f"s_cmp_eq_u32 s{S_W}, 0")
    e("s_cbranch_scc1 L_w0w")
    e(f"s_waitcnt vmcnt({W0})")
    e("s_branch L_qc")
    g.label("L_w0w")
    e(f"s_waitcnt vmcnt(0)")
    g.label("L_qc")
    e(f"v_readfirstlane_b32 s{S_E}, v62")
    e(f"v_readfirstlane_b32 s{S_E+1}, v63")
    g.nop(4)
    e(f"s_add_u32 s{S_E}, s{S_E}, 1")
    e(f"s_addc_u32 s{S_E+1}, s{S_E+1}, 0")
    e(f"s_mov_b32 s{S_TA}, s{S_E}")
    e(f"s_brev_b32 s{S_TB}, s{S_E}")
    e(f"s_xor_b32 s{S_TB}, s{S_TB}, s{S_E+1}")
    stamp(1)
    QA = 56
    for i in range(14):
        sel = S_SELO if (i & 1) else S_SELE
        bb = 48 + 4 * (i & 1)
        e(f"v_perm_b32 v60, v{40+(i>>1)}, v{40+(i>>1)}, s{sel}")
        for t in range(4):
            e(f"v_and_b32 v{bb+t}, v60, v{V_M+t}")
        g.nop(2)
        csrc = "0" if i == 0 else vr(QA, 4)
        e(f"v_mfma_f32_16x16x32_bf16 {vr(QA,4)}, {vr(V_WQ+4*i,4)}, {vr(bb,4)}, {csrc}")
    e(f"v_and_b32 v12, 7, v{V_LANE}")
    e(f"v_lshlrev_b32 v12, 2, v12")
    e(f"v_lshl_add_u32 v12, v10, 7, v12")
    e(f"s_lshl_b32 s{S_TMP}, s{S_W}, 9")
    e(f"v_add_u32 v12, s{S_TMP}, v12")
    e(f"v_mov_b32 v13, {TK0}")
    e(f"v_mov_b32 v14, 0")
    g.nop(6)
    for r in range(4):
        e(f"ds_write_b32 v12, v{QA+r} offset:{L_QP + r*32}")
    e(f"ds_write_b32 v{V_TKA}, v13")
    e(f"ds_write_b32 v{V_TKA}, v14 offset:4")
    e("s_waitcnt lgkmcnt(0)")
    e("s_barrier")
    e(f"s_cmp_lg_u32 s{S_W}, 0")
    e("s_cbranch_scc1 L_paced")
    e(f"v_lshlrev_b32 v12, 4, v{V_LANE}")
    e(f"v_and_b32 v12, 0x1ff, v12")
    for w in range(8):
        e(f"ds_read_b128 v[{72+4*w}:{75+4*w}], v12 offset:{L_QP + w*512}")
    e(f"s_lshl_b32 s{S_TMP}, s{S_GRP}, 11")
    e(f"s_add_u32 s{S_TMP}, s{S_TMP}, {WS_Q}")
    e(f"s_lshl_b32 s{S_TMP2}, s{S_S}, 9")
    e(f"s_add_u32 s{S_TMP2}, s{S_TMP2}, s{S_TMP}")
    e("s_waitcnt lgkmcnt(0)")
    for w in range(1, 8):
        for c_ in range(4):
            e(f"v_add_f32 v{72+c_}, v{72+c_}, v{72+4*w+c_}")
    e(f"v_cvt_pk_bf16_f32 v40, v72, v73")
    e(f"v_mov_b32 v41, s{S_TA}")
    e(f"v_cvt_pk_bf16_f32 v42, v74, v75")
    e(f"v_mov_b32 v43, s{S_TB}")
    e("s_mov_b32 exec_hi, 0")
    e(f"buffer_store_dwordx4 v[40:43], v12, s[{R_WS}:{R_WS+3}], s{S_TMP2} offen sc1")
    e("s_mov_b64 exec, -1")
    stamp(2)
    e(f"v_lshlrev_b32 v12, 4, v{V_LANE}")
    e(f"s_mov_b32 s{S_CNT}, {SPIN}")
    g.label("L_poll1")
    e(f"buffer_load_dwordx4 v[40:43], v12, s[{R_WS}:{R_WS+3}], s{S_TMP} offen sc1")
    e(f"buffer_load_dwordx4 v[44:47], v12, s[{R_WS}:{R_WS+3}], s{S_TMP} offen offset:1024 sc1")
    e("s_waitcnt vmcnt(0)")
    tagcheck(40, 4)
    pollend("L_poll1")
    e(f"v_mov_b32 v41, v42")
    e(f"v_mov_b32 v45, v46")
    e(f"v_lshlrev_b32 v12, 3, v{V_LANE}")
    e(f"ds_write_b64 v12, v[40:41] offset:{L_Q}")
    e(f"ds_write_b64 v12, v[44:45] offset:{L_Q+512}")
    e("s_waitcnt lgkmcnt(0)")
    e(f"ds_write_b32 v{V_TKA}, v{V_ONE} offset:4")
    stamp(3)
    for f, i, h in seq:
        f(i, h)
    e("s_branch L_go")
    g.label("L_paced")
    e(f"s_mov_b32 s{S_RDY}, 0")

    def chk(lab):
        e(f"s_cmp_lg_u32 s{S_RDY}, 0")
        e(f"s_cbranch_scc1 {lab}")
        e(f"ds_read_b32 v13, v{V_TKA} offset:4")
        e("s_waitcnt lgkmcnt(0)")
        e(f"v_readfirstlane_b32 s{S_RDY}, v13")
        g.nop(4)
        e(f"s_cmp_lg_u32 s{S_RDY}, 0")
        e(f"s_cbranch_scc1 {lab}")
    j = W0
    while j < len(seq):
        chk(f"L_pi{j}")
        e(f"s_waitcnt vmcnt({max(W0-STEP,0)})")
        g.label(f"L_pi{j}")
        for f, i, h in seq[j:j+STEP]:
            f(i, h)
        j += STEP
    e(f"s_mov_b32 s{S_CNT}, {SPIN*16}")
    g.label("L_wflag")
    chk("L_go")
    e(f"s_sub_u32 s{S_CNT}, s{S_CNT}, 1")
    e("s_cbranch_scc0 L_wflag")
    g.label("L_go")
    e(f"v_lshrrev_b32 v12, 3, v11")
    e(f"v_lshlrev_b32 v12, 9, v12")
    e(f"v_lshl_add_u32 v12, v10, 6, v12")
    e(f"v_and_b32 v13, 3, v{V_LANE}")
    e(f"v_lshl_add_u32 v12, v13, 4, v12")
    e(f"ds_read_b128 {vr(V_Q,4)}, v12 offset:{L_Q}")
    e(f"ds_read_b128 {vr(V_Q+4,4)}, v12 offset:{L_Q+256}")
    g.label("L_bench")
    e(f"v_mov_b32 v{V_MC}, 0xff800000")
    e(f"v_mov_b32 v{V_L}, 0")
    for r in range(8):
        e(f"v_mov_b32 v{V_ACC+r}, 0")
    e("s_waitcnt lgkmcnt(0)")
    stamp(4)

    W = 4 * NG - 2

    def tile(first):
        u = g.lab; g.lab += 1
        extra = 16 if (first and not opt.get("bench", 0) and not opt.get("wol", 0)) else 0
        for i in range(NG):
            e(f"s_waitcnt vmcnt({W + extra})")
            if i == 0:
                if not first:
                    e(f"s_cmp_eq_u32 s{S_PEND}, 0")
                    e(f"s_cbranch_scc1 L_np{u}")
                    e("s_waitcnt lgkmcnt(0)")
                    e(f"s_mov_b32 s{S_NXT}, s{S_SA}")
                    e(f"s_mov_b32 s{S_PEND}, 0")
                    g.label(f"L_np{u}")
                set_offsets(S_NXT)
                e(f"s_cmp_ge_u32 s{S_NXT}, {ntiles}")
                e(f"s_cbranch_scc1 L_ntk{u}")
                e("s_mov_b64 exec, 1")
                e(f"ds_add_rtn_u32 v{V_TK}, v{V_TKA}, v{V_ONE}")
                e("s_mov_b64 exec, -1")
                g.label(f"L_ntk{u}")
            e(f"v_mfma_f32_16x16x32_bf16 {vr(V_S+4*i,4)}, {vr(V_KR+8*i,4)}, {vr(V_Q,4)}, 0")
            e(f"v_mfma_f32_16x16x32_bf16 {vr(V_S+4*i,4)}, {vr(V_KR+8*i+4,4)}, {vr(V_Q+4,4)}, {vr(V_S+4*i,4)}")
            ld_k(i, 0); ld_k(i, 1)
        e("s_waitcnt lgkmcnt(0)")
        e(f"v_readfirstlane_b32 s{S_N2}, v{V_TK}")
        g.nop(4)
        e(f"s_cmp_ge_u32 s{S_NXT}, {ntiles}")
        e(f"s_cbranch_scc1 L_inv{u}")
        e(f"s_cmp_ge_u32 s{S_N2}, {SW}")
        e(f"s_cbranch_scc1 L_pool{u}")
        e(f"s_add_u32 s{S_N2}, s{S_N2}, s{S_SB}")
        e(f"s_branch L_tkd{u}")
        g.label(f"L_pool{u}")
        if SW < 128:
            e(f"s_mov_b32 s{S_SA}, 1")
            e(f"s_atomic_add s{S_SA}, s[{S_CB}:{S_CB+1}], 0 glc")
            e(f"s_mov_b32 s{S_PEND}, 1")
            e(f"s_branch L_tkd{u}")
        g.label(f"L_inv{u}")
        e(f"s_mov_b32 s{S_N2}, {ntiles}")
        g.label(f"L_tkd{u}")
        for i in range(NG):
            s = V_S + 4 * i
            p = V_P + i
            e(f"v_mov_b32_dpp v{p}, v{s} quad_perm:[0,0,0,0] row_mask:0xf bank_mask:0xf")
            for k in range(1, 4):
                e(f"v_add_f32_dpp v{p}, v{s+k}, v{p} quad_perm:[{k},{k},{k},{k}] row_mask:0xf bank_mask:0xf")
        e(f"v_max3_f32 v10, v{V_P}, v{V_P+1}, v{V_P+2}")
        e(f"v_max_f32 v10, v10, v{V_P+3}")
        e(f"v_mov_b32 v11, v10")
        g.nop(2)
        e(f"v_permlane32_swap_b32 v10, v11")
        g.nop(1)
        e(f"v_max_f32 v10, v10, v11")
        e(f"v_mov_b32 v11, v10")
        g.nop(2)
        e(f"v_permlane16_swap_b32 v10, v11")
        g.nop(1)
        e(f"v_max_f32 v10, v10, v11")
        e(f"v_mul_f32 v10, s{S_C}, v10")
        e(f"v_max_f32 v10, v10, v{V_MC}")
        e(f"v_sub_f32 v11, v{V_MC}, v10")
        e(f"v_exp_f32 v11, v11")
        e(f"v_mov_b32 v{V_MC}, v10")
        for i in range(NG):
            e(f"v_fma_f32 v{V_P+i}, v{V_P+i}, s{S_C}, -v10")
        for i in range(NG):
            e(f"v_exp_f32 v{V_P+i}, v{V_P+i}")
        for r in range(8):
            e(f"v_mul_f32 v{V_ACC+r}, v{V_ACC+r}, v11")
        e(f"v_mul_f32 v{V_L}, v{V_L}, v11")
        for i in range(NG):
            s = V_S + 4 * i
            e(f"v_cvt_pk_bf16_f32 v12, v{V_P+i}, v{V_P+i}")
            e(f"v_add_f32 v{V_L}, v{V_L}, v{V_P+i}")
            for t in range(4):
                e(f"v_and_b32 v{s+t}, v12, v{V_M+t}")
        g.nop(2)
        for i in range(NG):
            e(f"s_waitcnt vmcnt({W + extra})")
            for h in range(2):
                e(f"v_mfma_f32_16x16x32_bf16 {vr(V_ACC+4*h,4)}, {vr(V_VR+8*i+4*h,4)}, {vr(V_S+4*i,4)}, {vr(V_ACC+4*h,4)}")
            ld_v(i, 0); ld_v(i, 1)
        e(f"s_mov_b32 s{S_CUR}, s{S_NXT}")
        e(f"s_mov_b32 s{S_NXT}, s{S_N2}")

    if LW < 8 and not hyb:
        e(f"s_cmp_ge_u32 s{S_W}, {LW}")
        e("s_cbranch_scc1 L_loopdone")
    if peel:
        tile(True)
        e(f"s_cmp_ge_u32 s{S_CUR}, {ntiles}")
        e("s_cbranch_scc1 L_loopdone")
    g.l.append(".p2align 6")
    g.label("L_loop")
    tile(False)
    e(f"s_cmp_lt_u32 s{S_CUR}, {ntiles}")
    e("s_cbranch_scc1 L_loop")
    g.label("L_loopdone")
    if lite:
        e("s_memrealtime s[24:25]")
    e("s_waitcnt vmcnt(0) lgkmcnt(0)")
    stamp(5)
    if bench:
        e("s_endpgm")
    dry = opt.get("dry", 0)
    e(f"v_and_b32 v{V_J}, 255, v{V_TID}")
    e(f"s_cmp_ge_u32 s{S_W}, 4")
    e(f"s_cselect_b32 s{S_MODE}, 1, 0")
    if dry:
        e(f"s_cmp_lg_u32 s{S_W}, {opt.get(chr(100)+chr(119), 7)}")
        e("s_cbranch_scc1 L_partA")
        e(f"s_mov_b32 s{S_MODE}, 2")
        e("s_branch L_partB")
        g.label("L_dryret")
        e("s_mov_b64 exec, -1")
        e(f"s_mov_b32 s{S_MODE}, 1")
        g.label("L_partA")

    def skip_if_dry(lab):
        if dry:
            e(f"s_cmp_eq_u32 s{S_MODE}, 2")
            e(f"s_cbranch_scc1 {lab}")

    e(f"v_lshrrev_b32 v10, 4, v{V_LANE}")
    e(f"v_and_b32 v11, 15, v{V_LANE}")
    e(f"v_mov_b32 v12, v{V_L}")
    g.nop(2)
    e(f"v_permlane32_swap_b32 v{V_L}, v12")
    g.nop(1)
    e(f"v_add_f32 v{V_L}, v{V_L}, v12")
    e(f"v_mov_b32 v12, v{V_L}")
    g.nop(2)
    e(f"v_permlane16_swap_b32 v{V_L}, v12")
    g.nop(1)
    e(f"v_add_f32 v{V_L}, v{V_L}, v12")
    e(f"v_lshrrev_b32 v12, 3, v11")
    e(f"s_lshl_b32 s{S_TMP}, s{S_W}, 4")
    e(f"v_lshlrev_b32 v13, 3, v12")
    e(f"v_add_u32 v13, s{S_TMP}, v13")
    e(f"ds_write_b64 v13, v[{V_MC}:{V_L}] offset:{L_ML}")
    e(f"v_lshlrev_b32 v13, 10, v12")
    e(f"v_lshl_add_u32 v13, v10, 7, v13")
    e(f"v_and_b32 v14, 7, v{V_LANE}")
    e(f"v_lshl_add_u32 v13, v14, 2, v13")
    e(f"s_lshl_b32 s{S_TMP}, s{S_W}, 11")
    e(f"v_add_u32 v13, s{S_TMP}, v13")
    g.nop(8)
    for h in range(2):
        for r in range(4):
            e(f"ds_write_b32 v13, v{V_ACC+4*h+r} offset:{L_O + h*512 + r*32}")
    e("s_waitcnt lgkmcnt(0)")
    if opt.get("fine", 0): stamp(11)
    e("s_barrier")
    if opt.get("fine", 0): stamp(12)
    e(f"s_cmp_eq_u32 s{S_MODE}, 1")
    if wol:
        e("s_cbranch_scc0 L_partB")
        for f, i, h in wos:
            f(i, h)
        e("s_branch L_comb_done")
    else:
        e("s_cbranch_scc1 L_comb_done")
    g.label("L_partB")
    e(f"v_lshlrev_b32 v12, 4, v{V_J}")
    e(f"v_lshrrev_b32 v10, 7, v{V_J}")
    e(f"v_lshlrev_b32 v11, 4, v10")
    e(f"s_lshl_b32 s{S_TMP}, s{S_GRP}, 15")
    e(f"s_add_u32 s{S_TMP}, s{S_TMP}, {WS_P}")

    def slot_addr(k):
        e(f"s_add_u32 s{S_TMP2}, s{S_S}, {k}")
        e(f"s_and_b32 s{S_TMP2}, s{S_TMP2}, 3")
        e(f"s_lshl_b32 s{S_TMP2}, s{S_TMP2}, 13")
        e(f"s_add_u32 s{S_TMP2}, s{S_TMP2}, s{S_TMP}")

    def p2_loads(k):
        slot_addr(k)
        e(f"buffer_load_dwordx4 v[{72+8*k}:{75+8*k}], v12, s[{R_WS}:{R_WS+3}], s{S_TMP2} offen offset:64 sc1")
        e(f"buffer_load_dwordx4 v[{76+8*k}:{79+8*k}], v11, s[{R_WS}:{R_WS+3}], s{S_TMP2} offen sc1")
    skip_if_dry("L_d1")
    for k in range(1, 4):
        p2_loads(k)
    g.label("L_d1")
    if wol:
        for f, i, h in wos:
            f(i, h)
    e(f"v_lshlrev_b32 v13, 3, v10")
    e(f"v_lshlrev_b32 v14, 3, v{V_J}")
    for w in range(8):
        e(f"ds_read_b64 v[{40+2*w}:{41+2*w}], v13 offset:{L_ML + w*16}")
    for w in range(8):
        e(f"ds_read_b64 v[{104+2*w}:{105+2*w}], v14 offset:{L_O + w*2048}")
    e("s_waitcnt lgkmcnt(0)")
    e("v_max3_f32 v76, v40, v42, v44")
    e("v_max3_f32 v76, v76, v46, v48")
    e("v_max3_f32 v76, v76, v50, v52")
    e("v_max_f32 v76, v76, v54")
    for w in range(8):
        e(f"v_sub_f32 v{40+2*w}, v{40+2*w}, v76")
    for w in range(8):
        e(f"v_exp_f32 v{40+2*w}, v{40+2*w}")
    g.nop(1)
    e("v_mul_f32 v78, v40, v41")
    e("v_mul_f32 v72, v40, v104")
    e("v_mul_f32 v74, v40, v105")
    for w in range(1, 8):
        e(f"v_fmac_f32 v78, v{40+2*w}, v{41+2*w}")
        e(f"v_fmac_f32 v72, v{40+2*w}, v{104+2*w}")
        e(f"v_fmac_f32 v74, v{40+2*w}, v{105+2*w}")
    e(f"v_mov_b32 v73, s{S_TA}")
    e(f"v_mov_b32 v75, s{S_TB}")
    e(f"v_mov_b32 v77, s{S_TA}")
    e(f"v_mov_b32 v79, s{S_TB}")
    slot_addr(0)
    skip_if_dry("L_d2")
    e(f"buffer_store_dwordx4 v[72:75], v12, s[{R_WS}:{R_WS+3}], s{S_TMP2} offen offset:64 sc1")
    e(f"v_and_b32 v13, 127, v{V_J}")
    e(f"v_cmp_eq_u32 vcc, 0, v13")
    e(f"s_and_saveexec_b64 s[{S_EX}:{S_EX+1}], vcc")
    e("s_cbranch_execz L_noml")
    e(f"buffer_store_dwordx4 v[76:79], v11, s[{R_WS}:{R_WS+3}], s{S_TMP2} offen sc1")
    g.label("L_noml")
    e(f"s_mov_b64 exec, -1")
    g.label("L_d2")
    stamp(6)
    e(f"s_mov_b32 s{S_CNT}, {SPIN}")
    e(f"s_cmp_eq_u32 s{S_MODE}, 2")
    e(f"s_cselect_b32 s{S_VM}, 15, 1")
    if wol:
        e("s_waitcnt vmcnt(17)")
        e("s_branch L_p2chk2")
    else:
        e("s_branch L_p2chk")
    g.label("L_poll2")
    for k in range(1, 4):
        e(f"s_bitcmp1_b32 s{S_VM}, {k}")
        e(f"s_cbranch_scc1 L_p2s{k}")
        p2_loads(k)
        g.label(f"L_p2s{k}")
    g.label("L_p2chk")
    e("s_waitcnt vmcnt(0)")
    g.label("L_p2chk2")
    for k in range(1, 4):
        tagcheck(72+8*k, 4)
        e("s_cmp_eq_u64 vcc, 0")
        e(f"s_cselect_b32 s{S_TMP2}, {1<<k}, 0")
        e(f"s_or_b32 s{S_VM}, s{S_VM}, s{S_TMP2}")
    e(f"s_sub_u32 s{S_CNT}, s{S_CNT}, 1")
    e("s_cbranch_scc1 L_poll2_done")
    e(f"s_cmp_lg_u32 s{S_VM}, 15")
    e("s_cbranch_scc1 L_poll2")
    g.label("L_poll2_done")
    stamp(7)
    e("v_max3_f32 v13, v76, v84, v92")
    e("v_max_f32 v13, v13, v100")
    for s_ in range(4):
        e(f"v_sub_f32 v{76+8*s_}, v{76+8*s_}, v13")
    for s_ in range(4):
        e(f"v_exp_f32 v{76+8*s_}, v{76+8*s_}")
    g.nop(1)
    e("v_mul_f32 v14, v76, v78")
    e("v_mul_f32 v15, v76, v72")
    e("v_mul_f32 v13, v76, v74")
    for s_ in range(1, 4):
        e(f"v_fmac_f32 v14, v{76+8*s_}, v{78+8*s_}")
        e(f"v_fmac_f32 v15, v{76+8*s_}, v{72+8*s_}")
        e(f"v_fmac_f32 v13, v{76+8*s_}, v{74+8*s_}")
    e("v_rcp_f32 v14, v14")
    g.nop(1)
    e("v_mul_f32 v15, v15, v14")
    e("v_mul_f32 v13, v13, v14")
    e("v_cvt_pk_bf16_f32 v15, v15, v13")
    e(f"v_lshlrev_b32 v13, 2, v{V_J}")
    e(f"ds_write_b32 v13, v15 offset:{L_OB}")
    e("s_waitcnt lgkmcnt(0)")
    g.label("L_comb_done")
    skip_if_dry("L_d3")
    e("s_barrier")
    g.label("L_d3")
    if opt.get("rep", 0):
        e(f"s_mov_b32 s23, 0")
        stamp(11)
        g.label("L_rep")
    e(f"v_lshrrev_b32 v10, 4, v{V_LANE}")
    e(f"s_lshl_b32 s{S_TMP}, s{S_W}, 7")
    e(f"v_lshlrev_b32 v12, 5, v10")
    e(f"v_add_u32 v12, s{S_TMP}, v12")
    e(f"ds_read_b128 v[40:43], v12 offset:{L_OB}")
    e(f"ds_read_b128 v[44:47], v12 offset:{L_OB+16}")
    e("s_waitcnt vmcnt(0) lgkmcnt(0)")
    for i in range(16):
        sel = S_SELO if (i & 1) else S_SELE
        bb = 48 + 4 * (i & 1)
        e(f"v_perm_b32 v60, v{40+(i>>1)}, v{40+(i>>1)}, s{sel}")
        for t in range(4):
            e(f"v_and_b32 v{bb+t}, v60, v{V_M+t}")
        g.nop(2)
        csrc = "0" if i == 0 else vr(QA, 4)
        e(f"v_mfma_f32_16x16x32_bf16 {vr(QA,4)}, {vr(V_WO+4*i,4)}, {vr(bb,4)}, {csrc}")
    e(f"v_and_b32 v12, 7, v{V_LANE}")
    e(f"v_lshlrev_b32 v12, 2, v12")
    e(f"v_lshl_add_u32 v12, v10, 7, v12")
    e(f"s_lshl_b32 s{S_TMP}, s{S_W}, 9")
    e(f"v_add_u32 v12, s{S_TMP}, v12")
    g.nop(8)
    for r in range(4):
        e(f"ds_write_b32 v12, v{QA+r} offset:{L_QP + r*32}")
    e("s_waitcnt lgkmcnt(0)")
    if opt.get("rep", 0):
        e("s_cmp_lg_u32 s23, 0")
        e("s_cbranch_scc1 L_rep2")
        stamp(12)
        e("s_mov_b32 s23, 1")
        e("s_branch L_rep")
        g.label("L_rep2")
        stamp(13)
    skip_if_dry("L_d4")
    e("s_barrier")
    e(f"s_cmp_lg_u32 s{S_W}, 0")
    e("s_cbranch_scc1 L_end")
    g.label("L_d4")
    e(f"v_lshlrev_b32 v13, 1, v{V_LANE}")
    e(f"v_cmp_gt_u32 vcc, s{S_NC}, v13")
    e(f"s_and_b64 exec, exec, vcc")
    e(f"v_lshlrev_b32 v14, 3, v{V_LANE}")
    for w in range(8):
        e(f"ds_read_b64 v[{40+2*w}:{41+2*w}], v14 offset:{L_QP + w*512}")
    e(f"s_lshl_b32 s{S_TMP}, s{S_FIN}, 13")
    e(f"s_add_u32 s{S_TMP}, s{S_TMP}, {WS_F}")
    e(f"s_lshl_b32 s{S_TMP2}, s{S_KVH}, 10")
    e(f"s_add_u32 s{S_TMP2}, s{S_TMP2}, s{S_TMP}")
    e(f"v_lshlrev_b32 v12, 4, v{V_LANE}")
    e("s_waitcnt lgkmcnt(0)")
    e(f"v_mov_b32 v72, v40")
    e(f"v_mov_b32 v74, v41")
    for w in range(1, 8):
        e(f"v_add_f32 v72, v72, v{40+2*w}")
        e(f"v_add_f32 v74, v74, v{41+2*w}")
    e(f"v_mov_b32 v73, s{S_TA}")
    e(f"v_mov_b32 v75, s{S_TB}")
    skip_if_dry("L_red")
    e(f"s_cmp_eq_u32 s{S_KVH}, s{S_KVR}")
    e("s_cbranch_scc1 L_red")
    e(f"buffer_store_dwordx4 v[72:75], v12, s[{R_WS}:{R_WS+3}], s{S_TMP2} offen sc1")
    stamp(8)
    lite_exit()
    e("s_endpgm")
    g.label("L_red")
    stamp(8)
    e(f"s_mov_b32 s{S_CNT}, {SPIN}")
    e(f"s_cmp_eq_u32 s{S_MODE}, 2")
    e(f"s_cselect_b32 s{S_VM}, 255, 1")
    g.label("L_poll3")
    for k in range(1, 8):
        e(f"s_bitcmp1_b32 s{S_VM}, {k}")
        e(f"s_cbranch_scc1 L_p3s{k}")
        e(f"s_add_u32 s{S_TMP2}, s{S_KVH}, {k}")
        e(f"s_and_b32 s{S_TMP2}, s{S_TMP2}, 7")
        e(f"s_lshl_b32 s{S_TMP2}, s{S_TMP2}, 10")
        e(f"s_add_u32 s{S_TMP2}, s{S_TMP2}, s{S_TMP}")
        e(f"buffer_load_dwordx4 v[{72+4*k}:{75+4*k}], v12, s[{R_WS}:{R_WS+3}], s{S_TMP2} offen sc1")
        g.label(f"L_p3s{k}")
    e("s_waitcnt vmcnt(0)")
    for k in range(1, 8):
        tagcheck(72+4*k, 2)
        e("s_cmp_eq_u64 vcc, 0")
        e(f"s_cselect_b32 s{S_TMP2}, {1<<k}, 0")
        e(f"s_or_b32 s{S_VM}, s{S_VM}, s{S_TMP2}")
    e(f"s_sub_u32 s{S_CNT}, s{S_CNT}, 1")
    e("s_cbranch_scc1 L_poll3_done")
    e(f"s_cmp_lg_u32 s{S_VM}, 255")
    e("s_cbranch_scc1 L_poll3")
    g.label("L_poll3_done")
    for k in range(1, 8):
        e(f"v_add_f32 v72, v72, v{72+4*k}")
        e(f"v_add_f32 v74, v74, v{74+4*k}")
    e("v_cvt_pk_bf16_f32 v40, v72, v74")
    e(f"s_mul_i32 s{S_TMP}, s{S_B}, 1792")
    e(f"s_mul_i32 s{S_TMP2}, s{S_AB}, 896")
    e(f"s_add_u32 s{S_TMP}, s{S_TMP}, s{S_TMP2}")
    e(f"s_lshl_b32 s{S_TMP2}, s{S_S}, 8")
    e(f"s_add_u32 s{S_TMP}, s{S_TMP}, s{S_TMP2}")
    e(f"v_lshlrev_b32 v12, 2, v{V_LANE}")
    skip_if_dry("L_dryret")
    e(f"buffer_store_dword v40, v12, s[{R_OUT}:{R_OUT+3}], s{S_TMP} offen")
    stamp(9)
    lite_exit()
    e(f"s_cmp_lg_u32 s{S_S}, 0")
    e("s_cbranch_scc1 L_end")
    e(f"s_lshr_b32 s{S_TMP}, s2, 5")
    e(f"s_lshl_b32 s{S_TMP}, s{S_TMP}, 7")
    e(f"v_mov_b32 v12, s{S_TMP}")
    e(f"v_mov_b32 v40, s{S_E}")
    e(f"v_mov_b32 v41, s{S_E+1}")
    e("s_mov_b64 exec, 1")
    e(f"buffer_store_dwordx2 v[40:41], v12, s[{R_WS}:{R_WS+3}], 0 offen offset:{WS_E} sc1")
    g.label("L_end")
    e("s_endpgm")
    g.l.append('.section .rodata,"a"')
    g.l.append(".p2align 6")
    g.l.append(f".amdhsa_kernel {KN}")
    g.l.append("  .amdhsa_next_free_vgpr 256")
    g.l.append("  .amdhsa_next_free_sgpr 102")
    g.l.append("  .amdhsa_accum_offset 256")
    g.l.append("  .amdhsa_group_segment_fixed_size 0")
    g.l.append("  .amdhsa_kernarg_size 104")
    g.l.append("  .amdhsa_user_sgpr_count 2")
    g.l.append("  .amdhsa_user_sgpr_kernarg_segment_ptr 1")
    g.l.append("  .amdhsa_system_sgpr_workgroup_id_x 1")
    g.l.append(".end_amdhsa_kernel")
    return "\n".join(g.l) + "\n"


if __name__ == "__main__":
    out = sys.argv[1]
    opt = {}
    for a in sys.argv[2:]:
        k, v = a.split("=")
        opt[k] = int(v, 0)
    open(out, "w").write(gen(opt))
```

```python
import sys
from gen import G, vr, HEADER, KN

WS_E = 0x0
WS_Q = 0x4000
WS_F = 0x40000
WS_P = 0x100000
WS_T = 0x400000
WS_C = 0x800000
WS_SIZE = 0x1000000

L_QP = 0
L_Q = 4096
L_ML = 5120
L_TK = 5248
L_OB = 5376
L_O = 8192
LDS_MIN = 8192 + 16384

S_X, S_K, S_V, S_WQ, S_WO = 4, 6, 8, 10, 12
S_OUT, S_DBG, S_WS = 44, 46, 48
S_KVH, S_S, S_B, S_AB, S_W, S_GRP = 14, 15, 16, 17, 18, 19
R_K, R_V, R_W, R_X, R_WS, R_OUT = 52, 56, 60, 68, 72, 80
S_T0 = 84
S_CNT = 88
S_TMP, S_TMP2, S_TMP3 = 89, 90, 91
S_C = 92
S_SELE, S_SELO = 93, 94
S_EX = 96
S_KVR = 3
S_ST = 64
S_FIN = 50
S_TA, S_TB = 76, 77
S_E = 78
S_CUR, S_NXT = 98, 99
S_N2 = 51
S_SA = 100
S_PEND = 101
S_CB = 66
S_ROT = 42
S_NC = 20
S_RDY = 21
S_VM = 22
S_MODE = 23
V_J = 61
R_WO = 36
S_SB = 43

V_TID, V_LANE, V_KOFF, V_VOFF = 0, 1, 2, 3
V_M = 4
V_MC, V_L = 8, 9
V_Q = 16
V_ACC = 24
V_P = 32
V_TK, V_TKA, V_ONE, V_WOFF = 36, 37, 38, 39
V_S = 40
V_TAG = 61


def gen(opt):
    g = G(opt)
    e, c = g.e, g.c
    NG = 4
    NT = " nt" if opt.get("nt", 1) else ""
    NTW = " nt" if opt.get("ntw", 0) else ""
    stamps = opt.get("stamps", 0)
    lite = opt.get("lite", 0)
    pre = opt.get("pre", 8)
    spread = opt.get("spread", 1)
    SW = opt.get("sw", 112)
    cstride = opt.get("cstride", 2048)
    lds = max(opt.get("lds", 0), LDS_MIN)
    SPIN = opt.get("spin", 0x20000)
    cpf = opt.get("cpf", 0)
    tile_bytes = NG * 2048
    ntiles = 8192 // (4 * NG)
    V_KR = 72
    V_VR = V_KR + 8 * NG
    V_WO = V_VR + 8 * NG
    V_WQ = 200

    dbgst = opt.get("dbgst", 0)

    def stamp(idx):
        if dbgst and idx in (0, 1, 3, 4, 5, 7, 9):
            e(f"s_memrealtime s[{S_ST}:{S_ST+1}]")
            e("s_waitcnt lgkmcnt(0)")
            if idx == 0:
                e(f"s_not_b32 s{S_ST}, s30")
            e(f"v_mov_b32 v14, s{S_ST}")
            e(f"v_mov_b32 v13, {idx*4}")
            e(f"s_mov_b32 s24, s{S_DBG}")
            e(f"s_mov_b32 s25, s{S_DBG+1}")
            e(f"s_mov_b32 s26, 256")
            e(f"s_mov_b32 s27, 0x00020000")
            e(f"s_mov_b64 s[28:29], exec")
            e(f"s_mov_b64 exec, 1")
            e(f"buffer_atomic_umax v14, v13, s[24:27], 0 offen")
            e(f"s_mov_b64 exec, s[28:29]")
            return
        if not stamps:
            return
        e(f"s_memrealtime s[{S_ST}:{S_ST+1}]")
        e("s_waitcnt lgkmcnt(0)")
        e(f"v_mov_b32 v14, s{S_ST}")
        e(f"v_mov_b32 v15, s{S_ST+1}")
        e(f"v_mov_b32 v13, s95")
        e(f"buffer_store_dwordx2 v[14:15], v13, s[{R_WS}:{R_WS+3}], 0 offen offset:{idx*8}")


    def lite_exit():
        if not lite: return
        e("s_memrealtime s[26:27]")
        e("s_waitcnt lgkmcnt(0)")
        e("s_mov_b64 exec, 1")
        e(f"s_lshl_b32 s28, s2, 11")
        e(f"s_add_u32 s28, s28, {WS_T}")
        e("v_mov_b32 v13, s28")
        e("v_mov_b32 v14, s30"); e("v_mov_b32 v15, s31")
        e(f"buffer_store_dwordx2 v[14:15], v13, s[{R_WS}:{R_WS+3}], 0 offen offset:0")
        e(f"buffer_store_dwordx2 v[14:15], v13, s[{R_WS}:{R_WS+3}], 0 offen offset:80")
        e("v_mov_b32 v16, s24"); e("v_mov_b32 v17, s25")
        e(f"buffer_store_dwordx2 v[16:17], v13, s[{R_WS}:{R_WS+3}], 0 offen offset:40")
        e("v_mov_b32 v18, s26"); e("v_mov_b32 v19, s27")
        e(f"buffer_store_dwordx2 v[18:19], v13, s[{R_WS}:{R_WS+3}], 0 offen offset:72")

    def srd(R, base, off_s, nrec):
        if off_s is None:
            e(f"s_mov_b32 s{R}, s{base}")
            e(f"s_mov_b32 s{R+1}, s{base+1}")
        else:
            e(f"s_add_u32 s{R}, s{base}, {off_s}")
            e(f"s_addc_u32 s{R+1}, s{base+1}, 0")
        e(f"s_mov_b32 s{R+2}, {nrec}")
        e(f"s_mov_b32 s{R+3}, 0x00020000")

    def tagcheck(first_reg, n):
        e(f"v_cmp_ne_u32 vcc, s{S_TA}, v{first_reg+1}")
        for k in range(1, n):
            tg = S_TB if (k & 1) else S_TA
            e(f"v_cmp_ne_u32 s[{S_EX}:{S_EX+1}], s{tg}, v{first_reg+2*k+1}")
            e(f"s_or_b64 vcc, vcc, s[{S_EX}:{S_EX+1}]")

    def pollend(lab):
        e(f"s_sub_u32 s{S_CNT}, s{S_CNT}, 1")
        e(f"s_cbranch_scc1 {lab}_done")
        e("s_cmp_lg_u64 vcc, 0")
        e(f"s_cbranch_scc1 {lab}")
        g.label(f"{lab}_done")

    g.l.append(HEADER.rstrip("\n"))
    g.l.append("""; ---------------------------------------------------------------------------------------------
;    {data, tagA, data, tagB} in d_ws (tags = epoch+1; the epoch word is bumped at the end of a launch).
; ---------------------------------------------------------------------------------------------""")
    g.l.append(f"; @launch grid=(256,1,1) block=(512,1,1) lds={lds}")
    g.l.append('.amdgcn_target "amdgcn-amd-amdhsa--gfx950"')
    g.l.append(".text")
    g.l.append(f".globl {KN}")
    g.l.append(".p2align 8")
    g.l.append(f".type {KN},@function")
    g.l.append(f"{KN}:")
    if stamps or opt.get("dbgst", 0) or lite:
        e("s_memrealtime s[30:31]")
    e("s_cmp_ge_u32 s2, 256")
    e("s_cbranch_scc1 L_end")
    e("s_load_dwordx8 s[20:27], s[0:1], 0")
    e("s_load_dwordx2 s[28:29], s[0:1], 32")
    e("s_load_dwordx8 s[32:39], s[0:1], 40")
    e("s_load_dwordx2 s[40:41], s[0:1], 72")
    e(f"s_load_dwordx4 s[{S_OUT}:{S_OUT+3}], s[0:1], 80")
    e(f"s_load_dwordx2 s[{S_WS}:{S_WS+1}], s[0:1], 96")
    e(f"v_lshrrev_b32 v10, 6, v0")
    e(f"v_and_b32 v{V_LANE}, 63, v0")
    e(f"v_readfirstlane_b32 s{S_W}, v10")
    e(f"s_lshr_b32 s{S_S}, s2, 3")
    e(f"s_and_b32 s{S_S}, s{S_S}, 3")
    e(f"s_and_b32 s{S_KVH}, s2, 7")
    if spread:
        e(f"s_and_b32 s{S_TMP}, s{S_S}, 1")
        e(f"s_lshr_b32 s{S_TMP2}, s{S_S}, 1")
        e(f"s_lshl_b32 s{S_TMP2}, s{S_TMP2}, 2")
        e(f"s_add_u32 s{S_TMP}, s{S_TMP}, s{S_TMP2}")
        e(f"s_sub_u32 s{S_KVH}, s{S_KVH}, s{S_TMP}")
        e(f"s_and_b32 s{S_KVH}, s{S_KVH}, 7")
    e(f"s_lshr_b32 s{S_B}, s2, 5")
    e(f"s_and_b32 s{S_B}, s{S_B}, 3")
    e(f"s_lshr_b32 s{S_AB}, s2, 7")
    e(f"s_lshr_b32 s{S_TMP}, s2, 5")
    e(f"s_lshl_b32 s{S_GRP}, s{S_TMP}, 3")
    e(f"s_or_b32 s{S_GRP}, s{S_GRP}, s{S_KVH}")
    e(f"s_lshl_b32 s{S_FIN}, s{S_TMP}, 2")
    e(f"s_or_b32 s{S_FIN}, s{S_FIN}, s{S_S}")
    e(f"s_and_b32 s{S_KVR}, s{S_FIN}, 7")
    e(f"s_lshl_b32 s{S_TMP3}, s{S_TMP}, 7")
    e(f"s_mov_b32 s{S_C}, 0x3db8aa3b")
    e(f"s_mov_b32 s{S_SELE}, 0x01000100")
    e(f"s_mov_b32 s{S_SELO}, 0x03020302")
    e(f"v_lshrrev_b32 v10, 4, v{V_LANE}")
    e(f"v_and_b32 v11, 15, v{V_LANE}")
    e(f"v_bfe_u32 v12, v{V_LANE}, 2, 2")
    e(f"v_lshlrev_b32 v12, 9, v12")
    e(f"v_lshl_add_u32 v12, v10, 6, v12")
    e(f"v_and_b32 v13, 3, v{V_LANE}")
    e(f"v_lshl_add_u32 v{V_KOFF}, v13, 4, v12")
    e(f"v_lshlrev_b32 v12, 9, v10")
    e(f"v_lshl_add_u32 v{V_VOFF}, v11, 4, v12")
    e(f"v_and_b32 v12, 1, v{V_LANE}")
    e(f"v_lshlrev_b32 v12, 4, v12")
    e(f"v_mov_b32 v13, 0xffff")
    e(f"v_lshlrev_b32 v13, v12, v13")
    e(f"v_bfe_u32 v12, v{V_LANE}, 1, 2")
    for t in range(4):
        e(f"v_cmp_eq_u32 vcc, {t}, v12")
        g.nop(2)
        e(f"v_cndmask_b32 v{V_M+t}, 0, v13, vcc")
    e("s_waitcnt lgkmcnt(0)")
    srd(R_WS, S_WS, None, hex(WS_SIZE))
    e(f"v_mov_b32 v62, s{S_TMP3}")
    e(f"buffer_load_dwordx2 v[62:63], v62, s[{R_WS}:{R_WS+3}], 0 offen offset:{WS_E} sc1")
    e(f"s_cmp_eq_u32 s{S_AB}, 0")
    for i, dst in enumerate([S_X, S_K, S_V, S_WQ, S_WO]):
        e(f"s_cselect_b64 s[{dst}:{dst+1}], s[{20+2*i}:{21+2*i}], s[{32+2*i}:{33+2*i}]")
    srd(R_X, S_X, None, "3584")
    e(f"s_mul_i32 s{S_TMP}, s{S_W}, {56*8192}")
    e(f"s_lshl_b32 s{S_TMP2}, s{S_KVH}, 10")
    e(f"s_add_u32 s{S_TMP}, s{S_TMP}, s{S_TMP2}")
    e(f"s_lshl_b32 s{S_TMP2}, s{S_S}, 8")
    e(f"s_add_u32 s{S_TMP}, s{S_TMP}, s{S_TMP2}")
    e(f"s_sub_u32 s{S_TMP2}, {448*8192}, s{S_TMP}")
    srd(R_W, S_WQ, f"s{S_TMP}", f"s{S_TMP2}")
    e(f"s_mul_i32 s{S_TMP}, s{S_B}, 896")
    e(f"s_mul_i32 s{S_TMP2}, s{S_W}, 112")
    e(f"s_add_u32 s{S_TMP}, s{S_TMP}, s{S_TMP2}")
    e(f"v_mul_u32_u24 v12, 28, v10")
    e(f"buffer_load_dwordx4 v[40:43], v12, s[{R_X}:{R_X+3}], s{S_TMP} offen")
    e(f"buffer_load_dwordx4 v[44:47], v12, s[{R_X}:{R_X+3}], s{S_TMP} offen offset:16")
    e(f"v_mul_u32_u24 v12, {14*8192//16}, v10")
    e(f"v_add_lshl_u32 v12, v12, v11, 4")
    e(f"s_mov_b32 s{S_TMP}, 0")
    for i in range(14):
        if not opt.get("noq", 0): e(f"buffer_load_dwordx4 {vr(V_WQ+4*i,4)}, v12, s[{R_W}:{R_W+3}], s{S_TMP} offen{NTW}")
        if i < 13:
            e(f"s_add_u32 s{S_TMP}, s{S_TMP}, 8192")
    e(f"s_lshl_b32 s{S_TMP}, s{S_B}, 3")
    e(f"s_or_b32 s{S_TMP}, s{S_TMP}, s{S_KVH}")
    e(f"s_lshl_b32 s{S_TMP}, s{S_TMP}, 22")
    srd(R_K, S_K, f"s{S_TMP}", "0x400000")
    srd(R_V, S_V, f"s{S_TMP}", "0x400000")
    srd(R_OUT, S_OUT, None, "7168")
    e(f"s_mul_i32 s{S_TMP3}, s{S_GRP}, {cstride}")
    e(f"s_add_u32 s{S_TMP3}, s{S_TMP3}, {WS_C}")
    e(f"s_add_u32 s{S_CB}, s{S_WS}, s{S_TMP3}")
    e(f"s_addc_u32 s{S_CB+1}, s{S_WS+1}, 0")
    if stamps:
        e(f"s_lshl_b32 s95, s2, 11")
        e(f"s_lshl_b32 s{S_TMP}, s{S_W}, 8")
        e(f"s_add_u32 s95, s95, s{S_TMP}")
        e(f"s_add_u32 s95, s95, {WS_T}")
    e(f"v_mov_b32 v{V_TKA}, {L_TK}")
    e(f"v_mov_b32 v{V_ONE}, 1")
    if SW < 128:
        e(f"s_or_b32 s{S_TMP}, s{S_S}, s{S_W}")
        e(f"s_cmp_lg_u32 s{S_TMP}, 0")
        e("s_cbranch_scc1 L_noinit")
        e(f"v_mov_b32 v12, s{S_TMP3}")
        e(f"v_mov_b32 v13, {4*SW}")
        e(f"s_mov_b64 exec, 1")
        e(f"buffer_store_dword v13, v12, s[{R_WS}:{R_WS+3}], 0 offen sc1")
        e(f"s_mov_b64 exec, -1")
        g.label("L_noinit")
    e(f"s_mul_i32 s{S_SB}, s{S_S}, {SW}")
    e(f"s_add_u32 s{S_CUR}, s{S_SB}, s{S_W}")
    LW = opt.get("lw", 3)
    hyb = opt.get("hyb", 1)
    if hyb:
        e(f"s_add_u32 s{S_NXT}, s{S_CUR}, 8")
        e(f"s_cmp_ge_u32 s{S_W}, {LW}")
        e(f"s_cselect_b32 s{S_NXT}, {ntiles}, s{S_NXT}")
        TK0 = 8 + LW
    else:
        e(f"s_add_u32 s{S_NXT}, s{S_CUR}, {LW}")
        if LW < 8:
            e(f"s_cmp_ge_u32 s{S_W}, {LW}")
            e(f"s_cselect_b32 s{S_CUR}, {ntiles}, s{S_CUR}")
            e(f"s_cselect_b32 s{S_NXT}, {ntiles}, s{S_NXT}")
        TK0 = 2 * LW
    e(f"s_mov_b32 s{S_PEND}, 0")

    def set_offsets(sidx):
        e(f"s_lshl_b32 s{S_T0}, s{sidx}, 13")
        e(f"s_add_u32 s{S_T0+1}, s{S_T0}, 4096")

    set_offsets(S_CUR)

    def ld_k(i, h):
        e(f"buffer_load_dwordx4 {vr(V_KR+8*i+4*h,4)}, v{V_KOFF}, s[{R_K}:{R_K+3}], s{S_T0+(i>>1)} offen offset:{(i&1)*2048+h*256}{NT}")

    def ld_v(i, h):
        e(f"buffer_load_dwordx4 {vr(V_VR+8*i+4*h,4)}, v{V_VOFF}, s[{R_V}:{R_V+3}], s{S_T0+(i>>1)} offen offset:{(i&1)*2048+h*256}{NT}")

    def ld_wo(ii, _):
        e(f"s_mov_b32 s{S_TMP2}, {ii*896}")
        e(f"buffer_load_dwordx4 {vr(V_WO+4*ii,4)}, v{V_WOFF}, s[{R_WO}:{R_WO+3}], s{S_TMP2} offen{NTW}")

    peel = opt.get("peel", 1)
    kv = [(ld_k, i, h) for i in range(NG) for h in range(2)] + [(ld_v, i, h) for i in range(NG) for h in range(2)]
    wos = [(ld_wo, ii, 0) for ii in range(16)]
    wol = opt.get("wol", 0)
    seq = kv + wos if peel else wos + kv
    if wol: seq = kv
    e(f"s_lshl_b32 s{S_TMP}, s{S_KVH}, 9")
    e(f"s_lshl_b32 s{S_TMP2}, s{S_W}, 6")
    e(f"s_add_u32 s{S_TMP}, s{S_TMP}, s{S_TMP2}")
    e(f"s_mul_i32 s{S_TMP}, s{S_TMP}, 896")
    e(f"s_lshl_b32 s{S_TMP2}, s{S_S}, 8")
    e(f"s_add_u32 s{S_TMP}, s{S_TMP}, s{S_TMP2}")
    e(f"s_sub_u32 s{S_TMP2}, {4096*896}, s{S_TMP}")
    srd(R_WO, S_WO, f"s{S_TMP}", f"s{S_TMP2}")
    e(f"v_mul_u32_u24 v12, {16*896//16}, v10")
    e(f"v_add_lshl_u32 v12, v12, v11, 4")
    e(f"s_cmp_eq_u32 s{S_S}, 3")
    e(f"s_cselect_b32 s{S_NC}, 64, 128")
    e(f"v_lshlrev_b32 v13, 3, v11")
    e(f"v_cmp_le_u32 vcc, s{S_NC}, v13")
    e(f"v_mov_b32 v13, 0x40000000")
    g.nop(1)
    e(f"v_cndmask_b32 v{V_WOFF}, v12, v13, vcc")
    stamp(0)
    if stamps:
        e(f"v_mov_b32 v14, s30")
        e(f"v_mov_b32 v15, s31")
        e(f"buffer_store_dwordx2 v[14:15], v13, s[{R_WS}:{R_WS+3}], 0 offen offset:80")
    bench = opt.get("bench", 0)
    if bench:
        for f, i, h in kv:
            f(i, h)
        for r in range(8):
            e(f"v_mov_b32 v{V_Q+r}, 0x3f9d3e80")
        e("s_branch L_bench")
    W0 = opt.get("w0", 8)
    STEP = opt.get("step", 4)
    b0 = opt.get("b0", 0)
    if b0:
        e("s_barrier")
    e(f"s_cmp_eq_u32 s{S_W}, 0")
    e("s_cbranch_scc1 L_nopre")
    for f, i, h in seq[:W0]:
        f(i, h)
    g.label("L_nopre")
    e(f"s_cmp_eq_u32 s{S_W}, 0")
    e("s_cbranch_scc1 L_w0w")
    e(f"s_waitcnt vmcnt({W0})")
    e("s_branch L_qc")
    g.label("L_w0w")
    e(f"s_waitcnt vmcnt(0)")
    g.label("L_qc")
    e(f"v_readfirstlane_b32 s{S_E}, v62")
    e(f"v_readfirstlane_b32 s{S_E+1}, v63")
    g.nop(4)
    e(f"s_add_u32 s{S_E}, s{S_E}, 1")
    e(f"s_addc_u32 s{S_E+1}, s{S_E+1}, 0")
    e(f"s_mov_b32 s{S_TA}, s{S_E}")
    e(f"s_brev_b32 s{S_TB}, s{S_E}")
    e(f"s_xor_b32 s{S_TB}, s{S_TB}, s{S_E+1}")
    stamp(1)
    QA = 56
    for i in range(14):
        sel = S_SELO if (i & 1) else S_SELE
        bb = 48 + 4 * (i & 1)
        e(f"v_perm_b32 v60, v{40+(i>>1)}, v{40+(i>>1)}, s{sel}")
        for t in range(4):
            e(f"v_and_b32 v{bb+t}, v60, v{V_M+t}")
        g.nop(2)
        csrc = "0" if i == 0 else vr(QA, 4)
        e(f"v_mfma_f32_16x16x32_bf16 {vr(QA,4)}, {vr(V_WQ+4*i,4)}, {vr(bb,4)}, {csrc}")
    e(f"v_and_b32 v12, 7, v{V_LANE}")
    e(f"v_lshlrev_b32 v12, 2, v12")
    e(f"v_lshl_add_u32 v12, v10, 7, v12")
    e(f"s_lshl_b32 s{S_TMP}, s{S_W}, 9")
    e(f"v_add_u32 v12, s{S_TMP}, v12")
    e(f"v_mov_b32 v13, {TK0}")
    e(f"v_mov_b32 v14, 0")
    g.nop(6)
    for r in range(4):
        e(f"ds_write_b32 v12, v{QA+r} offset:{L_QP + r*32}")
    e(f"ds_write_b32 v{V_TKA}, v13")
    e(f"ds_write_b32 v{V_TKA}, v14 offset:4")
    e("s_waitcnt lgkmcnt(0)")
    e("s_barrier")
    e(f"s_cmp_lg_u32 s{S_W}, 0")
    e("s_cbranch_scc1 L_paced")
    e(f"v_lshlrev_b32 v12, 4, v{V_LANE}")
    e(f"v_and_b32 v12, 0x1ff, v12")
    for w in range(8):
        e(f"ds_read_b128 v[{72+4*w}:{75+4*w}], v12 offset:{L_QP + w*512}")
    e(f"s_lshl_b32 s{S_TMP}, s{S_GRP}, 11")
    e(f"s_add_u32 s{S_TMP}, s{S_TMP}, {WS_Q}")
    e(f"s_lshl_b32 s{S_TMP2}, s{S_S}, 9")
    e(f"s_add_u32 s{S_TMP2}, s{S_TMP2}, s{S_TMP}")
    e("s_waitcnt lgkmcnt(0)")
    for w in range(1, 8):
        for c_ in range(4):
            e(f"v_add_f32 v{72+c_}, v{72+c_}, v{72+4*w+c_}")
    e(f"v_cvt_pk_bf16_f32 v40, v72, v73")
    e(f"v_mov_b32 v41, s{S_TA}")
    e(f"v_cvt_pk_bf16_f32 v42, v74, v75")
    e(f"v_mov_b32 v43, s{S_TB}")
    e("s_mov_b32 exec_hi, 0")
    e(f"buffer_store_dwordx4 v[40:43], v12, s[{R_WS}:{R_WS+3}], s{S_TMP2} offen sc1")
    e("s_mov_b64 exec, -1")
    stamp(2)
    e(f"v_lshlrev_b32 v12, 4, v{V_LANE}")
    e(f"s_mov_b32 s{S_CNT}, {SPIN}")
    g.label("L_poll1")
    e(f"buffer_load_dwordx4 v[40:43], v12, s[{R_WS}:{R_WS+3}], s{S_TMP} offen sc1")
    e(f"buffer_load_dwordx4 v[44:47], v12, s[{R_WS}:{R_WS+3}], s{S_TMP} offen offset:1024 sc1")
    e("s_waitcnt vmcnt(0)")
    tagcheck(40, 4)
    pollend("L_poll1")
    e(f"v_mov_b32 v41, v42")
    e(f"v_mov_b32 v45, v46")
    e(f"v_lshlrev_b32 v12, 3, v{V_LANE}")
    e(f"ds_write_b64 v12, v[40:41] offset:{L_Q}")
    e(f"ds_write_b64 v12, v[44:45] offset:{L_Q+512}")
    e("s_waitcnt lgkmcnt(0)")
    e(f"ds_write_b32 v{V_TKA}, v{V_ONE} offset:4")
    stamp(3)
    for f, i, h in seq:
        f(i, h)
    e("s_branch L_go")
    g.label("L_paced")
    e(f"s_mov_b32 s{S_RDY}, 0")

    def chk(lab):
        e(f"s_cmp_lg_u32 s{S_RDY}, 0")
        e(f"s_cbranch_scc1 {lab}")
        e(f"ds_read_b32 v13, v{V_TKA} offset:4")
        e("s_waitcnt lgkmcnt(0)")
        e(f"v_readfirstlane_b32 s{S_RDY}, v13")
        g.nop(4)
        e(f"s_cmp_lg_u32 s{S_RDY}, 0")
        e(f"s_cbranch_scc1 {lab}")
    j = W0
    while j < len(seq):
        chk(f"L_pi{j}")
        e(f"s_waitcnt vmcnt({max(W0-STEP,0)})")
        g.label(f"L_pi{j}")
        for f, i, h in seq[j:j+STEP]:
            f(i, h)
        j += STEP
    e(f"s_mov_b32 s{S_CNT}, {SPIN*16}")
    g.label("L_wflag")
    chk("L_go")
    e(f"s_sub_u32 s{S_CNT}, s{S_CNT}, 1")
    e("s_cbranch_scc0 L_wflag")
    g.label("L_go")
    e(f"v_lshrrev_b32 v12, 3, v11")
    e(f"v_lshlrev_b32 v12, 9, v12")
    e(f"v_lshl_add_u32 v12, v10, 6, v12")
    e(f"v_and_b32 v13, 3, v{V_LANE}")
    e(f"v_lshl_add_u32 v12, v13, 4, v12")
    e(f"ds_read_b128 {vr(V_Q,4)}, v12 offset:{L_Q}")
    e(f"ds_read_b128 {vr(V_Q+4,4)}, v12 offset:{L_Q+256}")
    g.label("L_bench")
    e(f"v_mov_b32 v{V_MC}, 0xff800000")
    e(f"v_mov_b32 v{V_L}, 0")
    for r in range(8):
        e(f"v_mov_b32 v{V_ACC+r}, 0")
    e("s_waitcnt lgkmcnt(0)")
    stamp(4)

    W = 4 * NG - 2

    def tile(first):
        u = g.lab; g.lab += 1
        extra = 16 if (first and not opt.get("bench", 0) and not opt.get("wol", 0)) else 0
        for i in range(NG):
            e(f"s_waitcnt vmcnt({W + extra})")
            if i == 0:
                if not first:
                    e(f"s_cmp_eq_u32 s{S_PEND}, 0")
                    e(f"s_cbranch_scc1 L_np{u}")
                    e("s_waitcnt lgkmcnt(0)")
                    e(f"s_mov_b32 s{S_NXT}, s{S_SA}")
                    e(f"s_mov_b32 s{S_PEND}, 0")
                    g.label(f"L_np{u}")
                set_offsets(S_NXT)
                e(f"s_cmp_ge_u32 s{S_NXT}, {ntiles}")
                e(f"s_cbranch_scc1 L_ntk{u}")
                e("s_mov_b64 exec, 1")
                e(f"ds_add_rtn_u32 v{V_TK}, v{V_TKA}, v{V_ONE}")
                e("s_mov_b64 exec, -1")
                g.label(f"L_ntk{u}")
            e(f"v_mfma_f32_16x16x32_bf16 {vr(V_S+4*i,4)}, {vr(V_KR+8*i,4)}, {vr(V_Q,4)}, 0")
            e(f"v_mfma_f32_16x16x32_bf16 {vr(V_S+4*i,4)}, {vr(V_KR+8*i+4,4)}, {vr(V_Q+4,4)}, {vr(V_S+4*i,4)}")
            ld_k(i, 0); ld_k(i, 1)
        e("s_waitcnt lgkmcnt(0)")
        e(f"v_readfirstlane_b32 s{S_N2}, v{V_TK}")
        g.nop(4)
        e(f"s_cmp_ge_u32 s{S_NXT}, {ntiles}")
        e(f"s_cbranch_scc1 L_inv{u}")
        e(f"s_cmp_ge_u32 s{S_N2}, {SW}")
        e(f"s_cbranch_scc1 L_pool{u}")
        e(f"s_add_u32 s{S_N2}, s{S_N2}, s{S_SB}")
        e(f"s_branch L_tkd{u}")
        g.label(f"L_pool{u}")
        if SW < 128:
            e(f"s_mov_b32 s{S_SA}, 1")
            e(f"s_atomic_add s{S_SA}, s[{S_CB}:{S_CB+1}], 0 glc")
            e(f"s_mov_b32 s{S_PEND}, 1")
            e(f"s_branch L_tkd{u}")
        g.label(f"L_inv{u}")
        e(f"s_mov_b32 s{S_N2}, {ntiles}")
        g.label(f"L_tkd{u}")
        for i in range(NG):
            s = V_S + 4 * i
            p = V_P + i
            e(f"v_mov_b32_dpp v{p}, v{s} quad_perm:[0,0,0,0] row_mask:0xf bank_mask:0xf")
            for k in range(1, 4):
                e(f"v_add_f32_dpp v{p}, v{s+k}, v{p} quad_perm:[{k},{k},{k},{k}] row_mask:0xf bank_mask:0xf")
        e(f"v_max3_f32 v10, v{V_P}, v{V_P+1}, v{V_P+2}")
        e(f"v_max_f32 v10, v10, v{V_P+3}")
        e(f"v_mov_b32 v11, v10")
        g.nop(2)
        e(f"v_permlane32_swap_b32 v10, v11")
        g.nop(1)
        e(f"v_max_f32 v10, v10, v11")
        e(f"v_mov_b32 v11, v10")
        g.nop(2)
        e(f"v_permlane16_swap_b32 v10, v11")
        g.nop(1)
        e(f"v_max_f32 v10, v10, v11")
        e(f"v_mul_f32 v10, s{S_C}, v10")
        e(f"v_max_f32 v10, v10, v{V_MC}")
        e(f"v_sub_f32 v11, v{V_MC}, v10")
        e(f"v_exp_f32 v11, v11")
        e(f"v_mov_b32 v{V_MC}, v10")
        for i in range(NG):
            e(f"v_fma_f32 v{V_P+i}, v{V_P+i}, s{S_C}, -v10")
        for i in range(NG):
            e(f"v_exp_f32 v{V_P+i}, v{V_P+i}")
        for r in range(8):
            e(f"v_mul_f32 v{V_ACC+r}, v{V_ACC+r}, v11")
        e(f"v_mul_f32 v{V_L}, v{V_L}, v11")
        for i in range(NG):
            s = V_S + 4 * i
            e(f"v_cvt_pk_bf16_f32 v12, v{V_P+i}, v{V_P+i}")
            e(f"v_add_f32 v{V_L}, v{V_L}, v{V_P+i}")
            for t in range(4):
                e(f"v_and_b32 v{s+t}, v12, v{V_M+t}")
        g.nop(2)
        for i in range(NG):
            e(f"s_waitcnt vmcnt({W + extra})")
            for h in range(2):
                e(f"v_mfma_f32_16x16x32_bf16 {vr(V_ACC+4*h,4)}, {vr(V_VR+8*i+4*h,4)}, {vr(V_S+4*i,4)}, {vr(V_ACC+4*h,4)}")
            ld_v(i, 0); ld_v(i, 1)
        e(f"s_mov_b32 s{S_CUR}, s{S_NXT}")
        e(f"s_mov_b32 s{S_NXT}, s{S_N2}")

    if LW < 8 and not hyb:
        e(f"s_cmp_ge_u32 s{S_W}, {LW}")
        e("s_cbranch_scc1 L_loopdone")
    if peel:
        tile(True)
        e(f"s_cmp_ge_u32 s{S_CUR}, {ntiles}")
        e("s_cbranch_scc1 L_loopdone")
    g.l.append(".p2align 6")
    g.label("L_loop")
    tile(False)
    e(f"s_cmp_lt_u32 s{S_CUR}, {ntiles}")
    e("s_cbranch_scc1 L_loop")
    g.label("L_loopdone")
    if lite:
        e("s_memrealtime s[24:25]")
    e("s_waitcnt vmcnt(0) lgkmcnt(0)")
    stamp(5)
    if bench:
        e("s_endpgm")
    dry = opt.get("dry", 0)
    if opt.get("touch", 0):
        e(f"s_cmp_lg_u32 s{S_W}, 7")
        e("s_cbranch_scc1 L_notouch")
        e(f"v_lshlrev_b32 v12, 4, v{V_LANE}")
        e(f"s_lshl_b32 s{S_TMP}, s{S_GRP}, 15")
        e(f"s_add_u32 s{S_TMP}, s{S_TMP}, {WS_P}")
        for k in range(4):
            for c_ in range(4):
                e(f"buffer_load_dwordx4 v[{72+4*c_}:{75+4*c_}], v12, s[{R_WS}:{R_WS+3}], s{S_TMP} offen offset:{c_*1024} sc1")
            e(f"buffer_load_dwordx4 v[88:91], v12, s[{R_WS}:{R_WS+3}], s{S_TMP} offen offset:4080 sc1")
            e(f"s_add_u32 s{S_TMP}, s{S_TMP}, 8192")
        e(f"s_lshl_b32 s{S_TMP}, s{S_FIN}, 13")
        e(f"s_add_u32 s{S_TMP}, s{S_TMP}, {WS_F}")
        for k in range(2):
            for c_ in range(4):
                e(f"buffer_load_dwordx4 v[{72+4*c_}:{75+4*c_}], v12, s[{R_WS}:{R_WS+3}], s{S_TMP} offen offset:{c_*1024} sc1")
            e(f"s_add_u32 s{S_TMP}, s{S_TMP}, 4096")
        e("s_waitcnt vmcnt(0)")
        g.label("L_notouch")
    e(f"v_and_b32 v{V_J}, 255, v{V_TID}")
    e(f"s_cmp_ge_u32 s{S_W}, 4")
    e(f"s_cselect_b32 s{S_MODE}, 1, 0")
    if dry:
        e(f"s_cmp_lg_u32 s{S_W}, {opt.get(chr(100)+chr(119), 7)}")
        e("s_cbranch_scc1 L_partA")
        e(f"s_mov_b32 s{S_MODE}, 2")
        e("s_branch L_partB")
        g.label("L_dryret")
        e("s_mov_b64 exec, -1")
        e(f"s_mov_b32 s{S_MODE}, 1")
        g.label("L_partA")

    def skip_if_dry(lab):
        if dry:
            e(f"s_cmp_eq_u32 s{S_MODE}, 2")
            e(f"s_cbranch_scc1 {lab}")

    e(f"v_lshrrev_b32 v10, 4, v{V_LANE}")
    e(f"v_and_b32 v11, 15, v{V_LANE}")
    e(f"v_mov_b32 v12, v{V_L}")
    g.nop(2)
    e(f"v_permlane32_swap_b32 v{V_L}, v12")
    g.nop(1)
    e(f"v_add_f32 v{V_L}, v{V_L}, v12")
    e(f"v_mov_b32 v12, v{V_L}")
    g.nop(2)
    e(f"v_permlane16_swap_b32 v{V_L}, v12")
    g.nop(1)
    e(f"v_add_f32 v{V_L}, v{V_L}, v12")
    e(f"v_lshrrev_b32 v12, 3, v11")
    e(f"s_lshl_b32 s{S_TMP}, s{S_W}, 4")
    e(f"v_lshlrev_b32 v13, 3, v12")
    e(f"v_add_u32 v13, s{S_TMP}, v13")
    e(f"ds_write_b64 v13, v[{V_MC}:{V_L}] offset:{L_ML}")
    e(f"v_lshlrev_b32 v13, 10, v12")
    e(f"v_lshl_add_u32 v13, v10, 7, v13")
    e(f"v_and_b32 v14, 7, v{V_LANE}")
    e(f"v_lshl_add_u32 v13, v14, 2, v13")
    e(f"s_lshl_b32 s{S_TMP}, s{S_W}, 11")
    e(f"v_add_u32 v13, s{S_TMP}, v13")
    g.nop(8)
    for h in range(2):
        for r in range(4):
            e(f"ds_write_b32 v13, v{V_ACC+4*h+r} offset:{L_O + h*512 + r*32}")
    e("s_waitcnt lgkmcnt(0)")
    if opt.get("fine", 0): stamp(11)
    e("s_barrier")
    if opt.get("fine", 0): stamp(12)
    e(f"s_cmp_eq_u32 s{S_MODE}, 1")
    if wol:
        e("s_cbranch_scc0 L_partB")
        for f, i, h in wos:
            f(i, h)
        e("s_branch L_comb_done")
    elif opt.get("warmd", 0):
        e("s_cbranch_scc0 L_partB")
        e(f"s_mov_b32 s{S_MODE}, 3")
        e("s_branch L_d3")
    else:
        e("s_cbranch_scc1 L_comb_done")
    g.label("L_partB")
    e(f"v_lshlrev_b32 v12, 4, v{V_J}")
    e(f"v_lshrrev_b32 v10, 7, v{V_J}")
    e(f"v_lshlrev_b32 v11, 4, v10")
    e(f"s_lshl_b32 s{S_TMP}, s{S_GRP}, 15")
    e(f"s_add_u32 s{S_TMP}, s{S_TMP}, {WS_P}")

    def slot_addr(k):
        e(f"s_add_u32 s{S_TMP2}, s{S_S}, {k}")
        e(f"s_and_b32 s{S_TMP2}, s{S_TMP2}, 3")
        e(f"s_lshl_b32 s{S_TMP2}, s{S_TMP2}, 13")
        e(f"s_add_u32 s{S_TMP2}, s{S_TMP2}, s{S_TMP}")

    def p2_loads(k):
        slot_addr(k)
        e(f"buffer_load_dwordx4 v[{72+8*k}:{75+8*k}], v12, s[{R_WS}:{R_WS+3}], s{S_TMP2} offen offset:64 sc1")
        e(f"buffer_load_dwordx4 v[{76+8*k}:{79+8*k}], v11, s[{R_WS}:{R_WS+3}], s{S_TMP2} offen sc1")
    skip_if_dry("L_d1")
    for k in range(1, 4):
        p2_loads(k)
    g.label("L_d1")
    if wol:
        for f, i, h in wos:
            f(i, h)
    e(f"v_lshlrev_b32 v13, 3, v10")
    e(f"v_lshlrev_b32 v14, 3, v{V_J}")
    for w in range(8):
        e(f"ds_read_b64 v[{40+2*w}:{41+2*w}], v13 offset:{L_ML + w*16}")
    for w in range(8):
        e(f"ds_read_b64 v[{104+2*w}:{105+2*w}], v14 offset:{L_O + w*2048}")
    e("s_waitcnt lgkmcnt(0)")
    e("v_max3_f32 v76, v40, v42, v44")
    e("v_max3_f32 v76, v76, v46, v48")
    e("v_max3_f32 v76, v76, v50, v52")
    e("v_max_f32 v76, v76, v54")
    for w in range(8):
        e(f"v_sub_f32 v{40+2*w}, v{40+2*w}, v76")
    for w in range(8):
        e(f"v_exp_f32 v{40+2*w}, v{40+2*w}")
    g.nop(1)
    e("v_mul_f32 v78, v40, v41")
    e("v_mul_f32 v72, v40, v104")
    e("v_mul_f32 v74, v40, v105")
    for w in range(1, 8):
        e(f"v_fmac_f32 v78, v{40+2*w}, v{41+2*w}")
        e(f"v_fmac_f32 v72, v{40+2*w}, v{104+2*w}")
        e(f"v_fmac_f32 v74, v{40+2*w}, v{105+2*w}")
    e(f"v_mov_b32 v73, s{S_TA}")
    e(f"v_mov_b32 v75, s{S_TB}")
    e(f"v_mov_b32 v77, s{S_TA}")
    e(f"v_mov_b32 v79, s{S_TB}")
    slot_addr(0)
    skip_if_dry("L_d2")
    e(f"buffer_store_dwordx4 v[72:75], v12, s[{R_WS}:{R_WS+3}], s{S_TMP2} offen offset:64 sc1")
    e(f"v_and_b32 v13, 127, v{V_J}")
    e(f"v_cmp_eq_u32 vcc, 0, v13")
    e(f"s_and_saveexec_b64 s[{S_EX}:{S_EX+1}], vcc")
    e("s_cbranch_execz L_noml")
    e(f"buffer_store_dwordx4 v[76:79], v11, s[{R_WS}:{R_WS+3}], s{S_TMP2} offen sc1")
    g.label("L_noml")
    e(f"s_mov_b64 exec, -1")
    g.label("L_d2")
    stamp(6)
    e(f"s_mov_b32 s{S_CNT}, {SPIN}")
    e(f"s_cmp_eq_u32 s{S_MODE}, 2")
    e(f"s_cselect_b32 s{S_VM}, 15, 1")
    if wol:
        e("s_waitcnt vmcnt(17)")
        e("s_branch L_p2chk2")
    else:
        e("s_branch L_p2chk")
    g.label("L_poll2")
    for k in range(1, 4):
        e(f"s_bitcmp1_b32 s{S_VM}, {k}")
        e(f"s_cbranch_scc1 L_p2s{k}")
        p2_loads(k)
        g.label(f"L_p2s{k}")
    g.label("L_p2chk")
    e("s_waitcnt vmcnt(0)")
    g.label("L_p2chk2")
    for k in range(1, 4):
        tagcheck(72+8*k, 4)
        e("s_cmp_eq_u64 vcc, 0")
        e(f"s_cselect_b32 s{S_TMP2}, {1<<k}, 0")
        e(f"s_or_b32 s{S_VM}, s{S_VM}, s{S_TMP2}")
    e(f"s_sub_u32 s{S_CNT}, s{S_CNT}, 1")
    e("s_cbranch_scc1 L_poll2_done")
    e(f"s_cmp_lg_u32 s{S_VM}, 15")
    e("s_cbranch_scc1 L_poll2")
    g.label("L_poll2_done")
    stamp(7)
    e("v_max3_f32 v13, v76, v84, v92")
    e("v_max_f32 v13, v13, v100")
    for s_ in range(4):
        e(f"v_sub_f32 v{76+8*s_}, v{76+8*s_}, v13")
    for s_ in range(4):
        e(f"v_exp_f32 v{76+8*s_}, v{76+8*s_}")
    g.nop(1)
    e("v_mul_f32 v14, v76, v78")
    e("v_mul_f32 v15, v76, v72")
    e("v_mul_f32 v13, v76, v74")
    for s_ in range(1, 4):
        e(f"v_fmac_f32 v14, v{76+8*s_}, v{78+8*s_}")
        e(f"v_fmac_f32 v15, v{76+8*s_}, v{72+8*s_}")
        e(f"v_fmac_f32 v13, v{76+8*s_}, v{74+8*s_}")
    e("v_rcp_f32 v14, v14")
    g.nop(1)
    e("v_mul_f32 v15, v15, v14")
    e("v_mul_f32 v13, v13, v14")
    e("v_cvt_pk_bf16_f32 v15, v15, v13")
    e(f"v_lshlrev_b32 v13, 2, v{V_J}")
    e(f"ds_write_b32 v13, v15 offset:{L_OB}")
    e("s_waitcnt lgkmcnt(0)")
    g.label("L_comb_done")
    skip_if_dry("L_d3")
    e("s_barrier")
    g.label("L_d3")
    if opt.get("rep", 0):
        e(f"s_mov_b32 s23, 0")
        stamp(11)
        g.label("L_rep")
    e(f"v_lshrrev_b32 v10, 4, v{V_LANE}")
    e(f"s_lshl_b32 s{S_TMP}, s{S_W}, 7")
    e(f"v_lshlrev_b32 v12, 5, v10")
    e(f"v_add_u32 v12, s{S_TMP}, v12")
    e(f"ds_read_b128 v[40:43], v12 offset:{L_OB}")
    e(f"ds_read_b128 v[44:47], v12 offset:{L_OB+16}")
    e("s_waitcnt vmcnt(0) lgkmcnt(0)")
    for i in range(16):
        sel = S_SELO if (i & 1) else S_SELE
        bb = 48 + 4 * (i & 1)
        e(f"v_perm_b32 v60, v{40+(i>>1)}, v{40+(i>>1)}, s{sel}")
        for t in range(4):
            e(f"v_and_b32 v{bb+t}, v60, v{V_M+t}")
        g.nop(2)
        csrc = "0" if i == 0 else vr(QA, 4)
        e(f"v_mfma_f32_16x16x32_bf16 {vr(QA,4)}, {vr(V_WO+4*i,4)}, {vr(bb,4)}, {csrc}")
    e(f"v_and_b32 v12, 7, v{V_LANE}")
    e(f"v_lshlrev_b32 v12, 2, v12")
    e(f"v_lshl_add_u32 v12, v10, 7, v12")
    e(f"s_lshl_b32 s{S_TMP}, s{S_W}, 9")
    e(f"v_add_u32 v12, s{S_TMP}, v12")
    g.nop(8)
    for r in range(4):
        e(f"ds_write_b32 v12, v{QA+r} offset:{L_QP + r*32}")
    e("s_waitcnt lgkmcnt(0)")
    if opt.get("rep", 0):
        e("s_cmp_lg_u32 s23, 0")
        e("s_cbranch_scc1 L_rep2")
        stamp(12)
        e("s_mov_b32 s23, 1")
        e("s_branch L_rep")
        g.label("L_rep2")
        stamp(13)
    if opt.get("warmd", 0):
        e(f"s_cmp_lg_u32 s{S_MODE}, 3")
        e("s_cbranch_scc1 L_dreal")
        e(f"s_mov_b32 s{S_MODE}, 1")
        e("s_branch L_comb_done")
        g.label("L_dreal")
    skip_if_dry("L_d4")
    e("s_barrier")
    e(f"s_cmp_lg_u32 s{S_W}, 0")
    e("s_cbranch_scc1 L_end")
    g.label("L_d4")
    e(f"v_lshlrev_b32 v13, 1, v{V_LANE}")
    e(f"v_cmp_gt_u32 vcc, s{S_NC}, v13")
    e(f"s_and_b64 exec, exec, vcc")
    e(f"v_lshlrev_b32 v14, 3, v{V_LANE}")
    for w in range(8):
        e(f"ds_read_b64 v[{40+2*w}:{41+2*w}], v14 offset:{L_QP + w*512}")
    e(f"s_lshl_b32 s{S_TMP}, s{S_FIN}, 13")
    e(f"s_add_u32 s{S_TMP}, s{S_TMP}, {WS_F}")
    e(f"s_lshl_b32 s{S_TMP2}, s{S_KVH}, 10")
    e(f"s_add_u32 s{S_TMP2}, s{S_TMP2}, s{S_TMP}")
    e(f"v_lshlrev_b32 v12, 4, v{V_LANE}")
    e("s_waitcnt lgkmcnt(0)")
    e(f"v_mov_b32 v72, v40")
    e(f"v_mov_b32 v74, v41")
    for w in range(1, 8):
        e(f"v_add_f32 v72, v72, v{40+2*w}")
        e(f"v_add_f32 v74, v74, v{41+2*w}")
    e(f"v_mov_b32 v73, s{S_TA}")
    e(f"v_mov_b32 v75, s{S_TB}")
    skip_if_dry("L_red")
    e(f"s_cmp_eq_u32 s{S_KVH}, s{S_KVR}")
    e("s_cbranch_scc1 L_red")
    e(f"buffer_store_dwordx4 v[72:75], v12, s[{R_WS}:{R_WS+3}], s{S_TMP2} offen sc1")
    stamp(8)
    lite_exit()
    e("s_endpgm")
    g.label("L_red")
    stamp(8)
    e(f"s_mov_b32 s{S_CNT}, {SPIN}")
    e(f"s_cmp_eq_u32 s{S_MODE}, 2")
    e(f"s_cselect_b32 s{S_VM}, 255, 1")
    g.label("L_poll3")
    for k in range(1, 8):
        e(f"s_bitcmp1_b32 s{S_VM}, {k}")
        e(f"s_cbranch_scc1 L_p3s{k}")
        e(f"s_add_u32 s{S_TMP2}, s{S_KVH}, {k}")
        e(f"s_and_b32 s{S_TMP2}, s{S_TMP2}, 7")
        e(f"s_lshl_b32 s{S_TMP2}, s{S_TMP2}, 10")
        e(f"s_add_u32 s{S_TMP2}, s{S_TMP2}, s{S_TMP}")
        e(f"buffer_load_dwordx4 v[{72+4*k}:{75+4*k}], v12, s[{R_WS}:{R_WS+3}], s{S_TMP2} offen sc1")
        g.label(f"L_p3s{k}")
    e("s_waitcnt vmcnt(0)")
    for k in range(1, 8):
        tagcheck(72+4*k, 2)
        e("s_cmp_eq_u64 vcc, 0")
        e(f"s_cselect_b32 s{S_TMP2}, {1<<k}, 0")
        e(f"s_or_b32 s{S_VM}, s{S_VM}, s{S_TMP2}")
    e(f"s_sub_u32 s{S_CNT}, s{S_CNT}, 1")
    e("s_cbranch_scc1 L_poll3_done")
    e(f"s_cmp_lg_u32 s{S_VM}, 255")
    e("s_cbranch_scc1 L_poll3")
    g.label("L_poll3_done")
    for k in range(1, 8):
        e(f"v_add_f32 v72, v72, v{72+4*k}")
        e(f"v_add_f32 v74, v74, v{74+4*k}")
    e("v_cvt_pk_bf16_f32 v40, v72, v74")
    e(f"s_mul_i32 s{S_TMP}, s{S_B}, 1792")
    e(f"s_mul_i32 s{S_TMP2}, s{S_AB}, 896")
    e(f"s_add_u32 s{S_TMP}, s{S_TMP}, s{S_TMP2}")
    e(f"s_lshl_b32 s{S_TMP2}, s{S_S}, 8")
    e(f"s_add_u32 s{S_TMP}, s{S_TMP}, s{S_TMP2}")
    e(f"v_lshlrev_b32 v12, 2, v{V_LANE}")
    skip_if_dry("L_dryret")
    e(f"buffer_store_dword v40, v12, s[{R_OUT}:{R_OUT+3}], s{S_TMP} offen")
    stamp(9)
    lite_exit()
    e(f"s_cmp_lg_u32 s{S_S}, 0")
    e("s_cbranch_scc1 L_end")
    e(f"s_lshr_b32 s{S_TMP}, s2, 5")
    e(f"s_lshl_b32 s{S_TMP}, s{S_TMP}, 7")
    e(f"v_mov_b32 v12, s{S_TMP}")
    e(f"v_mov_b32 v40, s{S_E}")
    e(f"v_mov_b32 v41, s{S_E+1}")
    e("s_mov_b64 exec, 1")
    e(f"buffer_store_dwordx2 v[40:41], v12, s[{R_WS}:{R_WS+3}], 0 offen offset:{WS_E} sc1")
    g.label("L_end")
    e("s_endpgm")
    g.l.append('.section .rodata,"a"')
    g.l.append(".p2align 6")
    g.l.append(f".amdhsa_kernel {KN}")
    g.l.append("  .amdhsa_next_free_vgpr 256")
    g.l.append("  .amdhsa_next_free_sgpr 102")
    g.l.append("  .amdhsa_accum_offset 256")
    g.l.append("  .amdhsa_group_segment_fixed_size 0")
    g.l.append("  .amdhsa_kernarg_size 104")
    g.l.append("  .amdhsa_user_sgpr_count 2")
    g.l.append("  .amdhsa_user_sgpr_kernarg_segment_ptr 1")
    g.l.append("  .amdhsa_system_sgpr_workgroup_id_x 1")
    g.l.append(".end_amdhsa_kernel")
    return "\n".join(g.l) + "\n"


if __name__ == "__main__":
    out = sys.argv[1]
    opt = {}
    for a in sys.argv[2:]:
        k, v = a.split("=")
        opt[k] = int(v, 0)
    open(out, "w").write(gen(opt))
```
